```python
import torch

def _softmax(x, axis=-1):
    return torch.softmax(x, dim=axis)
def _gelu(x):
    return torch.nn.functional.gelu(x, approximate="tanh")
def _silu(x):
    return torch.nn.functional.silu(x)
def _sigmoid(x):
    return torch.sigmoid(x)
def _layernorm(x, axis=-1, eps=1e-5):
    m = x.mean(dim=axis, keepdim=True)
    v = x.var(dim=axis, keepdim=True, unbiased=False)
    return (x - m) / torch.sqrt(v + eps)
def _scatter_add(tgt, idx, src, axis=0):
    return tgt.clone().index_add_(axis, idx, src)
def _segment_sum(src, seg, n):
    out = torch.zeros((n,) + src.shape[1:], dtype=src.dtype)
    return out.index_add_(0, seg, src)
def _pad(x, pw):
    flat = tuple(v for pair in reversed(pw) for v in pair)
    return torch.nn.functional.pad(x, flat)

kernel_name = 'concat_heads__mha_block_cached__mha_block_cached__near_ridge'

def setup_inputs():

    _w = (lambda a: (lambda t: t.to(torch.bfloat16) if t.is_floating_point() else t)(torch.as_tensor(a)))
    def _A_setup():
        B, Sq, D = 16, 160, 448
        H, Sk, Dh = 16, 512, 256
        return {
            "x": _w((lambda *s: torch.randn(*s, dtype=torch.bfloat16) * 0.8)(B, Sq, D)),
            "k_cache": _w((lambda *s: torch.randn(*s, dtype=torch.bfloat16) * 0.8)(B, H, Sk, Dh)),
            "v_cache": _w((lambda *s: torch.randn(*s, dtype=torch.bfloat16) * 0.05)(B, H, Sk, Dh)),
            "wq": _w((lambda *s: torch.randn(*s, dtype=torch.bfloat16) * 0.8)(D, H * Dh) * (D ** -0.5)),
            "wo": _w((lambda *s: torch.randn(*s, dtype=torch.bfloat16) * 0.05)(H * Dh, D) * ((H * Dh) ** -0.5)),
        }
    _A_in = _A_setup()

    def _B_setup():
        B, Sq, D = 16, 160, 448
        H, Sk, Dh = 16, 512, 256
        return {
            "x": _w((lambda *s: torch.randn(*s, dtype=torch.bfloat16) * 0.8)(B, Sq, D)),
            "k_cache": _w((lambda *s: torch.randn(*s, dtype=torch.bfloat16) * 0.8)(B, H, Sk, Dh)),
            "v_cache": _w((lambda *s: torch.randn(*s, dtype=torch.bfloat16) * 0.05)(B, H, Sk, Dh)),
            "wq": _w((lambda *s: torch.randn(*s, dtype=torch.bfloat16) * 0.8)(D, H * Dh) * (D ** -0.5)),
            "wo": _w((lambda *s: torch.randn(*s, dtype=torch.bfloat16) * 0.05)(H * Dh, D) * ((H * Dh) ** -0.5)),
        }
    _B_in = _B_setup()

    return {
        "A_x": _A_in["x"],
        "A_k_cache": _A_in["k_cache"],
        "A_v_cache": _A_in["v_cache"],
        "A_wq": _A_in["wq"],
        "A_wo": _A_in["wo"],
        "B_x": _B_in["x"],
        "B_k_cache": _B_in["k_cache"],
        "B_v_cache": _B_in["v_cache"],
        "B_wq": _B_in["wq"],
        "B_wo": _B_in["wo"],
    }

def reference(A_x, A_k_cache, A_v_cache, A_wq, A_wo, B_x, B_k_cache, B_v_cache, B_wq, B_wo):
    def _A_ref(x, k_cache, v_cache, wq, wo):
        B, Sq, D = x.shape
        H, Dh = 16, 256
        q = (lambda x, *d: x.permute(*d))((x @ wq).reshape(B, Sq, H, Dh), 0, 2, 1, 3)
        scores = torch.einsum("bhqd,bhkd->bhqk", q, k_cache) * (Dh ** -0.5)
        p = _softmax(scores, axis=-1)
        o = torch.einsum("bhqk,bhkd->bhqd", p, v_cache)
        return (lambda x, *d: x.permute(*d))(o, 0, 2, 1, 3).reshape(B, Sq, H * Dh) @ wo

    def _B_ref(x, k_cache, v_cache, wq, wo):
        B, Sq, D = x.shape
        H, Dh = 16, 256
        q = (lambda x, *d: x.permute(*d))((x @ wq).reshape(B, Sq, H, Dh), 0, 2, 1, 3)
        scores = torch.einsum("bhqd,bhkd->bhqk", q, k_cache) * (Dh ** -0.5)
        p = _softmax(scores, axis=-1)
        o = torch.einsum("bhqk,bhkd->bhqd", p, v_cache)
        return (lambda x, *d: x.permute(*d))(o, 0, 2, 1, 3).reshape(B, Sq, H * Dh) @ wo

    a = _A_ref(A_x, A_k_cache, A_v_cache, A_wq, A_wo)
    b = _B_ref(B_x, B_k_cache, B_v_cache, B_wq, B_wo)
    return torch.concatenate([a, b], axis=-1)
```

```python
NAME = "concat_heads__mha_block_cached__mha_block_cached__near_ridge"
HDR = open("cdna_kernels/%s.s.ref" % NAME).read().split("; Override launch")[0]

class Asm:
    def __init__(self):
        self.lines = []
        self.nlabel = 0
    def __call__(self, s):
        for l in s.split("\n"):
            self.lines.append("    " + l.strip() if l.strip() and not l.strip().endswith(":") else l.strip())
    def label(self, p="L"):
        self.nlabel += 1
        return "%s_%d" % (p, self.nlabel)
    def text(self):
        return "\n".join(self.lines) + "\n"

def kernel_begin(name):
    return ".text\n.globl %s\n.p2align 8\n.type %s,@function\n%s:\n" % (name, name, name)

def kernel_desc(name, vgpr, accum, sgpr=102):
    return (".section .rodata,\"a\"\n.p2align 6\n.amdhsa_kernel %s\n"
            "  .amdhsa_next_free_vgpr %d\n  .amdhsa_next_free_sgpr %d\n  .amdhsa_accum_offset %d\n"
            "  .amdhsa_group_segment_fixed_size 0\n  .amdhsa_kernarg_size 104\n  .amdhsa_user_sgpr_count 2\n"
            "  .amdhsa_user_sgpr_kernarg_segment_ptr 1\n  .amdhsa_system_sgpr_workgroup_id_x 1\n"
            ".end_amdhsa_kernel\n" % (name, vgpr, sgpr, accum))

def write_file(path, launches, kernels):
    s = HDR
    if len(launches) == 1 and launches[0][0] == NAME + "_kernel":
        n, g, b, l = launches[0]
        s += "; @launch grid=(%d,1,1) block=(%d,1,1) lds=%d\n" % (g, b, l)
    else:
        for n, g, b, l in launches:
            s += "; @launch kernel=%s grid=(%d,1,1) block=(%d,1,1) lds=%d\n" % (n, g, b, l)
    s += ".amdgcn_target \"amdgcn-amd-amdhsa--gfx950\"\n"
    for n, body, v, a, sg in kernels:
        s += kernel_begin(n) + body
    for n, body, v, a, sg in kernels:
        s += kernel_desc(n, v, a, sg)
    open(path, "w").write(s)
```

```python
import re

TRANS = ("v_exp_f32", "v_log_f32", "v_rcp_f32", "v_rsq_f32", "v_sqrt_f32", "v_sin_f32", "v_cos_f32")
REG_RE = re.compile(r"^(-|abs\()?([vas])(?:(\d+)|\[(\d+):(\d+)\])\)?$")

def regs_of(tok):
    tok = tok.strip()
    if tok in ("vcc", "exec", "m0", "scc"):
        return [(tok, 0)]
    m = REG_RE.match(tok)
    if not m:
        return []
    k = m.group(2)
    if m.group(3) is not None:
        return [(k, int(m.group(3)))]
    return [(k, i) for i in range(int(m.group(4)), int(m.group(5)) + 1)]

class Emit:
    def __init__(self):
        self.lines = []
        self.t = 0
        self.mfma_w = {}
        self.mfma_c = {}
        self.valu_w = {}
        self.trans_w = {}
        self.valu_sw = {}
        self.m0_w = -100
        self.store_d = {}
        self.nops = 0
        self.noplog = []
        self.lds = []
        self.vm = []
        self.lds_done = 0
        self.vm_done = 0
        self.nlabel = 0
        self.waits = []
        self.wait_override = None
        self.ninst = 0

    def label(self, p="L"):
        self.nlabel += 1
        return "%s_%d" % (p, self.nlabel)

    def raw(self, s):
        self.lines.append(s)

    def comment(self, s):
        self.lines.append("    ; " + s)

    def reset_hazards(self):
        pass

    def __call__(self, text):
        for l in text.split("\n"):
            l = l.split(";")[0].strip()
            if not l:
                continue
            if l.endswith(":"):
                self.lines.append(l)
                continue
            self.inst(l)

    def _classify(self, op, ops):
        R = lambda i: regs_of(ops[i]) if i < len(ops) else []
        allr = lambda lo: [r for i in range(lo, len(ops)) for r in regs_of(ops[i])]
        if op.startswith("v_mfma"):
            return "mfma", R(0), R(1) + R(2), R(3)
        if op.startswith("v_permlane"):
            return "perm", R(0) + R(1), R(0) + R(1), None
        if op.startswith("v_cmp"):
            return "valu", R(0), allr(1), None
        if op.startswith("v_readfirstlane") or op.startswith("v_readlane"):
            return "rdl", R(0), allr(1), None
        if op.startswith("v_"):
            src = allr(1)
            if op.startswith("v_fmac") or op.startswith("v_dot2c"):
                src = src + R(0)
            return "valu", R(0), src, None
        if op.startswith("ds_read"):
            return "dsr", R(0), R(1), None
        if op.startswith("ds_write"):
            return "dsw", [], allr(0), None
        if op.startswith("buffer_load") or op.startswith("global_load"):
            if "lds" in ops[-1].split() or "_lds_" in op:
                return "dma", [], allr(0), None
            return "vld", R(0), allr(1), None
        if op.startswith("buffer_store") or op.startswith("global_store"):
            return "vst", [], allr(0), None
        if op.startswith("buffer_atomic") or op.startswith("global_atomic"):
            return "vst", [], allr(0), None
        if op.startswith("s_"):
            return "salu", R(0), allr(1), None
        return "other", [], [], None

    def inst(self, l):
        parts = l.split(None, 1)
        op = parts[0]
        ops = []
        if len(parts) > 1:
            ops = [x.strip() for x in parts[1].split(",")]
        ops_clean = [o.split()[0] if o.split() else o for o in ops]
        kind, dst, src, csrc = self._classify(op, [ops_clean[i] if i < len(ops) - 1 else ops[i] for i in range(len(ops))] if False else ops_clean + ([ops[-1]] if ops and len(ops[-1].split()) > 1 else []))
        need = 0
        def req(t0, n, why):
            nonlocal need
            d = self.t - t0 - 1
            if d < n:
                if n - d > need:
                    need = n - d
                    self._why = why
        if kind == "mfma":
            passes = 8 if "32x32x16" in op else 4
            for r in src:
                if r in self.mfma_w:
                    t0, p, _ = self.mfma_w[r]; req(t0, 12 if p == 8 else 8, "mfmaD->AB")
                if r in self.valu_w: req(self.valu_w[r], 2, "valu->mfma")
            key = (dst[0], len(dst))
            for r in csrc:
                if r in self.mfma_w:
                    t0, p, k = self.mfma_w[r]
                    if not (k == (csrc[0], len(csrc)) and p == passes):
                        req(t0, 10 if p == 8 else 6, "mfmaD->C ovl")
                if r in self.valu_w: req(self.valu_w[r], 2, "valu->mfmaC")
            if not csrc:
                for r in dst:
                    if r in self.mfma_w:
                        t0, p, k = self.mfma_w[r]
                        if k != key: req(t0, 12 if p == 8 else 8, "mfma WAW")
        elif kind in ("valu", "perm", "rdl"):
            for r in src + dst:
                if r in self.mfma_w:
                    t0, p, _ = self.mfma_w[r]; req(t0, 12 if p == 8 else 8, "mfmaD->valu")
            for r in dst:
                if r in self.mfma_c:
                    t0, p = self.mfma_c[r]; req(t0, 7 if p == 8 else 3, "mfmaC WAR")
                if r in self.store_d: req(self.store_d[r], 2, "store data WAR")
            for r in src:
                if r in self.trans_w and re.sub(r"_e(32|64)$", "", op) not in TRANS: req(self.trans_w[r], 1, "trans->valu")
                if r in self.valu_sw: req(self.valu_sw[r], 2, "valu sgpr->valu")
                if kind == "perm" and r in self.valu_w: req(self.valu_w[r], 2, "valu->permlane")
                if kind == "rdl" and r in self.valu_w: req(self.valu_w[r], 1, "valu->readlane")
        elif kind in ("dsr", "dsw", "dma", "vld", "vst"):
            for r in src + dst:
                if r in self.mfma_w:
                    t0, p, _ = self.mfma_w[r]; req(t0, 12 if p == 8 else 8, "mfmaD->mem")
            for r in src:
                if r in self.valu_sw and kind in ("dma", "vld", "vst"): req(self.valu_sw[r], 5, "valu sgpr->vmem")
                if r in self.trans_w: req(self.trans_w[r], 1, "trans->mem")
            for r in dst:
                if r in self.store_d: req(self.store_d[r], 1, "store data WAR")
            if kind == "dma": req(self.m0_w, 1, "m0->dma")
        elif kind == "salu":
            for r in src:
                if r in self.valu_sw: req(self.valu_sw[r], 1, "valu sgpr->salu(pad)")
        if need > 0:
            self.nops += 1
            self.noplog.append((len(self.lines), need, self._why, l))
            n = need
            while n > 0:
                k = min(n, 16)
                self.lines.append("    s_nop %d" % (k - 1))
                self.t += k
                n -= k
        self.lines.append("    " + l)
        self.ninst += 1
        now = self.t
        if op == "s_nop":
            self.t += int(ops[0], 0) + 1
        else:
            self.t += 1
        if kind == "mfma":
            passes = 8 if "32x32x16" in op else 4
            key = (dst[0], len(dst))
            for r in dst:
                self.mfma_w[r] = (now, passes, key)
                self.valu_w.pop(r, None)
            for r in csrc: self.mfma_c[r] = (now, passes)
        elif kind in ("valu", "perm", "rdl"):
            for r in dst:
                if r[0] in ("v", "a"):
                    self.valu_w[r] = now
                    self.mfma_w.pop(r, None)
                    if re.sub(r"_e(32|64)$", "", op) in TRANS: self.trans_w[r] = now
                    else: self.trans_w.pop(r, None)
                else:
                    self.valu_sw[r] = now
        elif kind in ("dsr", "vld"):
            for r in dst:
                self.mfma_w.pop(r, None); self.valu_w.pop(r, None); self.trans_w.pop(r, None)
        elif kind == "vst":
            if "x4" in op or "x3" in op:
                for r in regs_of(ops_clean[0]): self.store_d[r] = now
        elif kind == "salu":
            for r in dst:
                if r == ("m0", 0): self.m0_w = now
                self.valu_sw.pop(r, None)

    def lds_op(self, text, tag=None):
        self(text)
        self.lds.append(tag)
        return len(self.lds) - 1
    def vm_op(self, text, tag=None):
        self(text)
        self.vm.append(tag)
        return len(self.vm) - 1
    def _find(self, lst, tag):
        for i in range(len(lst) - 1, -1, -1):
            if lst[i] == tag:
                return i
        raise KeyError(tag)
    def wait(self, lds=None, vm=None, force=False):
        s = []
        nl = nv = None
        if lds is not None:
            tags = lds if isinstance(lds, list) else [lds]
            idx = max(self._find(self.lds, t) for t in tags)
            nl = min(len(self.lds) - 1 - idx, 15)
            if idx < self.lds_done and not force: nl = None
        if vm is not None:
            tags = vm if isinstance(vm, list) else [vm]
            idx = max(self._find(self.vm, t) for t in tags)
            nv = min(len(self.vm) - 1 - idx, 63)
            if idx < self.vm_done and not force: nv = None
        k = len(self.waits)
        self.waits.append((nl, nv))
        if self.wait_override is not None and k < len(self.wait_override):
            nl, nv = self.wait_override[k]
        if nv is not None:
            s.append("vmcnt(%d)" % nv); self.vm_done = max(self.vm_done, len(self.vm) - nv)
        if nl is not None:
            s.append("lgkmcnt(%d)" % nl); self.lds_done = max(self.lds_done, len(self.lds) - nl)
        if s:
            self("s_waitcnt " + " ".join(s))
    def wait_all(self, vm=True, lds=True):
        s = []
        if vm: s.append("vmcnt(0)"); self.vm_done = len(self.vm)
        if lds: s.append("lgkmcnt(0)"); self.lds_done = len(self.lds)
        self("s_waitcnt " + " ".join(s))
    def text(self):
        return "\n".join(self.lines) + "\n"
```

```python
import math, struct
from emit import Emit

def f32bits(x): return struct.unpack("<I", struct.pack("<f", x))[0]

O_GB = 128 * 10240
O_OFF = 0x100000
WT_OFF = O_OFF + 32 * O_GB
WT_BLK = 128 * 28 * 1024

NPOS = 8
XBASE = NPOS * 16384
LDS1 = XBASE + 32768
NFB = 8
TTHR = 10.0
NS = 46
NT = 53

sX, sW, sK, sV, sO = 8, 12, 16, 20, 24
sWave, sW4096, sRd, sWr, sWoff, sKVoff, sT0, sT1, sC, sFlag, sIter = 28, 29, 30, 31, 32, 33, 34, 35, 36, 37, 38
sXE, sT2, sObo, sObx, s2W, sW128, sW2048, sW4, sRet, sSh = 39, 40, 41, 42, 43, 44, 45, 46, 48, 50
sWs = 52
sStamp = 60
vDKV, vDW, vDX, vDE = 0, 2, 4, 6
vKP, vTP, vKPX = 7, 16, 17
vA = 8
vOo, vL16 = 18, 19
vMCo, vLo, vMCx, vLx, vDo, vDx = 20, 21, 22, 23, 24, 25
vT0, vT1 = 26, 27
vT4 = 28
X, Y, P0, P1, SXA, SXB = 32, 96, 160, 192, 224, 240
aXO, aXE = 192, 208
aDK, aDV, aTW, aTV, aSave = 224, 226, 228, 229, 232

def rr(base, n=4):
    k, i = base[0], int(base[1:])
    return "%s[%d:%d]" % (k, i, i + n - 1)
def srd(s): return "s[%d:%d]" % (s, s + 3)

class Item:
    def __init__(self, f, cost): self.f = f; self.cost = cost
    def __call__(self, e): self.f(e)

def cost_of(text):
    c = 0
    for l in text.split("\n"):
        l = l.strip()
        if not l or l.endswith(":"): continue
        c += 8 if l.startswith(("v_exp", "v_rcp")) else 4
    return c

class K1:
    def __init__(self, stamps=False, kvpol=" nt", wpol="", xpol="", opol="", prefetch_code=True, mode="", LA=6, WSTEP=2, dmacost=16):
        self.mode = mode
        self.clk = 's_memtime' if 'cyc' in mode else 's_memrealtime'
        self.stamps = stamps; self.kvpol = kvpol; self.wpol = wpol; self.xpol = xpol; self.opol = opol
        self.prefetch_code = prefetch_code
        self.nstamp = 0
        self.LA = LA; self.WSTEP = WSTEP; self.dmacost = dmacost
        self.tiles = []
        for i in range(7): self.tiles += [("X", i), ("W", 2*i), ("W", 2*i+1)]
        self.tiles += [("K", j) for j in range(16)] + [("V", j) for j in range(16)]
        def cons(t):
            k, j = t
            return {"X": 2*j, "W": j, "K": 14 + j, "V": 30 + j}[k]
        self.cons = [cons(t) for t in self.tiles]
        rel = [self.cons[i] + (1 if self.tiles[i][0] == "X" else 2) for i in range(NT)]
        iss = {}
        for tau in range(NPOS, 3*NT):
            p = tau - NPOS
            r = rel[p % NT] + NS * (p // NT)
            iss[tau] = max(r, iss.get(tau - 1, 0))
        self.issue = [iss[NT + t] - NS for t in range(NT)]
        assert self.issue == [iss[2*NT + t] - 2*NS for t in range(NT)]

    @staticmethod
    def slot_kind(n):
        n %= NS
        if n < 14: return "W", n
        if n < 30: return "K", n - 14
        return "V", n - 30

    def I(self, text): return Item(lambda e: e(text), cost_of(text))
    def L(self, text, tag): return Item(lambda e: e.lds_op(text, tag), 4)

    def dma_items(self, tau):
        kind, j = self.tiles[tau]
        tag = ("tile", kind, j)
        if kind == "W": base, o, d2, vb, s, pol = sWoff, j * 262144, 30720, vDW, sW, self.wpol
        elif kind == "K": base, o, d2, vb, s, pol = sKVoff, (j // 4) * 65536 + (j % 4) * 128, 6144, vDKV, sK, self.kvpol
        elif kind == "V": base, o, d2, vb, s, pol = sKVoff, j * 16384, 0, vDKV, sV, self.kvpol
        else: base, o, d2, vb, s, pol = None, j * 128, 12288, vDX, sX, self.xpol
        def mk(q):
            def f(e):
                if q == 0:
                    if (kind, j) == ("K", 0): e(f"v_accvgpr_read_b32 v{vDKV}, a{aDK}\nv_accvgpr_read_b32 v{vDKV+1}, a{aDK+1}")
                    if (kind, j) == ("V", 0): e(f"v_accvgpr_read_b32 v{vDKV}, a{aDV}\nv_accvgpr_read_b32 v{vDKV+1}, a{aDV+1}")
                    e(f"s_add_u32 m0, s{sWr}, s{sW4096}")
                    if base is None: e(f"s_movk_i32 s{sT0}, {o}")
                    else: e(f"s_add_u32 s{sT0}, s{base}, {o}")
                if q == 2 and d2:
                    e(f"s_add_u32 s{sT0}, s{sT0}, {d2}")
                if q == 4:
                    e(f"s_add_u32 m0, s{sXE}, {4096*j}")
                    e(f"s_movk_i32 s{sT0}, {o}")
                    e.vm_op(f"buffer_load_dwordx4 v{vDE}, {srd(s)}, s{sT0} offen{pol} lds", tag)
                    return
                e.vm_op(f"buffer_load_dwordx4 v{vb + (q & 1)}, {srd(s)}, s{sT0} offen offset:{1024*q}{pol} lds", tag)
                if q == 3:
                    e(f"s_add_u32 s{sWr}, s{sWr}, 16384")
                    e(f"s_and_b32 s{sWr}, s{sWr}, {NPOS*16384-1}")
                    if (kind, j) == ("V", 15): e(f"s_add_u32 s{sKVoff}, s{sKVoff}, {8*262144}")
            return Item(f, self.dmacost + (8 if q in (0, 3, 4) else 0))
        return [mk(q) for q in range(5 if kind == "X" else 4)]

    def adv_rd(self): return f"s_add_u32 s{sRd}, s{sRd}, 16384\ns_and_b32 s{sRd}, s{sRd}, {NPOS*16384-1}"

    def addr_updates(self, n):
        kind, j = self.slot_kind(n)
        U = []
        if kind == "K":
            U.append((0, f"v_add_u32 v{vA}, s{sRd}, v{vKP}\n" + self.adv_rd(), None))
            for s in range(1, 4): U.append((s, f"v_xor_b32 v{vA+s}, {32*s}, v{vA}", 0))
            for s in range(4): U.append((4+s, f"v_add_u32 v{vA+4+s}, s{sW4096}, v{vA+s}", s))
        elif kind == "V":
            pre = f"v_accvgpr_read_b32 v{vTP}, a{aTV}\n" if j == 0 else ""
            U.append((0, pre + f"v_add_u32 v{vA}, s{sRd}, v{vTP}\n" + self.adv_rd(), None))
            for t in range(1, 8): U.append((t, f"v_xor_b32 v{vA+t}, {64*t}, v{vA}", 0))
        else:
            pre = f"v_accvgpr_read_b32 v{vTP}, a{aTW}\n" if j == 0 else ""
            if j % 2 == 0:
                pre += f"s_add_u32 s{sT2}, s{sRd}, s{sW4096}\n" + self.adv_rd() + "\n"
            U.append((0, pre + f"v_add_u32 v{vA}, s{sRd}, v{vTP}\n" + self.adv_rd(), None))
            for t in range(1, 4): U.append((t, f"v_xor_b32 v{vA+t}, {64*t}, v{vA}", 0))
            U.append((4, f"v_xor_b32 v{vA+4}, s{sW128}, v{vA}", 0))
            U.append((5, f"v_xor_b32 v{vA+5}, 64, v{vA+4}", 4))
            if j % 2 == 0:
                U.append((6, f"v_add_u32 v{vA+6}, s{sT2}, v{vKP}", 0))
        return U

    def slot_mfmas(self, n):
        kind, j = self.slot_kind(n)
        L = []
        if kind == "W":
            s0 = 2 * (j & 1); i = j // 2
            own = lambda t, s: dict(acc=f"v{Y+16*t}", frag=("tr", (t & 3), (t >> 2) * 256 + s * 8192, 2048), B=rr(f"a{aXO+4*(s0+s)}"), first=(j == 0 and s == 0), lds=("xo", i, s0+s))
            ext = lambda t, s: dict(acc=f"v{SXA+16*t}", frag=("tr", 4 + t, s * 8192, 2048), B=rr(f"a{aXE+4*(s0+s)}"), first=(j == 0 and s == 0), lds=("xe", i, s0+s))
            if j < 13:
                L = [own(t, s) for s in range(2) for t in range(8)] + [ext(t, s) for s in range(2) for t in range(2)]
            else:
                L = [ext(t, s) for t in range(2) for s in range(2)] + [own(t, s) for t in range(8) for s in range(2)]
        elif kind == "K":
            g, c = j // 4, j % 4
            SB = X if g % 2 == 0 else Y
            SX = SXA if g % 2 == 0 else SXB
            L = [dict(acc=f"v{SB+16*T}", frag=("b128", s, T * 4096), B=rr(f"a{4*(4*c+s)}"), first=(c == 0 and s == 0)) for T in range(4) for s in range(4)]
            L += [dict(acc=f"v{SX}", frag=("b128", 4 + s, 0), B=rr(f"a{64+4*(4*c+s)}"), first=(c == 0 and s == 0), lds=(("qx", 4*c+s) if g == 0 else None)) for s in range(4)]
        else:
            g, T = j // 4, j % 4
            PB = [P0, P1, X, Y][g]
            for s in range(2):
                for t in range(8):
                    L.append(dict(acc=f"a{16*t}", frag=("tr", t, s * 8192, 4096), B=rr(f"v{PB+8*T+4*s}"), first=(j == 0 and s == 0)))
                    if t < 2:
                        L.append(dict(acc=f"a{128+16*t}", frag=None, B=rr(f"v{SXA + 8*(j&1) + 4*s}"), first=(j == 0 and s == 0), lds=("px", j, s)))
        return L

    def softmax_own(self, g):
        SB = X if g % 2 == 0 else Y
        PD = [P0, P1, X, Y][g]
        I = self.I; F = []
        F.append(I(f"v_max3_f32 v{vT0}, v{SB}, v{SB+1}, v{SB+2}"))
        F.append(I(f"v_max3_f32 v{vT1}, v{SB+3}, v{SB+4}, v{SB+5}"))
        i = 6; k = 0
        while i < 64:
            t = vT0 if k % 2 == 0 else vT1
            F.append(I(f"v_max3_f32 v{t}, v{t}, v{SB+i}, v{SB+i+1}")); i += 2; k += 1
        F.append(I(f"v_max_f32 v{vT0}, v{vT0}, v{vT1}"))
        F.append(I(f"v_mov_b32 v{vT1}, v{vT0}"))
        F.append(I(f"v_permlane32_swap_b32 v{vT0}, v{vT1}\nv_max_f32 v{vT0}, v{vT0}, v{vT1}"))
        F += self.max_update(g, vMCo, vLo, vDo, "o")
        return F, self.exp_block(SB, 64, PD, vMCo, vLo, g == 0)

    def max_update(self, g, vMC, vL, vD, nm):
        I = self.I
        if g == 0:
            return [I(f"v_mul_f32 v{vMC}, s{sC}, v{vT0}\nv_ceil_f32 v{vMC}, v{vMC}"), I(f"v_mov_b32 v{vD}, 0")]
        lab = f"L_rare_{nm}{g}"
        return [I(f"v_fma_f32 v{vT1}, v{vT0}, s{sC}, -v{vMC}\nv_cmp_lt_f32 vcc, 0x{f32bits(TTHR):08x}, v{vT1}\ns_cbranch_vccnz {lab}\n{lab}_back:")]

    def rare_block(self, e, g, vMC, vL, vD, nm):
        lab = f"L_rare_{nm}{g}"
        e(f"""{lab}:
        v_mul_f32 v{vT1}, s{sC}, v{vT0}
        v_ceil_f32 v{vT1}, v{vT1}
        v_max_f32 v{vT1}, v{vT1}, v{vMC}
        v_sub_f32 v{vT0}, v{vT1}, v{vMC}
        v_mov_b32 v{vMC}, v{vT1}
        v_min_f32 v{vT0}, 0x437f0000, v{vT0}
        v_cvt_u32_f32 v{vT0}, v{vT0}
        v_sub_u32 v{vT1}, 0, v{vT0}
        v_ldexp_f32 v{vL}, v{vL}, v{vT1}
        v_lshlrev_b32 v{vT0}, {8*(g-1)}, v{vT0}
        v_or_b32 v{vD}, v{vD}, v{vT0}
        s_bitset1_b32 s{sFlag}, {g}
        s_nop 1
        s_branch {lab}_back""")

    def exp_block(self, SB, n, PD, vMC, vL, first):
        I = self.I; F = []
        npair = n // 2
        def tail(p):
            a, b = SB + 2*p, SB + 2*p + 1
            if first and p == 0:
                r = [I(f"v_add_f32 v{vL}, v{a}, v{b}")]
            else:
                r = [I(f"v_add_f32 v{vL}, v{vL}, v{a}"), I(f"v_add_f32 v{vL}, v{vL}, v{b}")]
            return r + [I(f"v_cvt_pk_bf16_f32 v{PD+p}, v{a}, v{b}")]
        for p in range(npair):
            a, b = SB + 2*p, SB + 2*p + 1
            F.append(I(f"v_fma_f32 v{a}, v{a}, s{sC}, -v{vMC}"))
            F.append(I(f"v_fma_f32 v{b}, v{b}, s{sC}, -v{vMC}"))
            F.append(I(f"v_exp_f32 v{a}, v{a}"))
            if p > 0: F += tail(p - 1)[:1]
            F.append(I(f"v_exp_f32 v{b}, v{b}"))
            if p > 0: F += tail(p - 1)[1:]
        F += tail(npair - 1)
        return F

    def softmax_x1(self, g):
        SX = SXA if g % 2 == 0 else SXB
        I = self.I; F = []
        a, b = vT4, vT4 + 1
        F.append(I(f"v_max3_f32 v{a}, v{SX}, v{SX+1}, v{SX+2}"))
        F.append(I(f"v_max3_f32 v{b}, v{SX+3}, v{SX+4}, v{SX+5}"))
        for k, i in enumerate(range(6, 16, 2)):
            t = a if k % 2 == 0 else b
            F.append(I(f"v_max3_f32 v{t}, v{t}, v{SX+i}, v{SX+i+1}"))
        F.append(I(f"v_max_f32 v{a}, v{a}, v{b}"))
        F.append(I(f"v_mov_b32 v{b}, v{a}"))
        F.append(I(f"v_add_u32 v{vT4+2}, s{sW4}, v{vL16}"))
        F.append(I(f"v_permlane32_swap_b32 v{a}, v{b}\nv_max_f32 v{a}, v{a}, v{b}"))
        for r in range(4):
            F.append(self.L(f"ds_write_b32 v{vT4+2}, v{a} offset:{(4*g+r)*2048}", ("pub",)))
        return F

    def softmax_x2(self, g):
        SX = SXA if g % 2 == 0 else SXB
        I = self.I
        F = [I(f"v_add_u32 v{vT0}, s{sW2048}, v{vL16}"),
             self.L(f"ds_read_b128 v[{vT4}:{vT4+3}], v{vT0} offset:{4*g*2048}", ("st", g))]
        def comb(e):
            e.wait(lds=("st", g))
            e(f"v_max3_f32 v{vT0}, v{vT4}, v{vT4+1}, v{vT4+2}")
            e(f"v_max_f32 v{vT0}, v{vT0}, v{vT4+3}")
        G = [Item(comb, 8)]
        G += self.max_update(g, vMCx, vLx, vDx, "x")
        G += self.exp_block(SX, 16, SX, vMCx, vLx, g == 0)
        G.append(I(f"v_add_u32 v{vT4}, s{sW2048}, v{vL16}"))
        for s in range(2):
            G.append(self.L(f"ds_write_b128 v{vT4}, v[{SX+4*s}:{SX+4*s+3}] offset:{4*g*2048+s*1024}", ("pub",)))
        return F, G

    def q_convert(self, t):
        I = self.I; b = Y + 16*t; F = []
        for i in range(8):
            F.append(I(f"v_cvt_pk_bf16_f32 v{b+i}, v{b+2*i}, v{b+2*i+1}"))
            if i > 0: F.append(I(f"v_accvgpr_write_b32 a{8*t+i-1}, v{b+i-1}"))
        F.append(I(f"v_accvgpr_write_b32 a{8*t+7}, v{b+7}"))
        return F

    def qx_publish(self):
        I = self.I; F = []
        F.append(I(f"v_add_u32 v{vT0}, s{sW4096}, v{vL16}"))
        for t in range(2):
            b = SXA + 16*t
            for i in range(8): F.append(I(f"v_cvt_pk_bf16_f32 v{b+i}, v{b+2*i}, v{b+2*i+1}"))
            for s in range(2):
                F.append(self.L(f"ds_write_b128 v{vT0}, v[{b+4*s}:{b+4*s+3}] offset:{(2*t+s)*1024}", ("pub",)))
        return F

    def epi_tile(self, k):
        I = self.I; F = []
        ab = 16 * k
        vl = vLo if k < 8 else vLx
        tmp = X + 32 * (k & 1); dst = tmp + 16
        tp = k if k < 8 else k - 8
        F.append(I(f"s_xor_b32 s{sT1}, s{s2W}, {tp}\ns_mul_i32 s{sT1}, s{sT1}, 10240\ns_add_u32 s{sT1}, s{sT1}, s{sObo if k < 8 else sObx}"))
        for i in range(16): F.append(I(f"v_accvgpr_read_b32 v{tmp+i}, a{ab+i}"))
        for i in range(16): F.append(I(f"v_mul_f32 v{tmp+i}, v{tmp+i}, v{vl}"))
        for s in range(2):
            for i in range(4*s, 4*s+4): F.append(I(f"v_cvt_pk_bf16_f32 v{dst+i}, v{tmp+2*i}, v{tmp+2*i+1}"))
            F.append(Item(lambda e, s=s: e.vm_op(f"buffer_store_dwordx4 v[{dst+4*s}:{dst+4*s+3}], v{vOo}, {srd(sO)}, s{sT1} offen offset:{512*s}{self.opol}", ("ost",)), self.dmacost))
        return F

    def x_reads(self, i):
        R = {}
        for s in range(4):
            if s == 0: R[("o", 0)] = [self.L(f"ds_read_b128 a[{aXO}:{aXO+3}], v{vA+6}", ("xo", i, 0))]
            else: R[("o", s)] = [self.I(f"v_xor_b32 v{vA+7}, {32*s}, v{vA+6}"), self.L(f"ds_read_b128 a[{aXO+4*s}:{aXO+4*s+3}], v{vA+7}", ("xo", i, s))]
            if s == 0: R[("e", 0)] = [self.L(f"ds_read_b128 a[{aXE}:{aXE+3}], v{vKPX} offset:{4096*i}", ("xe", i, 0))]
            else: R[("e", s)] = [self.I(f"v_xor_b32 v{vA+7}, {32*s}, v{vKPX}"), self.L(f"ds_read_b128 a[{aXE+4*s}:{aXE+4*s+3}], v{vA+7} offset:{4096*i}", ("xe", i, s))]
        return R

    def stamp(self, e):
        if self.stamps:
            e(f"{self.clk} s[{sStamp+2*self.nstamp}:{sStamp+2*self.nstamp+1}]")
            self.nstamp += 1

    def build_body(self):
        LA = self.LA
        M = []; start = []
        for n in range(NS):
            start.append(len(M))
            for m in self.slot_mfmas(n):
                m["slot"] = n; M.append(m)
        NM = len(M)
        assert NM == 920
        fid = 0
        for m in M:
            if m["frag"] is not None:
                m["fid"] = fid; fid += 1
            else:
                m["fid"] = fid - 1
        self.nfrag = fid
        fill = [[] for _ in range(NM)]
        pre = [[] for _ in range(NM)]
        upd = [[] for _ in range(NM)]
        postbar = [[] for _ in range(NS)]
        S = lambda n: start[n % NS] + NM * (n // NS)
        cost = [8 + 4.0 / self.WSTEP] * NM
        for i, m in enumerate(M):
            g = (i - LA) % NM
            if m["frag"] is not None: cost[g] += 4 if m["frag"][0] == "b128" else 8
            if i in start: cost[g] += 24
        for n in range(NS):
            lo, hi = S(n), S(n) + 20
            last = {}
            for i in range(lo, hi):
                if M[i]["frag"] is not None: last[M[i]["frag"][1]] = i
            kind, j = self.slot_kind(n)
            if kind == "W" and j % 2 == 0:
                last[6] = lo + 12 + LA; last[7] = lo + 12 + LA
            first = {}
            for i in range(hi + 19, hi - 1, -1):
                m = M[i % NM]
                if m["frag"] is not None: first[m["frag"][1]] = i
            first[6] = min(first.get(6, 1 << 30), hi) if self.slot_kind(n + 1)[0] == "W" else first.get(6, 1 << 30)
            pos = {}
            used = {}
            for r, text, dep in self.addr_updates(n + 1):
                p = max(last.get(r, lo), pos[dep] if dep is not None else lo)
                while used.get(p, 0) >= 2 and p + 1 < first.get(r, hi + 19): p += 1
                assert p < first.get(r, 1 << 30), (n, r, p, first)
                used[p] = used.get(p, 0) + 1
                pos[r] = p
                upd[p % NM].append(((n + 1) % NS, text))
                cost[(p - LA) % NM] += cost_of(text)
        def put(i, it):
            fill[i % NM].append(it); cost[i % NM] += it.cost
        def spread(items, lo, hi):
            if "nofill" in self.mode: return
            tot = sum(it.cost for it in items)
            base = [cost[g % NM] for g in range(lo, hi)]
            a, b = min(base), max(base) + tot
            for _ in range(40):
                mid = (a + b) / 2
                if sum(max(0, mid - x) for x in base) >= tot: b = mid
                else: a = mid
            room = [max(0, b - x) for x in base]
            cum = 0; k = 0; acc = 0
            for gi in range(hi - lo):
                cum += room[gi]
                while k < len(items) and (acc + items[k].cost / 2 <= cum or gi == hi - lo - 1):
                    acc += items[k].cost; put(lo + gi, items[k]); k += 1
        by_slot = {}
        for tau in range(NT): by_slot.setdefault(self.issue[tau] % NS, []).append(tau)
        for n, taus in by_slot.items():
            d = [it for tau in taus for it in self.dma_items(tau)]
            lo = S(n) - LA + 2
            span = 18
            for k, it in enumerate(d):
                if lo + (k * span) // len(d) < 0: it.dma0 = True
                if "nodma" not in self.mode: put(lo + (k * span) // len(d), it)
        for i in range(7):
            R = self.x_reads(i); n = 2 * i
            postbar[n] += R[("o", 0)]
            cost[(S(n) - LA) % NM] += 4
            for k, key in enumerate([("o", 1), ("e", 0), ("e", 1), ("o", 2), ("o", 3), ("e", 2), ("e", 3)]):
                for it in R[key]: put(S(n) + [0, 2, 4, 6, 8, 10, 12][k], it)
        for c in range(4):
            for s in range(4):
                ks = 4*c + s
                put(S(14 + c) + 2 + 2*s, self.L(f"ds_read_b128 a[{64+4*ks}:{64+4*ks+3}], v{vL16} offset:{ks*1024}", ("qx", ks)))
        for j in range(16):
            for s in range(2):
                put(S(30 + j) - 8 + 5*s, self.L(f"ds_read_b128 v[{SXA+8*(j&1)+4*s}:{SXA+8*(j&1)+4*s+3}], v{vL16} offset:{(2*j+s)*1024}", ("px", j, s)))
        spread([it for k in range(10) for it in self.epi_tile(k)], S(0), S(12) + 10)
        put(S(13), self.I(f"s_mov_b32 s{sO+2}, {0 if 'nost' in self.mode else O_GB}\ns_add_u32 s{sObo}, s{sObo}, {8*8*10240}\ns_add_u32 s{sObx}, s{sObx}, {8*8*10240}"))
        spread(self.qx_publish(), S(13) + 5, S(13) + 20 - LA - 2)
        spread(self.q_convert(0), S(13) + 8, S(13) + 15)
        spread(self.q_convert(1), S(13) + 15, S(13) + 20)
        spread(self.q_convert(2) + self.q_convert(3), S(14), S(14) + 19)
        spread(self.q_convert(4) + self.q_convert(5), S(15), S(15) + 19)
        spread(self.q_convert(6) + self.q_convert(7), S(16), S(16) + 19)
        put(S(14), self.I(f"""s_add_u32 s{sWoff}, s{sWoff}, 4096
            s_cmp_eq_u32 s{sIter}, 0
            s_cselect_b32 s{sW+2}, s{sW+2}, 0
            s_cselect_b32 s{sX+2}, s{sX+2}, 0
            s_mov_b32 s{sFlag}, 0"""))
        win = {0: (S(18), S(22)), 1: (S(22), S(26)), 2: (S(26), S(34)), 3: (S(34), S(42) - 2)}
        for g in range(4):
            x1 = self.softmax_x1(g)
            f2, g2 = self.softmax_x2(g)
            xq0 = S(14 + 4*g + 4)
            spread(x1, xq0 + 4, xq0 + 20 - LA - 2)
            spread(f2, xq0 + 22, xq0 + 24)
            spread(g2, xq0 + 28, xq0 + 66)
        for g in range(4):
            q0, q1 = win[g]
            omax, oexp = self.softmax_own(g)
            nm = 9 if g < 2 else 14
            spread(omax, q0, q0 + nm)
            spread(oexp, q0 + nm, q1 - 1)
        for g in range(1, 4):
            def chk(e, g=g):
                lab = e.label("L_nores")
                e(f"s_bitcmp1_b32 s{sFlag}, {g}")
                e(f"s_cbranch_scc0 {lab}")
                e(f"s_mov_b32 s{sSh}, {8*(g-1)}")
                e(f"s_call_b64 s[{sRet}:{sRet+1}], L_rescale")
                e(f"{lab}:")
            pre[S(30 + 4*g)].append(chk)
        I = self.I
        lf = [I(f"v_mov_b32 v{vT0}, v{vLo}"), I(f"v_mov_b32 v{vT1}, v{vLx}"), I(f"v_add_u32 v{vT4}, s{sW4}, v{vL16}"),
              I(f"v_permlane32_swap_b32 v{vLx}, v{vT1}\nv_add_f32 v{vLx}, v{vLx}, v{vT1}"),
              I(f"v_permlane32_swap_b32 v{vLo}, v{vT0}\nv_add_f32 v{vLo}, v{vLo}, v{vT0}"),
              self.L(f"ds_write_b32 v{vT4}, v{vLx} offset:16384", ("pub",)),
              I(f"v_rcp_f32 v{vLo}, v{vLo}")]
        spread(lf, S(42), S(42) + 10)
        def lx2(e):
            e.wait(lds=("lx",))
            e(f"v_add_f32 v{vT4}, v{vT4}, v{vT4+1}\nv_add_f32 v{vT4+2}, v{vT4+2}, v{vT4+3}\nv_add_f32 v{vLx}, v{vT4}, v{vT4+2}\nv_rcp_f32 v{vLx}, v{vLx}")
        put(S(44) + 2, self.L(f"ds_read_b128 v[{vT4}:{vT4+3}], v{vL16} offset:16384", ("lx",)))
        put(S(44) + 10, Item(lx2, 20))
        self.M, self.start, self.fill, self.pre, self.upd, self.postbar, self.cost = M, start, fill, pre, upd, postbar, cost

    def frag_read(self, e, m):
        fr = m["frag"]; b = 160 + 4 * (m["fid"] % NFB)
        tag = ("f", m["fid"])
        if fr[0] == "b128":
            e.lds_op(f"ds_read_b128 a[{b}:{b+3}], v{vA+fr[1]} offset:{fr[2]}", tag)
        else:
            e.lds_op(f"ds_read_b64_tr_b16 a[{b}:{b+1}], v{vA+fr[1]} offset:{fr[2]}", tag)
            e.lds_op(f"ds_read_b64_tr_b16 a[{b+2}:{b+3}], v{vA+fr[1]} offset:{fr[2]+fr[3]}", tag)

    def lookahead(self, e, i):
        NM = len(self.M); m = self.M[i % NM]
        if (i % NM) in self.start:
            n = m["slot"]
            pubs = [t for t in e.lds[e.lds_done:] if t == ("pub",)]
            if "nodma" not in self.mode: e.wait(vm=("tile",) + self.slot_kind(n), lds=(("pub",) if pubs else None))
            if "nobar" not in self.mode: e("s_barrier")
            for it in self.postbar[n]: it(e)
        if m["frag"] is not None:
            self.frag_read(e, m)
        for _, t in self.upd[i % NM]: e(t)

    def emit_body(self, e):
        NM = len(self.M)
        assert self.nfrag % NFB == 0, self.nfrag
        for i, m in enumerate(self.M):
            if i in self.start and m["slot"] in (14, 30):
                self.stamp_inloop(e, m["slot"])
            for it in self.pre[i]: it(e)
            l = [("f", m["fid"])]
            if m.get("lds"): l.append(m["lds"])
            if i % self.WSTEP == 0:
                for d in range(1, self.WSTEP):
                    m2 = self.M[(i + d) % NM]
                    l.append(("f", m2["fid"]))
            e.wait(lds=l)
            b = 160 + 4 * (m["fid"] % NFB)
            acc = rr(m["acc"], 16)
            e(f"v_mfma_f32_32x32x16_bf16 {acc}, a[{b}:{b+3}], {m['B']}, {'0' if m['first'] else acc}")
            self.lookahead(e, i + self.LA)
            for it in self.fill[i]: it(e)

    def stamp_inloop(self, e, slot):
        if not self.stamps: return
        k = {14: 0, 30: 1, 46: 2}[slot]
        e(f"{self.clk} s[{sStamp+20+2*k}:{sStamp+21+2*k}]")

    def gen(self, code_bytes=45056, tail=None):
        self.build_body()
        def run(override):
            e = Emit(); e.wait_override = override
            self.nstamp = 0
            self.prologue(e, code_bytes)
            e("L_loop:")
            w0 = len(e.waits)
            self.emit_body(e)
            w1 = len(e.waits)
            return e, w0, w1
        e, w0, w1 = run(None)
        wa = list(e.waits)
        self.emit_body(e)
        wb = e.waits[w1:]
        self.pass1_nops = list(e.noplog)
        def mn(a, b):
            if a is None: return b
            if b is None: return a
            return min(a, b)
        ov = wa[:w0] + [(mn(a[0], b[0]), mn(a[1], b[1])) for a, b in zip(wa[w0:w1], wb)]
        e, w0, w1 = run(ov)
        e.wait_override = None
        self.stamp_inloop(e, 46)
        if self.stamps:
            e("s_waitcnt lgkmcnt(0)")
            e(f"s_cmp_eq_u32 s{sIter}, 0")
            for k in range(6):
                e(f"s_cselect_b32 s{sStamp+4+k}, s{sStamp+20+k}, s{sStamp+4+k}")
                e(f"s_mov_b32 s{sStamp+10+k}, s{sStamp+20+k}")
        e(f"s_add_u32 s{sIter}, s{sIter}, 1")
        e(f"s_cmp_lt_u32 s{sIter}, 2")
        e("s_cbranch_scc1 L_loop")
        e("s_nop 15")
        for k in range(10):
            for it in self.epi_tile(k): it(e)
        if self.stamps:
            e("s_waitcnt vmcnt(0)")
            e(f"{self.clk} s[{sStamp+16}:{sStamp+17}]")
            e("s_waitcnt lgkmcnt(0)")
            e(f"s_mov_b32 s{sWs+2}, 0x100000\ns_mov_b32 s{sWs+3}, 0x20000")
            e(f"s_mul_i32 s{sT0}, s2, 72")
            e(f"s_cmp_lg_u32 s{sWave}, 0\ns_cbranch_scc1 L_end")
            e(f"v_mov_b32 v40, s{sT0}")
            e("s_mov_b64 exec, 1")
            for k in range(9):
                e(f"v_mov_b32 v42, s{sStamp+2*k}\nv_mov_b32 v43, s{sStamp+2*k+1}")
                e(f"buffer_store_dwordx2 v[42:43], v40, {srd(sWs)}, 0 offen offset:{8*k}")
                e("s_nop 1")
        e("L_end:\ns_endpgm")
        for g in range(1, 4):
            if "nofill" in self.mode: break
            self.rare_block(e, g, vMCo, vLo, vDo, "o")
            self.rare_block(e, g, vMCx, vLx, vDx, "x")
        e("L_rescale:")
        e("s_waitcnt lgkmcnt(0)")
        e("s_nop 15")
        for i in range(6): e(f"v_accvgpr_write_b32 a{aSave+i}, v{vT0+i}")
        e(f"v_lshrrev_b32 v{vT0}, s{sSh}, v{vDo}\nv_and_b32 v{vT0}, 255, v{vT0}\nv_sub_u32 v{vT0}, 0, v{vT0}")
        e(f"v_lshrrev_b32 v{vT1}, s{sSh}, v{vDx}\nv_and_b32 v{vT1}, 255, v{vT1}\nv_sub_u32 v{vT1}, 0, v{vT1}")
        for i in range(0, 160, 4):
            for q in range(4): e(f"v_accvgpr_read_b32 v{vT4+q}, a{i+q}")
            for q in range(4): e(f"v_ldexp_f32 v{vT4+q}, v{vT4+q}, v{vT0 if i < 128 else vT1}")
            for q in range(4): e(f"v_accvgpr_write_b32 a{i+q}, v{vT4+q}")
        for i in range(6): e(f"v_accvgpr_read_b32 v{vT0+i}, a{aSave+i}")
        e("s_nop 3")
        e(f"s_setpc_b64 s[{sRet}:{sRet+1}]")
        return e

    def prologue(self, e, code_bytes):
        e(f"""
        s_cmp_ge_u32 s2, 256
        s_cbranch_scc1 L_end
        """)
        self.stamp(e)
        e(f"""
        s_and_b32 s3, s2, 7
        s_lshr_b32 s4, s2, 3
        s_lshr_b32 s5, s3, 2
        s_mul_i32 s6, s5, 40
        s_add_u32 s56, s0, s6
        s_addc_u32 s57, s1, 0
        s_load_dwordx2 s[{sX}:{sX+1}], s[56:57], 0
        s_load_dwordx2 s[{sK}:{sK+1}], s[56:57], 8
        s_load_dwordx2 s[{sV}:{sV+1}], s[56:57], 16
        s_load_dwordx2 s[{sW}:{sW+1}], s[56:57], 24
        s_load_dwordx2 s[{sO}:{sO+1}], s[56:57], 32
        s_load_dwordx2 s[{sWs}:{sWs+1}], s[0:1], 96
        v_lshrrev_b32 v32, 6, v0
        v_and_b32 v33, 63, v0
        v_lshlrev_b32 v40, 4, v0
        v_readfirstlane_b32 s{sWave}, v32
        """)
        if self.prefetch_code:
            e(f"""
            s_getpc_b64 s[92:93]
            s_mov_b32 s94, {code_bytes}
            s_mov_b32 s95, 0x20000
            s_and_b32 s7, s4, 15
            s_lshl_b32 s7, s7, 12
            """)
            e.vm_op(f"buffer_load_dwordx4 v[44:47], v40, s[92:95], s7 offen", ("code",))
        e(f"""
        s_and_b32 s6, s3, 3
        s_lshl_b32 s6, s6, 2
        s_lshr_b32 s7, s4, 3
        s_add_u32 s6, s6, s7              ; b
        s_and_b32 s7, s4, 7               ; h0
        s_lshl_b32 s{sW4096}, s{sWave}, 12
        s_lshl_b32 s{sXE}, s{sWave}, 10
        s_add_u32 s{sXE}, s{sXE}, {XBASE}
        s_lshl_b32 s{sWoff}, s7, 9
        {"s_mov_b32 s%d, 0" % sWoff if "samew" in self.mode else ""}
        s_mov_b32 s{sRd}, 0
        s_mov_b32 s{sWr}, 0
        v_lshrrev_b32 v34, 5, v33          ; hf
        v_and_b32 v35, 31, v33             ; l%32
        v_lshrrev_b32 v41, 3, v33          ; l/8
        v_and_b32 v39, 7, v33              ; l%8
        """)
        for q in range(2):
            e(f"""
            v_add_u32 v36, {8*q}, v41
            v_lshl_add_u32 v36, v32, 5, v36
            v_bfe_u32 v37, v36, 1, 3
            v_xor_b32 v37, v37, v39
            v_lshlrev_b32 v37, 4, v37
            v_subrev_u32 v37, {1024*q}, v37
            v_mul_u32_u24 v38, 896, v36
            v_add_u32 v{vDX+q}, v38, v37
            v_lshl_add_u32 v38, v36, 9, v37
            v_accvgpr_write_b32 a{aDK+q}, v38
            """)
        e(f"""
        v_lshl_add_u32 v36, v32, 3, v41
        v_bfe_u32 v37, v36, 1, 3
        v_xor_b32 v37, v37, v39
        v_lshlrev_b32 v37, 4, v37
        v_add_u32 v36, 128, v36
        v_mul_u32_u24 v38, 896, v36
        v_add_u32 v{vDE}, v38, v37
        """)
        for q in range(2):
            e(f"""
            v_add_u32 v36, {2*q}, v34
            v_lshlrev_b32 v37, 2, v36
            v_xor_b32 v37, v37, v35
            v_lshlrev_b32 v37, 4, v37
            v_subrev_u32 v37, {1024*q}, v37
            v_lshl_add_u32 v36, v32, 3, v36
            v_lshl_add_u32 v{vDW+q}, v36, 13, v37
            v_lshl_add_u32 v38, v36, 9, v37
            v_accvgpr_write_b32 a{aDV+q}, v38
            """)
        e(f"""
        v_lshlrev_b32 v48, 4, v33
        s_mul_i32 s{sT1}, s6, 143360
        s_mov_b32 s{sX+2}, 143360
        s_mov_b32 s{sX+3}, 0x20000
        s_mov_b32 s{sW+2}, 3670016
        s_mov_b32 s{sW+3}, 0x20000
        s_mov_b32 s{sO+2}, 3670016
        s_mov_b32 s{sO+3}, 0x20000
        s_waitcnt lgkmcnt(0)
        s_add_u32 s{sX}, s{sX}, s{sT1}
        s_addc_u32 s{sX+1}, s{sX+1}, 0
        """)
        pro = [tau for tau in range(NT) if self.issue[tau] < 0]
        assert pro == list(range(6)), pro
        for tau in pro[:2]:
            for it in self.dma_items(tau): it(e)
        WST = 6 * 16384
        e(f"""
        s_and_b32 s58, s3, 3
        s_lshl_b32 s58, s58, 5
        s_add_u32 s58, s58, s4                        ; u_t
        s_mul_i32 s{sT0}, s58, 28672
        s_mul_i32 s{sT1}, s{sWave}, 7168
        s_add_u32 s{sT0}, s{sT0}, s{sT1}
        s_add_u32 m0, s{sT1}, {WST}
        """)
        for q in range(7):
            if q == 4:
                e(f"s_add_u32 s{sT0}, s{sT0}, 4096\ns_add_u32 m0, m0, 4096")
            e.vm_op(f"buffer_load_dwordx4 v48, {srd(sO)}, s{sT0} offen offset:{1024*(q%4)} nt lds", ("wo",))
        for tau in pro[2:]:
            for it in self.dma_items(tau): it(e)
        e(f"""
        s_lshl_b32 s{s2W}, s{sWave}, 1
        s_lshl_b32 s{sW128}, s{sWave}, 7
        s_lshl_b32 s{sW2048}, s{sWave}, 11
        s_lshl_b32 s{sW4}, s{sWave}, 2
        s_lshl_b32 s{sKVoff}, s6, 4
        s_add_u32 s{sKVoff}, s{sKVoff}, s7
        s_lshl_b32 s{sKVoff}, s{sKVoff}, 18
        {"s_mov_b32 s%d, 0" % sKVoff if "samekv" in self.mode else ""}
        s_mov_b32 s{sC}, 0x{f32bits(math.log2(math.e)/16.0):08x}
        s_mov_b32 s{sIter}, 0
        s_mov_b32 s{sFlag}, 0
        s_mov_b32 s{sK+2}, 0x4000000
        s_mov_b32 s{sK+3}, 0x20000
        s_mov_b32 s{sV+2}, 0x4000000
        s_mov_b32 s{sV+3}, 0x20000
        s_mul_i32 s{sObo}, s7, {8*10240}
        s_sub_u32 s{sObo}, s{sObo}, {8*8*10240}
        s_add_u32 s{sObx}, s{sObo}, 8192
        s_add_u32 s{sObo}, s{sObo}, s{sW2048}
        v_bfe_u32 v36, v35, 1, 3
        v_xor_b32 v36, v36, v34
        v_lshlrev_b32 v36, 4, v36
        v_lshl_add_u32 v{vKP}, v35, 7, v36
        v_add_u32 v{vKPX}, {XBASE}, v{vKP}
        v_and_b32 v36, 15, v33                        ; i
        v_lshrrev_b32 v37, 2, v36                     ; rho = i/4
        v_and_b32 v38, 3, v36                         ; cc
        v_bfe_u32 v39, v33, 4, 1                      ; g%2
        v_lshlrev_b32 v42, 6, v37
        v_lshl_add_u32 v42, v39, 5, v42               ; rho*64 + (g%2)*32
        v_lshl_add_u32 v43, v34, 2, v37
        v_lshl_add_u32 v43, v43, 9, v42
        v_lshl_add_u32 v43, v38, 3, v43
        v_xor_b32 v43, s{sW128}, v43
        v_accvgpr_write_b32 a{aTV}, v43
        v_lshl_add_u32 v43, v34, 3, v37
        v_lshl_add_u32 v43, v43, 9, v42
        v_and_b32 v36, 1, v38
        v_lshrrev_b32 v38, 1, v38
        v_lshl_add_u32 v38, v36, 1, v38
        v_lshl_add_u32 v43, v38, 3, v43
        v_accvgpr_write_b32 a{aTW}, v43
        v_lshlrev_b32 v36, 10, v39                    ; (row/16)*1024
        v_lshl_add_u32 v36, v34, 8, v36
        v_and_b32 v37, 15, v33
        v_lshl_add_u32 v{vOo}, v37, 4, v36
        v_add_u32 v{vL16}, {XBASE}, v48
        """)
        e(f"""
        v_lshlrev_b32 v36, 4, v34
        v_lshl_add_u32 v36, v39, 2, v36
        v_bfe_u32 v37, v33, 2, 2
        v_add_u32 v36, v36, v37
        v_mul_u32_u24 v36, 896, v36
        v_and_b32 v37, 3, v33
        v_lshl_add_u32 v36, v37, 3, v36
        s_mul_i32 s{sT1}, s{sWave}, 224
        s_add_u32 s{sT1}, s{sT1}, {WST}
        v_add_u32 v36, s{sT1}, v36
        s_mul_i32 s{sT0}, s5, {WT_BLK}
        s_mul_i32 s{sT1}, s58, 28672
        s_add_u32 s{sT0}, s{sT0}, s{sT1}
        s_mul_i32 s{sT1}, s{sWave}, 7168
        s_add_u32 s{sT0}, s{sT0}, s{sT1}
        s_add_u32 s{sT0}, s{sT0}, {WT_OFF}
        s_mov_b32 s{sWs+2}, {WT_OFF + 2*WT_BLK}
        s_mov_b32 s{sWs+3}, 0x20000
        """)
        NM = len(self.M)
        done = set()
        for i in range(self.start[45], NM):
            for sl, t in self.upd[i]:
                if sl == 0: e(t)
        e.wait(vm=("wo",))
        e("s_barrier")
        for c in range(7):
            e.lds_op(f"ds_read_b64_tr_b16 v[{96+4*c}:{97+4*c}], v36 offset:{32*c}", ("wt", c))
            e.lds_op(f"ds_read_b64_tr_b16 v[{98+4*c}:{99+4*c}], v36 offset:{32*c+8*896}", ("wt", c))
        for c in range(7):
            e.wait(lds=("wt", c))
            if c == 4: e(f"s_add_u32 s{sT0}, s{sT0}, 4096")
            e.vm_op(f"buffer_store_dwordx4 v[{96+4*c}:{99+4*c}], v48, {srd(sWs)}, s{sT0} offen offset:{1024*(c%4)}{self.opol}", ("wst",))
        e(f"""
        s_lshl_b32 s{sT0}, s5, 4
        s_add_u32 s{sT0}, s{sT0}, s6
        s_mul_i32 s{sT0}, s{sT0}, {O_GB}
        s_add_u32 s{sT0}, s{sT0}, {O_OFF}
        s_add_u32 s{sO}, s{sWs}, s{sT0}
        s_addc_u32 s{sO+1}, s{sWs+1}, 0
        s_mov_b32 s{sO+2}, 0
        v_mov_b32 v{vLo}, 0
        v_mov_b32 v{vLx}, 0
        """)
        self.stamp(e)
        for i in range(self.LA):
            self.lookahead(e, i)
            for it in self.fill[NM - self.LA + i]:
                if getattr(it, "dma0", False): it(e)

if __name__ == "__main__":
    from asmlib import *
    import sys
    def out(name, **kw):
        k = K1(stamps=True, **kw)
        e = k.gen()
        print(name, "instructions", e.ninst, "auto nops", e.nops, len(k.pass1_nops))
        for x in k.pass1_nops[:12]: print("   ", x)
        write_file(f"work/{name}.s", [(NAME + "_kernel", 256, 256, LDS1)], [(NAME + "_kernel", e.text(), 512, 256, 102)])
        return k
    k = out("k1")
    print([round(sum(max(32, c) for c in k.cost[k.start[n]:k.start[n]+20])) for n in range(NS)])
    base = "samekv samew nost cyc "
    out("a0", mode=base, kvpol="")
    out("a1", mode=base, kvpol="", LA=5, WSTEP=1)
    out("a2", mode=base + "nodma", kvpol="")
    out("a3", mode=base + "nodma nobar", kvpol="")
    out("a5", mode=base + "nofill", kvpol="")
    out("k1c", mode="cyc")
```

```python
from emit import Emit
from gen1 import O_GB, O_OFF, WT_OFF, WT_BLK, srd

LDS2 = 4 * 35 * 1024
NB = 6
def buf(k, f):
    if k < 5: b = 16 + 48 * k + 4 * f; return f"v[{b}:{b+3}]"
    b = 144 + 4 * f; return f"a[{b}:{b+3}]"

class K2:
    def __init__(self, stamps=False, opol="", wpol="", mode="", interleave=False):
        self.stamps = stamps; self.opol = opol; self.wpol = wpol; self.mode = mode; self.interleave = interleave
        self.clk = 's_memtime' if 'cyc' in mode else 's_memrealtime'

    def gen(self, code_bytes=14336):
        e = Emit()
        sO, sWt, sOut, sWs = 8, 12, 16, 52
        so0, so1, sw0, sw1, sWave = 20, 21, 22, 23, 24
        ustep = 4 if self.interleave else 1
        e(f"""
        s_cmp_ge_u32 s2, 256
        s_cbranch_scc1 L2_end
        """)
        if self.stamps: e(f"{self.clk} s[60:61]")
        e(f"""
        s_load_dwordx2 s[{sWs}:{sWs+1}], s[0:1], 96
        s_load_dwordx2 s[{sOut}:{sOut+1}], s[0:1], 80
        {"s_lshr_b32 s3, s2, 5" if "badmap" in self.mode else "s_and_b32 s3, s2, 7"}
        {"s_and_b32 s4, s2, 31" if "badmap" in self.mode else "s_lshr_b32 s4, s2, 3"}
        v_lshrrev_b32 v1, 6, v0
        v_and_b32 v2, 63, v0
        v_lshlrev_b32 v4, 4, v0
        v_readfirstlane_b32 s{sWave}, v1
        s_getpc_b64 s[92:93]
        s_mov_b32 s94, {code_bytes}
        s_mov_b32 s95, 0x20000
        s_and_b32 s7, s4, 3
        s_lshl_b32 s7, s7, 12
        """)
        e.vm_op("buffer_load_dwordx4 v[8:11], v4, s[92:95], s7 offen", ("code",))
        e(f"""
        s_lshr_b32 s5, s3, 2               ; blk
        s_and_b32 s6, s3, 3
        s_lshl_b32 s6, s6, 2
        s_lshr_b32 s7, s4, 3
        s_add_u32 s6, s6, s7               ; b
        s_bfe_u32 s26, s4, 0x10002         ; rh
        s_and_b32 s27, s4, 3               ; ct
        v_lshlrev_b32 v3, 4, v2            ; lane*16
        s_lshl_b32 s28, s5, 4
        s_add_u32 s28, s28, s6             ; gb
        s_mul_i32 s28, s28, {O_GB}
        s_add_u32 s28, s28, {O_OFF}
        s_mul_i32 s29, s5, {WT_BLK}
        s_add_u32 s29, s29, {WT_OFF}
        s_mul_i32 s{so0}, s{sWave}, {10240 * (1 if self.interleave else 32)}
        s_mul_i32 s30, s26, 5120
        s_add_u32 s{so0}, s{so0}, s30
        s_mul_i32 s{sw0}, s{sWave}, {28672 * (1 if self.interleave else 32)}
        s_mul_i32 s30, s27, 7168
        s_add_u32 s{sw0}, s{sw0}, s30
        s_mov_b32 s{sO+2}, {O_GB}
        s_mov_b32 s{sO+3}, 0x20000
        s_mov_b32 s{sWt+2}, {WT_BLK}
        s_mov_b32 s{sWt+3}, 0x20000
        s_waitcnt lgkmcnt(0)
        s_add_u32 s{sO}, s{sWs}, s28
        s_addc_u32 s{sO+1}, s{sWs+1}, 0
        s_add_u32 s{sWt}, s{sWs}, s29
        s_addc_u32 s{sWt+1}, s{sWs+1}, 0
        """)
        def loads(u):
            k = u % NB; L = []
            def mk(f):
                def fn():
                    if f == 0: e(f"s_add_u32 s{so1}, s{so0}, 4096\ns_add_u32 s{sw1}, s{sw0}, 4096")
                    if f < 5:
                        e.vm_op(f"buffer_load_dwordx4 {buf(k, f)}, v3, {srd(sO)}, s{so0 if f < 4 else so1} offen offset:{1024*(f%4)}{self.opol}", ("u", u))
                    else:
                        c = f - 5
                        e.vm_op(f"buffer_load_dwordx4 {buf(k, f)}, v3, {srd(sWt)}, s{sw0 if c < 4 else sw1} offen offset:{1024*(c%4)}{self.wpol}", ("u", u))
                    if f == 11: e(f"s_add_u32 s{so0}, s{so0}, {10240*ustep}\ns_add_u32 s{sw0}, s{sw0}, {28672*ustep}")
                return fn
            return [mk(f) for f in range(12)]
        for u in range(NB - 1):
            for f in loads(u): f()
        if self.stamps: e(f"{self.clk} s[62:63]")
        for u in range(32):
            k = u % NB
            e.wait(vm=("u", u))
            if u == 0 and self.stamps: e(f"{self.clk} s[64:65]")
            nl = loads(u + NB - 1) if u + NB - 1 < 32 else []
            i = 0
            for c in range(7):
                for r in range(5):
                    t = 4 * (c * 5 + r)
                    e(f"v_mfma_f32_16x16x32_bf16 a[{t}:{t+3}], {buf(k, 5+c)}, {buf(k, r)}, {'0' if u == 0 else f'a[{t}:{t+3}]'}")
                    if i % 3 == 0 and nl and i // 3 < 12: nl[i // 3]()
                    i += 1
        if self.stamps: e(f"{self.clk} s[66:67]")
        e(f"""
        s_mul_i32 s30, s{sWave}, {35*1024}
        v_add_u32 v5, s30, v3
        s_nop 7
        """)
        for t in range(35):
            e.lds_op(f"ds_write_b128 v5, a[{4*t}:{4*t+3}] offset:{1024*t}", ("pw",))
        e(f"""
        s_mov_b32 s31, 4682
        s_mul_i32 s30, s6, {160*1792}
        s_mul_i32 s32, s26, {80*1792}
        s_add_u32 s30, s30, s32
        s_mul_i32 s32, s5, 896
        s_add_u32 s30, s30, s32
        s_mul_i32 s32, s27, 224
        s_add_u32 s30, s30, s32
        s_mov_b32 s{sOut+2}, {16*160*896*2}
        s_mov_b32 s{sOut+3}, 0x20000
        """)
        for k in range(5):
            a, o = 16 + 2 * k, 17 + 2 * k
            e(f"""
            v_add_u32 v6, {256*k}, v0
            v_mul_lo_u32 v7, v6, s31
            v_lshrrev_b32 v7, 16, v7
            v_mul_u32_u24 v8, 14, v7
            v_sub_u32 v8, v6, v8               ; ch
            v_lshrrev_b32 v9, 1, v8            ; c
            v_mul_u32_u24 v9, 5, v9
            v_lshrrev_b32 v10, 4, v7           ; r
            v_add_u32 v9, v9, v10
            v_lshlrev_b32 v9, 10, v9           ; tile*1024
            v_and_b32 v10, 1, v8
            v_lshl_add_u32 v9, v10, 9, v9      ; + (ch%2)*512
            v_and_b32 v10, 15, v7
            v_lshl_add_u32 v{a}, v10, 4, v9
            v_mul_u32_u24 v9, 1792, v7
            v_lshl_add_u32 v{o}, v8, 4, v9
            """)
            if k == 4:
                e(f"""
                v_cmp_gt_u32 vcc, 96, v0
                v_mov_b32 v9, 0x7fffffff
                v_cndmask_b32 v{o}, v9, v{o}, vcc
                v_cndmask_b32 v{a}, 0, v{a}, vcc
                """)
        e.wait_all(vm=False)
        e("s_barrier")
        for k in range(5):
            a = 16 + 2 * k
            e(f"v_add_u32 v{26+k}, {2*35*1024}, v{a}")
        for k in range(5):
            a = 16 + 2 * k; b = 32 + 32 * k
            for w in range(4):
                ar = a if w < 2 else 26 + k
                for h in range(2):
                    e.lds_op(f"ds_read_b128 v[{b+8*w+4*h}:{b+8*w+4*h+3}], v{ar} offset:{(w%2)*35*1024 + 256*h}", ("pr", k))
        for k in range(5):
            o = 17 + 2 * k; b = 32 + 32 * k
            e.wait(lds=("pr", k))
            for i in range(8):
                e(f"v_add_f32 v{b+i}, v{b+i}, v{b+8+i}")
                e(f"v_add_f32 v{b+16+i}, v{b+16+i}, v{b+24+i}")
            for i in range(8): e(f"v_add_f32 v{b+i}, v{b+i}, v{b+16+i}")
            for i in range(4): e(f"v_cvt_pk_bf16_f32 v{b+8+i}, v{b+2*i}, v{b+2*i+1}")
            e.vm_op(f"buffer_store_dwordx4 v[{b+8}:{b+11}], v{o}, {srd(sOut)}, s30 offen", ("st",))
        if self.stamps:
            e("s_waitcnt vmcnt(0)")
            e(f"{self.clk} s[68:69]")
            e("s_waitcnt lgkmcnt(0)")
            e(f"s_mov_b32 s{sWs+2}, 0x100000\ns_mov_b32 s{sWs+3}, 0x20000")
            e(f"s_mul_i32 s30, s2, 40\ns_add_u32 s30, s30, 0x8000")
            e(f"s_cmp_lg_u32 s{sWave}, 0\ns_cbranch_scc1 L2_end")
            e(f"v_mov_b32 v40, s30")
            e("s_mov_b64 exec, 1")
            for k in range(5):
                e(f"v_mov_b32 v42, s{60+2*k}\nv_mov_b32 v43, s{61+2*k}")
                e(f"buffer_store_dwordx2 v[42:43], v40, {srd(sWs)}, 0 offen offset:{8*k}")
                e("s_nop 1")
        e("L2_end:\ns_endpgm")
        return e
```

```python
import sys
from asmlib import *
from gen1 import K1, LDS1
from gen2 import K2, LDS2
def build(path, k1kw={}, k2kw={}, stamps=False):
    k1 = K1(stamps=stamps, **k1kw); e1 = k1.gen()
    k2 = K2(stamps=stamps, **k2kw); e2 = k2.gen()
    print(path, "k1 inst", e1.ninst, "nops", e1.nops, "k2 inst", e2.ninst, "nops", e2.nops)
    write_file(path, [("attn_kernel", 256, 256, LDS1), ("oproj_kernel", 256, 256, LDS2)],
               [("attn_kernel", page_stubs(e1.text(), "A", "L_end"), 512, 256, 102), ("oproj_kernel", page_stubs(e2.text(), "B"), 512, 256, 102)])
if __name__ == "__main__":
    build("f1.s", stamps=True)
    build("cdna_kernels/%s.s" % NAME)
```

```python
import math, struct
from emit import Emit

def f32bits(x): return struct.unpack("<I", struct.pack("<f", x))[0]

O_GB = 128 * 10240
import os
O_OFF = int(os.environ.get("O_OFF", "0x100000"), 0)
WT_OFF = O_OFF + 32 * O_GB
WT_BLK = 128 * 28 * 1024

NPOS = 8
XBASE = NPOS * 16384
LDS1 = XBASE + 32768
NFB = 8
TTHR = 10.0
NS = 46
NT = 53

sX, sW, sK, sV, sO = 8, 12, 16, 20, 24
sWave, sW4096, sRd, sWr, sWoff, sKVoff, sT0, sT1, sC, sFlag, sIter = 28, 29, 30, 31, 32, 33, 34, 35, 36, 37, 38
sXE, sT2, sObo, sObx, s2W, sW128, sW2048, sW4, sRet, sSh = 39, 40, 41, 42, 43, 44, 45, 46, 48, 50
sWs = 52
sStamp = 60
vDKV, vDW, vDX, vDE = 0, 2, 4, 6
vKP, vTP, vKPX = 7, 16, 17
vA = 8
vOo, vL16 = 18, 19
vMCo, vLo, vMCx, vLx, vDo, vDx = 20, 21, 22, 23, 24, 25
vT0, vT1 = 26, 27
vT4 = 28
X, Y, P0, P1, SXA, SXB = 32, 96, 160, 192, 224, 240
aXO, aXE = 192, 208
aDK, aDV, aTW, aTV, aSave = 224, 226, 228, 229, 232

def rr(base, n=4):
    k, i = base[0], int(base[1:])
    return "%s[%d:%d]" % (k, i, i + n - 1)
def srd(s): return "s[%d:%d]" % (s, s + 3)

class Item:
    def __init__(self, f, cost): self.f = f; self.cost = cost
    def __call__(self, e): self.f(e)

def cost_of(text):
    c = 0
    for l in text.split("\n"):
        l = l.strip()
        if not l or l.endswith(":"): continue
        c += 8 if l.startswith(("v_exp", "v_rcp")) else 4
    return c

class K1:
    def __init__(self, stamps=False, kvpol=" nt", wpol="", xpol="", opol="", prefetch_code=True, mode="", LA=6, WSTEP=2, dmacost=16):
        self.mode = mode
        self.clk = 's_memtime' if 'cyc' in mode else 's_memrealtime'
        self.stamps = stamps; self.kvpol = kvpol; self.wpol = wpol; self.xpol = xpol; self.opol = opol
        self.prefetch_code = prefetch_code
        self.nstamp = 0
        self.LA = LA; self.WSTEP = WSTEP; self.dmacost = dmacost
        self.tiles = []
        for i in range(7): self.tiles += [("X", i), ("W", 2*i), ("W", 2*i+1)]
        self.tiles += [("K", j) for j in range(16)] + [("V", j) for j in range(16)]
        def cons(t):
            k, j = t
            return {"X": 2*j, "W": j, "K": 14 + j, "V": 30 + j}[k]
        self.cons = [cons(t) for t in self.tiles]
        rel = [self.cons[i] + (1 if self.tiles[i][0] == "X" else 2) for i in range(NT)]
        iss = {}
        for tau in range(NPOS, 3*NT):
            p = tau - NPOS
            r = rel[p % NT] + NS * (p // NT)
            iss[tau] = max(r, iss.get(tau - 1, 0))
        self.issue = [iss[NT + t] - NS for t in range(NT)]
        assert self.issue == [iss[2*NT + t] - 2*NS for t in range(NT)]

    @staticmethod
    def slot_kind(n):
        n %= NS
        if n < 14: return "W", n
        if n < 30: return "K", n - 14
        return "V", n - 30

    def I(self, text): return Item(lambda e: e(text), cost_of(text))
    def L(self, text, tag): return Item(lambda e: e.lds_op(text, tag), 4)

    def dma_items(self, tau):
        kind, j = self.tiles[tau]
        tag = ("tile", kind, j)
        if kind == "W": base, o, d2, vb, s, pol = sWoff, j * 262144, 30720, vDW, sW, self.wpol
        elif kind == "K": base, o, d2, vb, s, pol = sKVoff, (j // 4) * 65536 + (j % 4) * 128, 6144, vDKV, sK, self.kvpol
        elif kind == "V": base, o, d2, vb, s, pol = sKVoff, j * 16384, 0, vDKV, sV, self.kvpol
        else: base, o, d2, vb, s, pol = None, j * 128, 12288, vDX, sX, self.xpol
        def mk(q):
            def f(e):
                if q == 0:
                    if (kind, j) == ("K", 0): e(f"v_accvgpr_read_b32 v{vDKV}, a{aDK}\nv_accvgpr_read_b32 v{vDKV+1}, a{aDK+1}")
                    if (kind, j) == ("V", 0): e(f"v_accvgpr_read_b32 v{vDKV}, a{aDV}\nv_accvgpr_read_b32 v{vDKV+1}, a{aDV+1}")
                    e(f"s_add_u32 m0, s{sWr}, s{sW4096}")
                    if base is None: e(f"s_movk_i32 s{sT0}, {o}")
                    else: e(f"s_add_u32 s{sT0}, s{base}, {o}")
                if q == 2 and d2:
                    e(f"s_add_u32 s{sT0}, s{sT0}, {d2}")
                if q == 4:
                    e(f"s_add_u32 m0, s{sXE}, {4096*j}")
                    e(f"s_movk_i32 s{sT0}, {o}")
                    e.vm_op(f"buffer_load_dwordx4 v{vDE}, {srd(s)}, s{sT0} offen{pol} lds", tag)
                    return
                e.vm_op(f"buffer_load_dwordx4 v{vb + (q & 1)}, {srd(s)}, s{sT0} offen offset:{1024*q}{pol} lds", tag)
                if q == 3:
                    e(f"s_add_u32 s{sWr}, s{sWr}, 16384")
                    e(f"s_and_b32 s{sWr}, s{sWr}, {NPOS*16384-1}")
                    if (kind, j) == ("V", 15): e(f"s_add_u32 s{sKVoff}, s{sKVoff}, {8*262144}")
            return Item(f, self.dmacost + (8 if q in (0, 3, 4) else 0))
        return [mk(q) for q in range(5 if kind == "X" else 4)]

    def adv_rd(self): return f"s_add_u32 s{sRd}, s{sRd}, 16384\ns_and_b32 s{sRd}, s{sRd}, {NPOS*16384-1}"

    def addr_updates(self, n):
        kind, j = self.slot_kind(n)
        U = []
        if kind == "K":
            U.append((0, f"v_add_u32 v{vA}, s{sRd}, v{vKP}\n" + self.adv_rd(), None))
            for s in range(1, 4): U.append((s, f"v_xor_b32 v{vA+s}, {32*s}, v{vA}", 0))
            for s in range(4): U.append((4+s, f"v_add_u32 v{vA+4+s}, s{sW4096}, v{vA+s}", s))
        elif kind == "V":
            pre = f"v_accvgpr_read_b32 v{vTP}, a{aTV}\n" if j == 0 else ""
            U.append((0, pre + f"v_add_u32 v{vA}, s{sRd}, v{vTP}\n" + self.adv_rd(), None))
            for t in range(1, 8): U.append((t, f"v_xor_b32 v{vA+t}, {64*t}, v{vA}", 0))
        else:
            pre = f"v_accvgpr_read_b32 v{vTP}, a{aTW}\n" if j == 0 else ""
            if j % 2 == 0:
                pre += f"s_add_u32 s{sT2}, s{sRd}, s{sW4096}\n" + self.adv_rd() + "\n"
            U.append((0, pre + f"v_add_u32 v{vA}, s{sRd}, v{vTP}\n" + self.adv_rd(), None))
            for t in range(1, 4): U.append((t, f"v_xor_b32 v{vA+t}, {64*t}, v{vA}", 0))
            U.append((4, f"v_xor_b32 v{vA+4}, s{sW128}, v{vA}", 0))
            U.append((5, f"v_xor_b32 v{vA+5}, 64, v{vA+4}", 4))
            if j % 2 == 0:
                U.append((6, f"v_add_u32 v{vA+6}, s{sT2}, v{vKP}", 0))
        return U

    def slot_mfmas(self, n):
        kind, j = self.slot_kind(n)
        L = []
        if kind == "W":
            s0 = 2 * (j & 1); i = j // 2
            own = lambda t, s: dict(acc=f"v{Y+16*t}", frag=("tr", (t & 3), (t >> 2) * 256 + s * 8192, 2048), B=rr(f"a{aXO+4*(s0+s)}"), first=(j == 0 and s == 0), lds=("xo", i, s0+s))
            ext = lambda t, s: dict(acc=f"v{SXA+16*t}", frag=("tr", 4 + t, s * 8192, 2048), B=rr(f"a{aXE+4*(s0+s)}"), first=(j == 0 and s == 0), lds=("xe", i, s0+s))
            if j < 13:
                L = [own(t, s) for s in range(2) for t in range(8)] + [ext(t, s) for s in range(2) for t in range(2)]
            else:
                L = [ext(t, s) for t in range(2) for s in range(2)] + [own(t, s) for t in range(8) for s in range(2)]
        elif kind == "K":
            g, c = j // 4, j % 4
            SB = X if g % 2 == 0 else Y
            SX = SXA if g % 2 == 0 else SXB
            L = [dict(acc=f"v{SB+16*T}", frag=("b128", s, T * 4096), B=rr(f"a{4*(4*c+s)}"), first=(c == 0 and s == 0)) for T in range(4) for s in range(4)]
            L += [dict(acc=f"v{SX}", frag=("b128", 4 + s, 0), B=rr(f"a{64+4*(4*c+s)}"), first=(c == 0 and s == 0), lds=(("qx", 4*c+s) if g == 0 else None)) for s in range(4)]
        else:
            g, T = j // 4, j % 4
            PB = [P0, P1, X, Y][g]
            for s in range(2):
                for t in range(8):
                    L.append(dict(acc=f"a{16*t}", frag=("tr", t, s * 8192, 4096), B=rr(f"v{PB+8*T+4*s}"), first=(j == 0 and s == 0)))
                    if t < 2:
                        L.append(dict(acc=f"a{128+16*t}", frag=None, B=rr(f"v{SXA + 8*(j&1) + 4*s}"), first=(j == 0 and s == 0), lds=("px", j, s)))
        return L

    def softmax_own(self, g):
        SB = X if g % 2 == 0 else Y
        PD = [P0, P1, X, Y][g]
        I = self.I; F = []
        F.append(I(f"v_max3_f32 v{vT0}, v{SB}, v{SB+1}, v{SB+2}"))
        F.append(I(f"v_max3_f32 v{vT1}, v{SB+3}, v{SB+4}, v{SB+5}"))
        i = 6; k = 0
        while i < 64:
            t = vT0 if k % 2 == 0 else vT1
            F.append(I(f"v_max3_f32 v{t}, v{t}, v{SB+i}, v{SB+i+1}")); i += 2; k += 1
        F.append(I(f"v_max_f32 v{vT0}, v{vT0}, v{vT1}"))
        F.append(I(f"v_mov_b32 v{vT1}, v{vT0}"))
        F.append(I(f"v_permlane32_swap_b32 v{vT0}, v{vT1}\nv_max_f32 v{vT0}, v{vT0}, v{vT1}"))
        F += self.max_update(g, vMCo, vLo, vDo, "o")
        return F, self.exp_block(SB, 64, PD, vMCo, vLo, g == 0)

    def max_update(self, g, vMC, vL, vD, nm):
        I = self.I
        if g == 0:
            return [I(f"v_mul_f32 v{vMC}, s{sC}, v{vT0}\nv_ceil_f32 v{vMC}, v{vMC}"), I(f"v_mov_b32 v{vD}, 0")]
        lab = f"L_rare_{nm}{g}"
        return [I(f"v_fma_f32 v{vT1}, v{vT0}, s{sC}, -v{vMC}\nv_cmp_lt_f32 vcc, 0x{f32bits(TTHR):08x}, v{vT1}\ns_cbranch_vccnz {lab}\n{lab}_back:")]

    def rare_block(self, e, g, vMC, vL, vD, nm):
        lab = f"L_rare_{nm}{g}"
        e(f"""{lab}:
        v_mul_f32 v{vT1}, s{sC}, v{vT0}
        v_ceil_f32 v{vT1}, v{vT1}
        v_max_f32 v{vT1}, v{vT1}, v{vMC}
        v_sub_f32 v{vT0}, v{vT1}, v{vMC}
        v_mov_b32 v{vMC}, v{vT1}
        v_min_f32 v{vT0}, 0x437f0000, v{vT0}
        v_cvt_u32_f32 v{vT0}, v{vT0}
        v_sub_u32 v{vT1}, 0, v{vT0}
        v_ldexp_f32 v{vL}, v{vL}, v{vT1}
        v_lshlrev_b32 v{vT0}, {8*(g-1)}, v{vT0}
        v_or_b32 v{vD}, v{vD}, v{vT0}
        s_bitset1_b32 s{sFlag}, {g}
        s_nop 1
        s_branch {lab}_back""")

    def exp_block(self, SB, n, PD, vMC, vL, first):
        I = self.I; F = []
        npair = n // 2
        def tail(p):
            a, b = SB + 2*p, SB + 2*p + 1
            if first and p == 0:
                r = [I(f"v_add_f32 v{vL}, v{a}, v{b}")]
            else:
                r = [I(f"v_add_f32 v{vL}, v{vL}, v{a}"), I(f"v_add_f32 v{vL}, v{vL}, v{b}")]
            return r + [I(f"v_cvt_pk_bf16_f32 v{PD+p}, v{a}, v{b}")]
        for p in range(npair):
            a, b = SB + 2*p, SB + 2*p + 1
            F.append(I(f"v_fma_f32 v{a}, v{a}, s{sC}, -v{vMC}"))
            F.append(I(f"v_fma_f32 v{b}, v{b}, s{sC}, -v{vMC}"))
            F.append(I(f"v_exp_f32 v{a}, v{a}"))
            if p > 0: F += tail(p - 1)[:1]
            F.append(I(f"v_exp_f32 v{b}, v{b}"))
            if p > 0: F += tail(p - 1)[1:]
        F += tail(npair - 1)
        return F

    def softmax_x1(self, g):
        SX = SXA if g % 2 == 0 else SXB
        I = self.I; F = []
        a, b = vT4, vT4 + 1
        F.append(I(f"v_max3_f32 v{a}, v{SX}, v{SX+1}, v{SX+2}"))
        F.append(I(f"v_max3_f32 v{b}, v{SX+3}, v{SX+4}, v{SX+5}"))
        for k, i in enumerate(range(6, 16, 2)):
            t = a if k % 2 == 0 else b
            F.append(I(f"v_max3_f32 v{t}, v{t}, v{SX+i}, v{SX+i+1}"))
        F.append(I(f"v_max_f32 v{a}, v{a}, v{b}"))
        F.append(I(f"v_mov_b32 v{b}, v{a}"))
        F.append(I(f"v_add_u32 v{vT4+2}, s{sW4}, v{vL16}"))
        F.append(I(f"v_permlane32_swap_b32 v{a}, v{b}\nv_max_f32 v{a}, v{a}, v{b}"))
        for r in range(4):
            F.append(self.L(f"ds_write_b32 v{vT4+2}, v{a} offset:{(4*g+r)*2048}", ("pub",)))
        return F

    def softmax_x2(self, g):
        SX = SXA if g % 2 == 0 else SXB
        I = self.I
        F = [I(f"v_add_u32 v{vT0}, s{sW2048}, v{vL16}"),
             self.L(f"ds_read_b128 v[{vT4}:{vT4+3}], v{vT0} offset:{4*g*2048}", ("st", g))]
        def comb(e):
            e.wait(lds=("st", g))
            e(f"v_max3_f32 v{vT0}, v{vT4}, v{vT4+1}, v{vT4+2}")
            e(f"v_max_f32 v{vT0}, v{vT0}, v{vT4+3}")
        G = [Item(comb, 8)]
        G += self.max_update(g, vMCx, vLx, vDx, "x")
        G += self.exp_block(SX, 16, SX, vMCx, vLx, g == 0)
        G.append(I(f"v_add_u32 v{vT4}, s{sW2048}, v{vL16}"))
        for s in range(2):
            G.append(self.L(f"ds_write_b128 v{vT4}, v[{SX+4*s}:{SX+4*s+3}] offset:{4*g*2048+s*1024}", ("pub",)))
        return F, G

    def q_convert(self, t):
        I = self.I; b = Y + 16*t; F = []
        for i in range(8):
            F.append(I(f"v_cvt_pk_bf16_f32 v{b+i}, v{b+2*i}, v{b+2*i+1}"))
            if i > 0: F.append(I(f"v_accvgpr_write_b32 a{8*t+i-1}, v{b+i-1}"))
        F.append(I(f"v_accvgpr_write_b32 a{8*t+7}, v{b+7}"))
        return F

    def qx_publish(self):
        I = self.I; F = []
        F.append(I(f"v_add_u32 v{vT0}, s{sW4096}, v{vL16}"))
        for t in range(2):
            b = SXA + 16*t
            for i in range(8): F.append(I(f"v_cvt_pk_bf16_f32 v{b+i}, v{b+2*i}, v{b+2*i+1}"))
            for s in range(2):
                F.append(self.L(f"ds_write_b128 v{vT0}, v[{b+4*s}:{b+4*s+3}] offset:{(2*t+s)*1024}", ("pub",)))
        return F

    def epi_tile(self, k):
        I = self.I; F = []
        ab = 16 * k
        vl = vLo if k < 8 else vLx
        tmp = X + 32 * (k & 1); dst = tmp + 16
        tp = k if k < 8 else k - 8
        F.append(I(f"s_xor_b32 s{sT1}, s{s2W}, {tp}\ns_mul_i32 s{sT1}, s{sT1}, 10240\ns_add_u32 s{sT1}, s{sT1}, s{sObo if k < 8 else sObx}"))
        for i in range(16): F.append(I(f"v_accvgpr_read_b32 v{tmp+i}, a{ab+i}"))
        for i in range(16): F.append(I(f"v_mul_f32 v{tmp+i}, v{tmp+i}, v{vl}"))
        for s in range(2):
            for i in range(4*s, 4*s+4): F.append(I(f"v_cvt_pk_bf16_f32 v{dst+i}, v{tmp+2*i}, v{tmp+2*i+1}"))
            F.append(Item(lambda e, s=s: e.vm_op(f"buffer_store_dwordx4 v[{dst+4*s}:{dst+4*s+3}], v{vOo}, {srd(sO)}, s{sT1} offen offset:{512*s}{self.opol}", ("ost",)), self.dmacost))
        return F

    def x_reads(self, i):
        R = {}
        for s in range(4):
            if s == 0: R[("o", 0)] = [self.L(f"ds_read_b128 a[{aXO}:{aXO+3}], v{vA+6}", ("xo", i, 0))]
            else: R[("o", s)] = [self.I(f"v_xor_b32 v{vA+7}, {32*s}, v{vA+6}"), self.L(f"ds_read_b128 a[{aXO+4*s}:{aXO+4*s+3}], v{vA+7}", ("xo", i, s))]
            if s == 0: R[("e", 0)] = [self.L(f"ds_read_b128 a[{aXE}:{aXE+3}], v{vKPX} offset:{4096*i}", ("xe", i, 0))]
            else: R[("e", s)] = [self.I(f"v_xor_b32 v{vA+7}, {32*s}, v{vKPX}"), self.L(f"ds_read_b128 a[{aXE+4*s}:{aXE+4*s+3}], v{vA+7} offset:{4096*i}", ("xe", i, s))]
        return R

    def stamp(self, e):
        if self.stamps:
            e(f"{self.clk} s[{sStamp+2*self.nstamp}:{sStamp+2*self.nstamp+1}]")
            self.nstamp += 1

    def build_body(self):
        LA = self.LA
        M = []; start = []
        for n in range(NS):
            start.append(len(M))
            for m in self.slot_mfmas(n):
                m["slot"] = n; M.append(m)
        NM = len(M)
        assert NM == 920
        fid = 0
        for m in M:
            if m["frag"] is not None:
                m["fid"] = fid; fid += 1
            else:
                m["fid"] = fid - 1
        self.nfrag = fid
        fill = [[] for _ in range(NM)]
        pre = [[] for _ in range(NM)]
        upd = [[] for _ in range(NM)]
        postbar = [[] for _ in range(NS)]
        S = lambda n: start[n % NS] + NM * (n // NS)
        cost = [8 + 4.0 / self.WSTEP] * NM
        for i, m in enumerate(M):
            g = (i - LA) % NM
            if m["frag"] is not None: cost[g] += 4 if m["frag"][0] == "b128" else 8
            if i in start: cost[g] += 24
        for n in range(NS):
            lo, hi = S(n), S(n) + 20
            last = {}
            for i in range(lo, hi):
                if M[i]["frag"] is not None: last[M[i]["frag"][1]] = i
            kind, j = self.slot_kind(n)
            if kind == "W" and j % 2 == 0:
                last[6] = lo + 12 + LA; last[7] = lo + 12 + LA
            first = {}
            for i in range(hi + 19, hi - 1, -1):
                m = M[i % NM]
                if m["frag"] is not None: first[m["frag"][1]] = i
            first[6] = min(first.get(6, 1 << 30), hi) if self.slot_kind(n + 1)[0] == "W" else first.get(6, 1 << 30)
            pos = {}
            used = {}
            for r, text, dep in self.addr_updates(n + 1):
                p = max(last.get(r, lo), pos[dep] if dep is not None else lo)
                while used.get(p, 0) >= 2 and p + 1 < first.get(r, hi + 19): p += 1
                assert p < first.get(r, 1 << 30), (n, r, p, first)
                used[p] = used.get(p, 0) + 1
                pos[r] = p
                upd[p % NM].append(((n + 1) % NS, text))
                cost[(p - LA) % NM] += cost_of(text)
        def put(i, it):
            fill[i % NM].append(it); cost[i % NM] += it.cost
        def spread(items, lo, hi):
            if "nofill" in self.mode: return
            tot = sum(it.cost for it in items)
            base = [cost[g % NM] for g in range(lo, hi)]
            a, b = min(base), max(base) + tot
            for _ in range(40):
                mid = (a + b) / 2
                if sum(max(0, mid - x) for x in base) >= tot: b = mid
                else: a = mid
            room = [max(0, b - x) for x in base]
            cum = 0; k = 0; acc = 0
            for gi in range(hi - lo):
                cum += room[gi]
                while k < len(items) and (acc + items[k].cost / 2 <= cum or gi == hi - lo - 1):
                    acc += items[k].cost; put(lo + gi, items[k]); k += 1
        by_slot = {}
        for tau in range(NT): by_slot.setdefault(self.issue[tau] % NS, []).append(tau)
        for n, taus in by_slot.items():
            d = [it for tau in taus for it in self.dma_items(tau)]
            lo = S(n) - LA + 2
            span = 18
            for k, it in enumerate(d):
                if lo + (k * span) // len(d) < 0: it.dma0 = True
                if "nodma" not in self.mode: put(lo + (k * span) // len(d), it)
        for i in range(7):
            R = self.x_reads(i); n = 2 * i
            postbar[n] += R[("o", 0)]
            cost[(S(n) - LA) % NM] += 4
            for k, key in enumerate([("o", 1), ("e", 0), ("e", 1), ("o", 2), ("o", 3), ("e", 2), ("e", 3)]):
                for it in R[key]: put(S(n) + [0, 2, 4, 6, 8, 10, 12][k], it)
        for c in range(4):
            for s in range(4):
                ks = 4*c + s
                put(S(14 + c) + 2 + 2*s, self.L(f"ds_read_b128 a[{64+4*ks}:{64+4*ks+3}], v{vL16} offset:{ks*1024}", ("qx", ks)))
        for j in range(16):
            for s in range(2):
                put(S(30 + j) - 8 + 5*s, self.L(f"ds_read_b128 v[{SXA+8*(j&1)+4*s}:{SXA+8*(j&1)+4*s+3}], v{vL16} offset:{(2*j+s)*1024}", ("px", j, s)))
        spread([it for k in range(10) for it in self.epi_tile(k)], S(0), S(12) + 10)
        put(S(13), self.I(f"s_mov_b32 s{sO+2}, {0 if 'nost' in self.mode else O_GB}\ns_add_u32 s{sObo}, s{sObo}, {8*8*10240}\ns_add_u32 s{sObx}, s{sObx}, {8*8*10240}"))
        spread(self.qx_publish(), S(13) + 5, S(13) + 20 - LA - 2)
        spread(self.q_convert(0), S(13) + 8, S(13) + 15)
        spread(self.q_convert(1), S(13) + 15, S(13) + 20)
        spread(self.q_convert(2) + self.q_convert(3), S(14), S(14) + 19)
        spread(self.q_convert(4) + self.q_convert(5), S(15), S(15) + 19)
        spread(self.q_convert(6) + self.q_convert(7), S(16), S(16) + 19)
        put(S(14), self.I(f"""s_add_u32 s{sWoff}, s{sWoff}, 4096
            s_cmp_eq_u32 s{sIter}, 0
            s_cselect_b32 s{sW+2}, s{sW+2}, 0
            s_cselect_b32 s{sX+2}, s{sX+2}, 0
            s_mov_b32 s{sFlag}, 0"""))
        win = {0: (S(18), S(22)), 1: (S(22), S(26)), 2: (S(26), S(34)), 3: (S(34), S(42) - 2)}
        for g in range(4):
            x1 = self.softmax_x1(g)
            f2, g2 = self.softmax_x2(g)
            xq0 = S(14 + 4*g + 4)
            spread(x1, xq0 + 4, xq0 + 20 - LA - 2)
            spread(f2, xq0 + 22, xq0 + 24)
            spread(g2, xq0 + 28, xq0 + 66)
        for g in range(4):
            q0, q1 = win[g]
            omax, oexp = self.softmax_own(g)
            nm = 9 if g < 2 else 14
            spread(omax, q0, q0 + nm)
            spread(oexp, q0 + nm, q1 - 1)
        for g in range(1, 4):
            def chk(e, g=g):
                lab = e.label("L_nores")
                e(f"s_bitcmp1_b32 s{sFlag}, {g}")
                e(f"s_cbranch_scc0 {lab}")
                e(f"s_mov_b32 s{sSh}, {8*(g-1)}")
                e(f"s_call_b64 s[{sRet}:{sRet+1}], L_rescale")
                e(f"{lab}:")
            pre[S(30 + 4*g)].append(chk)
        I = self.I
        lf = [I(f"v_mov_b32 v{vT0}, v{vLo}"), I(f"v_mov_b32 v{vT1}, v{vLx}"), I(f"v_add_u32 v{vT4}, s{sW4}, v{vL16}"),
              I(f"v_permlane32_swap_b32 v{vLx}, v{vT1}\nv_add_f32 v{vLx}, v{vLx}, v{vT1}"),
              I(f"v_permlane32_swap_b32 v{vLo}, v{vT0}\nv_add_f32 v{vLo}, v{vLo}, v{vT0}"),
              self.L(f"ds_write_b32 v{vT4}, v{vLx} offset:16384", ("pub",)),
              I(f"v_rcp_f32 v{vLo}, v{vLo}")]
        spread(lf, S(42), S(42) + 10)
        def lx2(e):
            e.wait(lds=("lx",))
            e(f"v_add_f32 v{vT4}, v{vT4}, v{vT4+1}\nv_add_f32 v{vT4+2}, v{vT4+2}, v{vT4+3}\nv_add_f32 v{vLx}, v{vT4}, v{vT4+2}\nv_rcp_f32 v{vLx}, v{vLx}")
        put(S(44) + 2, self.L(f"ds_read_b128 v[{vT4}:{vT4+3}], v{vL16} offset:16384", ("lx",)))
        put(S(44) + 10, Item(lx2, 20))
        self.M, self.start, self.fill, self.pre, self.upd, self.postbar, self.cost = M, start, fill, pre, upd, postbar, cost

    def frag_read(self, e, m):
        fr = m["frag"]; b = 160 + 4 * (m["fid"] % NFB)
        tag = ("f", m["fid"])
        if fr[0] == "b128":
            e.lds_op(f"ds_read_b128 a[{b}:{b+3}], v{vA+fr[1]} offset:{fr[2]}", tag)
        else:
            e.lds_op(f"ds_read_b64_tr_b16 a[{b}:{b+1}], v{vA+fr[1]} offset:{fr[2]}", tag)
            e.lds_op(f"ds_read_b64_tr_b16 a[{b+2}:{b+3}], v{vA+fr[1]} offset:{fr[2]+fr[3]}", tag)

    def lookahead(self, e, i):
        NM = len(self.M); m = self.M[i % NM]
        if (i % NM) in self.start:
            n = m["slot"]
            pubs = [t for t in e.lds[e.lds_done:] if t == ("pub",)]
            if "nodma" not in self.mode: e.wait(vm=("tile",) + self.slot_kind(n), lds=(("pub",) if pubs else None))
            if "nobar" not in self.mode: e("s_barrier")
            for it in self.postbar[n]: it(e)
        if m["frag"] is not None:
            self.frag_read(e, m)
        for _, t in self.upd[i % NM]: e(t)

    def emit_body(self, e):
        NM = len(self.M)
        assert self.nfrag % NFB == 0, self.nfrag
        for i, m in enumerate(self.M):
            if i in self.start and m["slot"] in (14, 30):
                self.stamp_inloop(e, m["slot"])
            for it in self.pre[i]: it(e)
            l = [("f", m["fid"])]
            if m.get("lds"): l.append(m["lds"])
            if i % self.WSTEP == 0:
                for d in range(1, self.WSTEP):
                    m2 = self.M[(i + d) % NM]
                    l.append(("f", m2["fid"]))
            e.wait(lds=l)
            b = 160 + 4 * (m["fid"] % NFB)
            acc = rr(m["acc"], 16)
            e(f"v_mfma_f32_32x32x16_bf16 {acc}, a[{b}:{b+3}], {m['B']}, {'0' if m['first'] else acc}")
            self.lookahead(e, i + self.LA)
            for it in self.fill[i]: it(e)

    def stamp_inloop(self, e, slot):
        if not self.stamps: return
        k = {14: 0, 30: 1, 46: 2}[slot]
        e(f"{self.clk} s[{sStamp+20+2*k}:{sStamp+21+2*k}]")

    def gen(self, code_bytes=45056, tail=None):
        self.build_body()
        def run(override):
            e = Emit(); e.wait_override = override
            self.nstamp = 0
            self.prologue(e, code_bytes)
            e("L_loop:")
            w0 = len(e.waits)
            self.emit_body(e)
            w1 = len(e.waits)
            return e, w0, w1
        e, w0, w1 = run(None)
        wa = list(e.waits)
        self.emit_body(e)
        wb = e.waits[w1:]
        self.pass1_nops = list(e.noplog)
        def mn(a, b):
            if a is None: return b
            if b is None: return a
            return min(a, b)
        ov = wa[:w0] + [(mn(a[0], b[0]), mn(a[1], b[1])) for a, b in zip(wa[w0:w1], wb)]
        e, w0, w1 = run(ov)
        e.wait_override = None
        self.stamp_inloop(e, 46)
        if self.stamps:
            e("s_waitcnt lgkmcnt(0)")
            e(f"s_cmp_eq_u32 s{sIter}, 0")
            for k in range(6):
                e(f"s_cselect_b32 s{sStamp+4+k}, s{sStamp+20+k}, s{sStamp+4+k}")
                e(f"s_mov_b32 s{sStamp+10+k}, s{sStamp+20+k}")
        e(f"s_add_u32 s{sIter}, s{sIter}, 1")
        e(f"s_cmp_lt_u32 s{sIter}, 2")
        e("s_cbranch_scc1 L_loop")
        e("s_nop 15")
        for k in range(10):
            for it in self.epi_tile(k): it(e)
        if self.stamps:
            e("s_waitcnt vmcnt(0)")
            e(f"{self.clk} s[{sStamp+16}:{sStamp+17}]")
            e("s_waitcnt lgkmcnt(0)")
            e(f"s_mov_b32 s{sWs+2}, 0x100000\ns_mov_b32 s{sWs+3}, 0x20000")
            e(f"s_mul_i32 s{sT0}, s2, 72")
            e(f"s_cmp_lg_u32 s{sWave}, 0\ns_cbranch_scc1 L_end")
            e(f"v_mov_b32 v40, s{sT0}")
            e("s_mov_b64 exec, 1")
            for k in range(9):
                e(f"v_mov_b32 v42, s{sStamp+2*k}\nv_mov_b32 v43, s{sStamp+2*k+1}")
                e(f"buffer_store_dwordx2 v[42:43], v40, {srd(sWs)}, 0 offen offset:{8*k}")
                e("s_nop 1")
        e("L_end:\ns_endpgm")
        for g in range(1, 4):
            if "nofill" in self.mode: break
            self.rare_block(e, g, vMCo, vLo, vDo, "o")
            self.rare_block(e, g, vMCx, vLx, vDx, "x")
        e("L_rescale:")
        e("s_waitcnt lgkmcnt(0)")
        e("s_nop 15")
        for i in range(6): e(f"v_accvgpr_write_b32 a{aSave+i}, v{vT0+i}")
        e(f"v_lshrrev_b32 v{vT0}, s{sSh}, v{vDo}\nv_and_b32 v{vT0}, 255, v{vT0}\nv_sub_u32 v{vT0}, 0, v{vT0}")
        e(f"v_lshrrev_b32 v{vT1}, s{sSh}, v{vDx}\nv_and_b32 v{vT1}, 255, v{vT1}\nv_sub_u32 v{vT1}, 0, v{vT1}")
        for i in range(0, 160, 4):
            for q in range(4): e(f"v_accvgpr_read_b32 v{vT4+q}, a{i+q}")
            for q in range(4): e(f"v_ldexp_f32 v{vT4+q}, v{vT4+q}, v{vT0 if i < 128 else vT1}")
            for q in range(4): e(f"v_accvgpr_write_b32 a{i+q}, v{vT4+q}")
        for i in range(6): e(f"v_accvgpr_read_b32 v{vT0+i}, a{aSave+i}")
        e("s_nop 3")
        e(f"s_setpc_b64 s[{sRet}:{sRet+1}]")
        return e

    def prologue(self, e, code_bytes):
        e(f"""
        s_cmp_ge_u32 s2, 256
        s_cbranch_scc1 L_end
        """)
        self.stamp(e)
        e(f"""
        {"s_lshr_b32 s3, s2, 5" if "badmap" in self.mode else "s_and_b32 s3, s2, 7"}
        {"s_and_b32 s4, s2, 31" if "badmap" in self.mode else "s_lshr_b32 s4, s2, 3"}
        s_lshr_b32 s5, s3, 2
        s_mul_i32 s6, s5, 40
        s_add_u32 s56, s0, s6
        s_addc_u32 s57, s1, 0
        s_load_dwordx2 s[{sX}:{sX+1}], s[56:57], 0
        s_load_dwordx2 s[{sK}:{sK+1}], s[56:57], 8
        s_load_dwordx2 s[{sV}:{sV+1}], s[56:57], 16
        s_load_dwordx2 s[{sW}:{sW+1}], s[56:57], 24
        s_load_dwordx2 s[{sO}:{sO+1}], s[56:57], 32
        s_load_dwordx2 s[{sWs}:{sWs+1}], s[0:1], 96
        v_lshrrev_b32 v32, 6, v0
        v_and_b32 v33, 63, v0
        v_lshlrev_b32 v40, 4, v0
        v_readfirstlane_b32 s{sWave}, v32
        """)
        if self.prefetch_code:
            e(f"""
            s_getpc_b64 s[92:93]
            s_mov_b32 s94, {code_bytes}
            s_mov_b32 s95, 0x20000
            s_and_b32 s7, s4, 15
            s_lshl_b32 s7, s7, 12
            """)
            e.vm_op(f"buffer_load_dwordx4 v[44:47], v40, s[92:95], s7 offen", ("code",))
        e(f"""
        s_and_b32 s6, s3, 3
        s_lshl_b32 s6, s6, 2
        s_lshr_b32 s7, s4, 3
        s_add_u32 s6, s6, s7              ; b
        s_and_b32 s7, s4, 7               ; h0
        s_lshl_b32 s{sW4096}, s{sWave}, 12
        s_lshl_b32 s{sXE}, s{sWave}, 10
        s_add_u32 s{sXE}, s{sXE}, {XBASE}
        s_lshl_b32 s{sWoff}, s7, 9
        {"s_mov_b32 s%d, 0" % sWoff if "samew" in self.mode else ""}
        s_mov_b32 s{sRd}, 0
        s_mov_b32 s{sWr}, 0
        v_lshrrev_b32 v34, 5, v33          ; hf
        v_and_b32 v35, 31, v33             ; l%32
        v_lshrrev_b32 v41, 3, v33          ; l/8
        v_and_b32 v39, 7, v33              ; l%8
        """)
        for q in range(2):
            e(f"""
            v_add_u32 v36, {8*q}, v41
            v_lshl_add_u32 v36, v32, 5, v36
            v_bfe_u32 v37, v36, 1, 3
            v_xor_b32 v37, v37, v39
            v_lshlrev_b32 v37, 4, v37
            v_subrev_u32 v37, {1024*q}, v37
            v_mul_u32_u24 v38, 896, v36
            v_add_u32 v{vDX+q}, v38, v37
            v_lshl_add_u32 v38, v36, 9, v37
            v_accvgpr_write_b32 a{aDK+q}, v38
            """)
        e(f"""
        v_lshl_add_u32 v36, v32, 3, v41
        v_bfe_u32 v37, v36, 1, 3
        v_xor_b32 v37, v37, v39
        v_lshlrev_b32 v37, 4, v37
        v_add_u32 v36, 128, v36
        v_mul_u32_u24 v38, 896, v36
        v_add_u32 v{vDE}, v38, v37
        """)
        for q in range(2):
            e(f"""
            v_add_u32 v36, {2*q}, v34
            v_lshlrev_b32 v37, 2, v36
            v_xor_b32 v37, v37, v35
            v_lshlrev_b32 v37, 4, v37
            v_subrev_u32 v37, {1024*q}, v37
            v_lshl_add_u32 v36, v32, 3, v36
            v_lshl_add_u32 v{vDW+q}, v36, 13, v37
            v_lshl_add_u32 v38, v36, 9, v37
            v_accvgpr_write_b32 a{aDV+q}, v38
            """)
        e(f"""
        v_lshlrev_b32 v48, 4, v33
        s_mul_i32 s{sT1}, s6, 143360
        s_mov_b32 s{sX+2}, 143360
        s_mov_b32 s{sX+3}, 0x20000
        s_mov_b32 s{sW+2}, 3670016
        s_mov_b32 s{sW+3}, 0x20000
        s_mov_b32 s{sO+2}, 3670016
        s_mov_b32 s{sO+3}, 0x20000
        s_waitcnt lgkmcnt(0)
        s_add_u32 s{sX}, s{sX}, s{sT1}
        s_addc_u32 s{sX+1}, s{sX+1}, 0
        """)
        pro = [tau for tau in range(NT) if self.issue[tau] < 0]
        assert pro == list(range(6)), pro
        for tau in pro[:2]:
            for it in self.dma_items(tau): it(e)
        WST = 6 * 16384
        e(f"""
        s_and_b32 s58, s3, 3
        s_lshl_b32 s58, s58, 5
        s_add_u32 s58, s58, s4                        ; u_t
        s_mul_i32 s{sT0}, s58, 28672
        s_mul_i32 s{sT1}, s{sWave}, 7168
        s_add_u32 s{sT0}, s{sT0}, s{sT1}
        s_add_u32 m0, s{sT1}, {WST}
        """)
        for q in range(7):
            if q == 4:
                e(f"s_add_u32 s{sT0}, s{sT0}, 4096\ns_add_u32 m0, m0, 4096")
            e.vm_op(f"buffer_load_dwordx4 v48, {srd(sO)}, s{sT0} offen offset:{1024*(q%4)} nt lds", ("wo",))
        for tau in pro[2:]:
            for it in self.dma_items(tau): it(e)
        e(f"""
        s_lshl_b32 s{s2W}, s{sWave}, 1
        s_lshl_b32 s{sW128}, s{sWave}, 7
        s_lshl_b32 s{sW2048}, s{sWave}, 11
        s_lshl_b32 s{sW4}, s{sWave}, 2
        s_lshl_b32 s{sKVoff}, s6, 4
        s_add_u32 s{sKVoff}, s{sKVoff}, s7
        s_lshl_b32 s{sKVoff}, s{sKVoff}, 18
        {"s_mov_b32 s%d, 0" % sKVoff if "samekv" in self.mode else ""}
        s_mov_b32 s{sC}, 0x{f32bits(math.log2(math.e)/16.0):08x}
        s_mov_b32 s{sIter}, 0
        s_mov_b32 s{sFlag}, 0
        s_mov_b32 s{sK+2}, 0x4000000
        s_mov_b32 s{sK+3}, 0x20000
        s_mov_b32 s{sV+2}, 0x4000000
        s_mov_b32 s{sV+3}, 0x20000
        s_mul_i32 s{sObo}, s7, {8*10240}
        s_sub_u32 s{sObo}, s{sObo}, {8*8*10240}
        s_add_u32 s{sObx}, s{sObo}, 8192
        s_add_u32 s{sObo}, s{sObo}, s{sW2048}
        v_bfe_u32 v36, v35, 1, 3
        v_xor_b32 v36, v36, v34
        v_lshlrev_b32 v36, 4, v36
        v_lshl_add_u32 v{vKP}, v35, 7, v36
        v_add_u32 v{vKPX}, {XBASE}, v{vKP}
        v_and_b32 v36, 15, v33                        ; i
        v_lshrrev_b32 v37, 2, v36                     ; rho = i/4
        v_and_b32 v38, 3, v36                         ; cc
        v_bfe_u32 v39, v33, 4, 1                      ; g%2
        v_lshlrev_b32 v42, 6, v37
        v_lshl_add_u32 v42, v39, 5, v42               ; rho*64 + (g%2)*32
        v_lshl_add_u32 v43, v34, 2, v37
        v_lshl_add_u32 v43, v43, 9, v42
        v_lshl_add_u32 v43, v38, 3, v43
        v_xor_b32 v43, s{sW128}, v43
        v_accvgpr_write_b32 a{aTV}, v43
        v_lshl_add_u32 v43, v34, 3, v37
        v_lshl_add_u32 v43, v43, 9, v42
        v_and_b32 v36, 1, v38
        v_lshrrev_b32 v38, 1, v38
        v_lshl_add_u32 v38, v36, 1, v38
        v_lshl_add_u32 v43, v38, 3, v43
        v_accvgpr_write_b32 a{aTW}, v43
        v_lshlrev_b32 v36, 10, v39                    ; (row/16)*1024
        v_lshl_add_u32 v36, v34, 8, v36
        v_and_b32 v37, 15, v33
        v_lshl_add_u32 v{vOo}, v37, 4, v36
        v_add_u32 v{vL16}, {XBASE}, v48
        """)
        e(f"""
        v_lshlrev_b32 v36, 4, v34
        v_lshl_add_u32 v36, v39, 2, v36
        v_bfe_u32 v37, v33, 2, 2
        v_add_u32 v36, v36, v37
        v_mul_u32_u24 v36, 896, v36
        v_and_b32 v37, 3, v33
        v_lshl_add_u32 v36, v37, 3, v36
        s_mul_i32 s{sT1}, s{sWave}, 224
        s_add_u32 s{sT1}, s{sT1}, {WST}
        v_add_u32 v36, s{sT1}, v36
        s_mul_i32 s{sT0}, s5, {WT_BLK}
        s_mul_i32 s{sT1}, s58, 28672
        s_add_u32 s{sT0}, s{sT0}, s{sT1}
        s_mul_i32 s{sT1}, s{sWave}, 7168
        s_add_u32 s{sT0}, s{sT0}, s{sT1}
        s_add_u32 s{sT0}, s{sT0}, {WT_OFF}
        s_mov_b32 s{sWs+2}, {WT_OFF + 2*WT_BLK}
        s_mov_b32 s{sWs+3}, 0x20000
        """)
        NM = len(self.M)
        done = set()
        for i in range(self.start[45], NM):
            for sl, t in self.upd[i]:
                if sl == 0: e(t)
        e.wait(vm=("wo",))
        e("s_barrier")
        for c in range(7):
            e.lds_op(f"ds_read_b64_tr_b16 v[{96+4*c}:{97+4*c}], v36 offset:{32*c}", ("wt", c))
            e.lds_op(f"ds_read_b64_tr_b16 v[{98+4*c}:{99+4*c}], v36 offset:{32*c+8*896}", ("wt", c))
        for c in range(7):
            e.wait(lds=("wt", c))
            if c == 4: e(f"s_add_u32 s{sT0}, s{sT0}, 4096")
            e.vm_op(f"buffer_store_dwordx4 v[{96+4*c}:{99+4*c}], v48, {srd(sWs)}, s{sT0} offen offset:{1024*(c%4)}{self.opol}", ("wst",))
        e(f"""
        s_lshl_b32 s{sT0}, s5, 4
        s_add_u32 s{sT0}, s{sT0}, s6
        s_mul_i32 s{sT0}, s{sT0}, {O_GB}
        s_add_u32 s{sT0}, s{sT0}, {O_OFF}
        s_add_u32 s{sO}, s{sWs}, s{sT0}
        s_addc_u32 s{sO+1}, s{sWs+1}, 0
        s_mov_b32 s{sO+2}, 0
        v_mov_b32 v{vLo}, 0
        v_mov_b32 v{vLx}, 0
        """)
        self.stamp(e)
        for i in range(self.LA):
            self.lookahead(e, i)
            for it in self.fill[NM - self.LA + i]:
                if getattr(it, "dma0", False): it(e)

if __name__ == "__main__":
    from asmlib import *
    import sys
    def out(name, **kw):
        k = K1(stamps=True, **kw)
        e = k.gen()
        print(name, "instructions", e.ninst, "auto nops", e.nops, len(k.pass1_nops))
        for x in k.pass1_nops[:12]: print("   ", x)
        write_file(f"work/{name}.s", [(NAME + "_kernel", 256, 256, LDS1)], [(NAME + "_kernel", e.text(), 512, 256, 102)])
        return k
    k = out("k1")
    print([round(sum(max(32, c) for c in k.cost[k.start[n]:k.start[n]+20])) for n in range(NS)])
    base = "samekv samew nost cyc "
    out("a0", mode=base, kvpol="")
    out("a1", mode=base, kvpol="", LA=5, WSTEP=1)
    out("a2", mode=base + "nodma", kvpol="")
    out("a3", mode=base + "nodma nobar", kvpol="")
    out("a5", mode=base + "nofill", kvpol="")
    out("k1c", mode="cyc")
```

```python
from build import build
W = "work/"
build(W+"m_good.s")
build(W+"m_bad.s", dict(mode="badmap"), dict(mode="badmap"))
build(W+"m_bad1.s", dict(mode="badmap"))
build(W+"m_bad2.s", {}, dict(mode="badmap"))
build(W+"ms_bad.s", dict(mode="badmap"), dict(mode="badmap"), stamps=True)
build(W+"ms_good.s", stamps=True)
```

```python
regs = ["v64", "v80", "a0", "a16", "a32", "a48"]
def park(fs): return {k: (regs[k], f) for k, f in enumerate(fs)}
BEST = dict(opol=" sc1", hb=1, pfw={0: -31}, psp=1, epi_end=9, pace=(6, 14, 1.14), park=park([-0.45, 1.62, 3.62, 5.62, 7.62, 9.62]))
r2 = ["v80", "a0", "a16", "a32", "a48", "a64"]
def park2(fs): return {k: (r2[k], f) for k, f in enumerate(fs)}
B4 = dict(BEST, fused=True, pfw={}, pfq=10.1, rpark=True, park=park2([0.9, 2.6, 4.2, 5.8, 7.6, 9.62]), epi_end=10)
```

```python
import math, struct
from emit import Emit
from asmlib import warm_call

def f32bits(x): return struct.unpack("<I", struct.pack("<f", x))[0]

O_GB = 128 * 10240
import os
O_OFF = int(os.environ.get("O_OFF", "0x100000"), 0)
WT_OFF = O_OFF + 32 * O_GB
WT_BLK = 128 * 28 * 1024

NPOS = 8
XBASE = NPOS * 16384
LDS1 = XBASE + 32768
NFB = 8
TTHR = 10.0
NS = 46
NT = 53

sX, sW, sK, sV, sO = 8, 12, 16, 20, 24
sWave, sW4096, sRd, sWr, sWoff, sKVoff, sT0, sT1, sC, sFlag, sIter = 28, 29, 30, 31, 32, 33, 34, 35, 36, 37, 38
sXE, sT2, sObo, sObx, s2W, sW128, sW2048, sW4, sRet, sSh = 39, 40, 41, 42, 43, 44, 45, 46, 48, 50
sWs = 52
sStamp = 60
vDKV, vDW, vDX, vDE = 0, 2, 4, 6
vKP, vTP, vKPX = 7, 16, 17
vA = 8
vOo, vL16 = 18, 19
vMCo, vLo, vMCx, vLx, vDo, vDx = 20, 21, 22, 23, 24, 25
vT0, vT1 = 26, 27
vT4 = 28
X, Y, P0, P1, SXA, SXB = 32, 96, 160, 192, 224, 240
aXO, aXE = 192, 208
aDK, aDV, aTW, aTV, aSave = 224, 226, 228, 229, 232
aDE, aPK, aPL, aPW, aDummy = 230, 231, 238, 239, 240
sT3, sT4, sWX, sPW, sRhoV, sRhoK, sKap = 47, 51, 59, 90, 91, 96, 97

def rr(base, n=4):
    k, i = base[0], int(base[1:])
    return "%s[%d:%d]" % (k, i, i + n - 1)
def srd(s): return "s[%d:%d]" % (s, s + 3)

class Item:
    def __init__(self, f, cost): self.f = f; self.cost = cost
    def __call__(self, e): self.f(e)

def cost_of(text):
    c = 0
    for l in text.split("\n"):
        l = l.strip()
        if not l or l.endswith(":"): continue
        c += 8 if l.startswith(("v_exp", "v_rcp")) else 4
    return c

class K1:
    def __init__(self, stamps=False, kvpol=" nt", wpol="", xpol="", opol="", prefetch_code=True, mode="", LA=6, WSTEP=2, dmacost=16, pfkv=None, pfw=None, pfx=False, pfwpol='', park=None, epi_end=12.5, pfsplit=True, psp=3, rot=False, kap=False, hb=3, pace=None, warm=True):
        self.warm = warm
        self.pace = pace
        self.hb = hb
        self.rot = rot; self.kap = kap
        self.psp = psp
        self.park = park or {}; self.epi_end = epi_end; self.pfsplit = pfsplit
        self.pfkv = pfkv or {}; self.pfw = pfw or {}; self.pfx = pfx; self.pfwpol = pfwpol
        self.mode = mode
        self.clk = 's_memtime' if 'cyc' in mode else 's_memrealtime'
        self.stamps = stamps; self.kvpol = kvpol; self.wpol = wpol; self.xpol = xpol; self.opol = opol
        self.prefetch_code = prefetch_code
        self.nstamp = 0
        self.LA = LA; self.WSTEP = WSTEP; self.dmacost = dmacost
        self.tiles = []
        for i in range(7): self.tiles += [("X", i), ("W", 2*i), ("W", 2*i+1)]
        self.tiles += [("K", j) for j in range(16)] + [("V", j) for j in range(16)]
        def cons(t):
            k, j = t
            return {"X": 2*j, "W": j, "K": 14 + j, "V": 30 + j}[k]
        self.cons = [cons(t) for t in self.tiles]
        rel = [self.cons[i] + (1 if self.tiles[i][0] == "X" else 2) for i in range(NT)]
        iss = {}
        for tau in range(NPOS, 3*NT):
            p = tau - NPOS
            r = rel[p % NT] + NS * (p // NT)
            iss[tau] = max(r, iss.get(tau - 1, 0))
        self.issue = [iss[NT + t] - NS for t in range(NT)]
        assert self.issue == [iss[2*NT + t] - 2*NS for t in range(NT)]

    @staticmethod
    def slot_kind(n):
        n %= NS
        if n < 14: return "W", n
        if n < 30: return "K", n - 14
        return "V", n - 30

    def I(self, text): return Item(lambda e: e(text), cost_of(text))
    def L(self, text, tag): return Item(lambda e: e.lds_op(text, tag), 4)

    def kv_index(self, tau):
        kind, j = self.tiles[tau]
        return {"K": j, "V": 16 + j}.get(kind)

    def dma_items(self, tau, part=None):
        kind, j = self.tiles[tau]
        tag = ("tile", kind, j)
        if kind == "W": base, o, d2, vb, s, pol = sWoff, j * 262144, 30720, vDW, sW, self.wpol
        elif kind == "K": base, o, d2, vb, s, pol = sKVoff, (j // 4) * 65536 + (j % 4) * 128, 6144, vDKV, sK, self.kvpol
        elif kind == "V": base, o, d2, vb, s, pol = sKVoff, j * 16384, 0, vDKV, sV, self.kvpol
        else: base, o, d2, vb, s, pol = None, j * 128, 12288, vDX, sX, self.xpol
        adv = f"s_add_u32 s{sWr}, s{sWr}, 16384\ns_and_b32 s{sWr}, s{sWr}, {NPOS*16384-1}"
        if part is not None:
            R = self.park[self.kv_index(tau)][0]
            reg = lambda q: rr(R[0] + str(int(R[1:]) + 4*q))
        if part == "drain":
            def mkd(q):
                def f(e):
                    if q == 0:
                        e(f"s_add_u32 s{sT0}, s{sWr}, s{sWX}")
                        e(f"v_add_u32 v{vDE}, s{sT0}, v{vL16}")
                        e.wait(vm=tag)
                    e.lds_op(f"ds_write_b128 v{vDE}, {reg(q)} offset:{1024*q}", ("pub",))
                    if q == 3: e(adv)
                return Item(f, 8 + (12 if q == 0 else 8 if q == 3 else 0))
            return [mkd(q) for q in range(4)]
        sOf = sT0 if part is None else sT4
        def mk(q):
            def f(e):
                if q == 0:
                    if (kind, j) == ("K", 0): e(f"v_accvgpr_read_b32 v{vDKV}, a{aDK}\nv_accvgpr_read_b32 v{vDKV+1}, a{aDK+1}")
                    if (kind, j) == ("V", 0): e(f"v_accvgpr_read_b32 v{vDKV}, a{aDV}\nv_accvgpr_read_b32 v{vDKV+1}, a{aDV+1}")
                    if part is None: e(f"s_add_u32 m0, s{sWr}, s{sW4096}")
                    if base is None: e(f"s_movk_i32 s{sOf}, {o}")
                    elif kind == "V":
                        e(f"s_add_u32 s{sOf}, s{sRhoV}, {o}\ns_and_b32 s{sOf}, s{sOf}, 0x3ffff\ns_add_u32 s{sOf}, s{sOf}, s{base}")
                    elif kind == "K":
                        e(f"s_add_u32 s{sOf}, s{sRhoK}, {(j // 4) * 65536}\ns_and_b32 s{sOf}, s{sOf}, 0x3ffff\ns_add_u32 s{sOf}, s{sOf}, s{base}")
                        if j % 4: e(f"s_xor_b32 s{sOf}, s{sOf}, {(j % 4) * 128}")
                    else: e(f"s_add_u32 s{sOf}, s{base}, {o}")
                if q == 2 and d2:
                    e(f"s_add_u32 s{sOf}, s{sOf}, {d2}")
                if q == 4:
                    if j == 0: e(f"v_accvgpr_read_b32 v{vDE}, a{aDE}")
                    e(f"s_add_u32 m0, s{sXE}, {4096*j}")
                    e(f"s_movk_i32 s{sT0}, {o}")
                    e.vm_op(f"buffer_load_dwordx4 v{vDE}, {srd(s)}, s{sT0} offen{pol} lds", tag)
                    return
                if part is None:
                    e.vm_op(f"buffer_load_dwordx4 v{vb + (q & 1)}, {srd(s)}, s{sOf} offen offset:{1024*q}{pol} lds", tag)
                else:
                    e.vm_op(f"buffer_load_dwordx4 {reg(q)}, v{vb + (q & 1)}, {srd(s)}, s{sOf} offen offset:{1024*q}{pol}", tag)
                if q == 3:
                    if part is None: e(adv)
                    if (kind, j) == ("V", 15):
                        e(f"s_add_u32 s{sKVoff}, s{sKVoff}, {8*262144}")
                        e(f"s_cmp_eq_u32 s{sIter}, 0\ns_cselect_b32 s{sK+2}, s{sK+2}, 0")
            return Item(f, self.dmacost + (8 if q in (0, 3, 4) else 0))
        return [mk(q) for q in range(5 if kind == "X" else 4)]

    def pf_item(self, kind, i, slot):
        tmp = 36 if slot is None else vDE
        assert slot is None or 15 <= slot % NS <= 39
        if kind == "K": st, s_, base, o, pol = aPK, sK, sKVoff, (i // 2) * 65536 + (i % 2) * 256, self.kvpol
        elif kind == "V": st, s_, base, o, pol = aPL, sV, sKVoff, i * 32768, self.kvpol
        elif kind == "W": st, s_, base, o, pol = aPW, sW, sWoff, i * 16 * 131072, self.pfwpol
        else: st, s_, base, o, pol = aPL, sX, None, i * 32768, self.xpol
        def f(e):
            e(f"v_accvgpr_read_b32 v{tmp}, a{st}")
            if base is None: e(f"s_mov_b32 s{sT3}, {o}")
            else: e(f"s_add_u32 s{sT3}, s{base}, {o}")
            e.vm_op(f"buffer_load_dword a{aDummy}, v{tmp}, {srd(s_)}, s{sT3} offen{pol}", ("pf",))
        return Item(f, 24)

    def map_code(self):
        hb = self.hb
        xb = 3 - hb
        return f"""s_and_b32 s7, s3, {(1 << xb) - 1}
        s_lshl_b32 s7, s7, {hb}
        s_and_b32 s6, s4, {(1 << hb) - 1}
        s_add_u32 s7, s7, s6
        s_bfe_u32 s6, s3, {((2 - xb) << 16) | xb}
        s_lshl_b32 s6, s6, {5 - hb}
        s_lshr_b32 s{sPW}, s4, {hb}
        s_add_u32 s6, s6, s{sPW}"""

    def adv_rd(self): return f"s_add_u32 s{sRd}, s{sRd}, 16384\ns_and_b32 s{sRd}, s{sRd}, {NPOS*16384-1}"

    def addr_updates(self, n):
        kind, j = self.slot_kind(n)
        U = []
        if kind == "K":
            U.append((0, f"v_add_u32 v{vA}, s{sRd}, v{vKP}\n" + self.adv_rd(), None))
            for s in range(1, 4): U.append((s, f"v_xor_b32 v{vA+s}, {32*s}, v{vA}", 0))
            for s in range(4): U.append((4+s, f"v_add_u32 v{vA+4+s}, s{sW4096}, v{vA+s}", s))
        elif kind == "V":
            pre = f"v_accvgpr_read_b32 v{vTP}, a{aTV}\n" if j == 0 else ""
            U.append((0, pre + f"v_add_u32 v{vA}, s{sRd}, v{vTP}\n" + self.adv_rd(), None))
            for t in range(1, 8): U.append((t, f"v_xor_b32 v{vA+t}, {64*t}, v{vA}", 0))
        else:
            pre = f"v_accvgpr_read_b32 v{vTP}, a{aTW}\n" if j == 0 else ""
            if j % 2 == 0:
                pre += f"s_add_u32 s{sT2}, s{sRd}, s{sW4096}\n" + self.adv_rd() + "\n"
            U.append((0, pre + f"v_add_u32 v{vA}, s{sRd}, v{vTP}\n" + self.adv_rd(), None))
            for t in range(1, 4): U.append((t, f"v_xor_b32 v{vA+t}, {64*t}, v{vA}", 0))
            U.append((4, f"v_xor_b32 v{vA+4}, s{sW128}, v{vA}", 0))
            U.append((5, f"v_xor_b32 v{vA+5}, 64, v{vA+4}", 4))
            if j % 2 == 0:
                U.append((6, f"v_add_u32 v{vA+6}, s{sT2}, v{vKP}", 0))
        return U

    def slot_mfmas(self, n):
        kind, j = self.slot_kind(n)
        L = []
        if kind == "W":
            s0 = 2 * (j & 1); i = j // 2
            own = lambda t, s: dict(acc=f"v{Y+16*t}", frag=("tr", (t & 3), (t >> 2) * 256 + s * 8192, 2048), B=rr(f"a{aXO+4*(s0+s)}"), first=(j == 0 and s == 0), lds=("xo", i, s0+s))
            ext = lambda t, s: dict(acc=f"v{SXA+16*t}", frag=("tr", 4 + t, s * 8192, 2048), B=rr(f"a{aXE+4*(s0+s)}"), first=(j == 0 and s == 0), lds=("xe", i, s0+s))
            if j < 13:
                L = [own(t, s) for s in range(2) for t in range(8)] + [ext(t, s) for s in range(2) for t in range(2)]
            else:
                L = [ext(t, s) for t in range(2) for s in range(2)] + [own(t, s) for t in range(8) for s in range(2)]
        elif kind == "K":
            g, c = j // 4, j % 4
            SB = X if g % 2 == 0 else Y
            SX = SXA if g % 2 == 0 else SXB
            L = [dict(acc=f"v{SB+16*T}", frag=("b128", s, T * 4096), B=rr(f"a{4*(4*c+s)}"), first=(c == 0 and s == 0)) for T in range(4) for s in range(4)]
            L += [dict(acc=f"v{SX}", frag=("b128", 4 + s, 0), B=rr(f"a{64+4*(4*c+s)}"), first=(c == 0 and s == 0), lds=(("qx", 4*c+s) if g == 0 else None)) for s in range(4)]
        else:
            g, T = j // 4, j % 4
            PB = [P0, P1, X, Y][g]
            for s in range(2):
                for t in range(8):
                    L.append(dict(acc=f"a{16*t}", frag=("tr", t, s * 8192, 4096), B=rr(f"v{PB+8*T+4*s}"), first=(j == 0 and s == 0)))
                    if t < 2:
                        L.append(dict(acc=f"a{128+16*t}", frag=None, B=rr(f"v{SXA + 8*(j&1) + 4*s}"), first=(j == 0 and s == 0), lds=("px", j, s)))
        return L

    def softmax_own(self, g):
        SB = X if g % 2 == 0 else Y
        PD = [P0, P1, X, Y][g]
        I = self.I; F = []
        F.append(I(f"v_max3_f32 v{vT0}, v{SB}, v{SB+1}, v{SB+2}"))
        F.append(I(f"v_max3_f32 v{vT1}, v{SB+3}, v{SB+4}, v{SB+5}"))
        i = 6; k = 0
        while i < 64:
            t = vT0 if k % 2 == 0 else vT1
            F.append(I(f"v_max3_f32 v{t}, v{t}, v{SB+i}, v{SB+i+1}")); i += 2; k += 1
        F.append(I(f"v_max_f32 v{vT0}, v{vT0}, v{vT1}"))
        F.append(I(f"v_mov_b32 v{vT1}, v{vT0}"))
        F.append(I(f"v_permlane32_swap_b32 v{vT0}, v{vT1}\nv_max_f32 v{vT0}, v{vT0}, v{vT1}"))
        F += self.max_update(g, vMCo, vLo, vDo, "o")
        return F, self.exp_block(SB, 64, PD, vMCo, vLo, g == 0)

    def max_update(self, g, vMC, vL, vD, nm):
        I = self.I
        if g == 0:
            return [I(f"v_mul_f32 v{vMC}, s{sC}, v{vT0}\nv_ceil_f32 v{vMC}, v{vMC}"), I(f"v_mov_b32 v{vD}, 0" if "slot" not in self.mode else "s_nop 0")]
        lab = f"L_rare_{nm}{g}"
        return [I(f"v_fma_f32 v{vT1}, v{vT0}, s{sC}, -v{vMC}\nv_cmp_lt_f32 vcc, 0x{f32bits(TTHR):08x}, v{vT1}\ns_cbranch_vccnz {lab}\n{lab}_back:")]

    def rare_block(self, e, g, vMC, vL, vD, nm):
        lab = f"L_rare_{nm}{g}"
        e(f"""{lab}:
        v_mul_f32 v{vT1}, s{sC}, v{vT0}
        v_ceil_f32 v{vT1}, v{vT1}
        v_max_f32 v{vT1}, v{vT1}, v{vMC}
        v_sub_f32 v{vT0}, v{vT1}, v{vMC}
        v_mov_b32 v{vMC}, v{vT1}
        v_min_f32 v{vT0}, 0x437f0000, v{vT0}
        v_cvt_u32_f32 v{vT0}, v{vT0}
        v_sub_u32 v{vT1}, 0, v{vT0}
        v_ldexp_f32 v{vL}, v{vL}, v{vT1}
        v_lshlrev_b32 v{vT0}, {8*(g-1)}, v{vT0}
        v_or_b32 v{vD}, v{vD}, v{vT0}
        s_bitset1_b32 s{sFlag}, {g}
        s_nop 1
        s_branch {lab}_back""")

    def exp_block(self, SB, n, PD, vMC, vL, first):
        I = self.I; F = []
        npair = n // 2
        def tail(p):
            a, b = SB + 2*p, SB + 2*p + 1
            if first and p == 0:
                r = [I(f"v_add_f32 v{vL}, v{a}, v{b}")]
            else:
                r = [I(f"v_add_f32 v{vL}, v{vL}, v{a}"), I(f"v_add_f32 v{vL}, v{vL}, v{b}")]
            return r + [I(f"v_cvt_pk_bf16_f32 v{PD+p}, v{a}, v{b}")]
        for p in range(npair):
            a, b = SB + 2*p, SB + 2*p + 1
            F.append(I(f"v_fma_f32 v{a}, v{a}, s{sC}, -v{vMC}"))
            F.append(I(f"v_fma_f32 v{b}, v{b}, s{sC}, -v{vMC}"))
            F.append(I(f"v_exp_f32 v{a}, v{a}"))
            if p > 0: F += tail(p - 1)[:1]
            F.append(I(f"v_exp_f32 v{b}, v{b}"))
            if p > 0: F += tail(p - 1)[1:]
        F += tail(npair - 1)
        return F

    def softmax_x1(self, g):
        SX = SXA if g % 2 == 0 else SXB
        I = self.I; F = []
        a, b = vT4, vT4 + 1
        F.append(I(f"v_max3_f32 v{a}, v{SX}, v{SX+1}, v{SX+2}"))
        F.append(I(f"v_max3_f32 v{b}, v{SX+3}, v{SX+4}, v{SX+5}"))
        for k, i in enumerate(range(6, 16, 2)):
            t = a if k % 2 == 0 else b
            F.append(I(f"v_max3_f32 v{t}, v{t}, v{SX+i}, v{SX+i+1}"))
        F.append(I(f"v_max_f32 v{a}, v{a}, v{b}"))
        F.append(I(f"v_mov_b32 v{b}, v{a}"))
        F.append(I(f"v_add_u32 v{vT4+2}, s{sW4}, v{vL16}"))
        F.append(I(f"v_permlane32_swap_b32 v{a}, v{b}\nv_max_f32 v{a}, v{a}, v{b}"))
        for r in range(4):
            F.append(self.L(f"ds_write_b32 v{vT4+2}, v{a} offset:{(4*g+r)*2048}", ("pub",)))
        return F

    def softmax_x2(self, g):
        SX = SXA if g % 2 == 0 else SXB
        I = self.I
        F = [I(f"v_add_u32 v{vT0}, s{sW2048}, v{vL16}"),
             self.L(f"ds_read_b128 v[{vT4}:{vT4+3}], v{vT0} offset:{4*g*2048}", ("st", g))]
        def comb(e):
            e.wait(lds=("st", g))
            e(f"v_max3_f32 v{vT0}, v{vT4}, v{vT4+1}, v{vT4+2}")
            e(f"v_max_f32 v{vT0}, v{vT0}, v{vT4+3}")
        G = [Item(comb, 8)]
        G += self.max_update(g, vMCx, vLx, vDx, "x")
        G += self.exp_block(SX, 16, SX, vMCx, vLx, g == 0)
        G.append(I(f"v_add_u32 v{vT4}, s{sW2048}, v{vL16}"))
        for s in range(2):
            G.append(self.L(f"ds_write_b128 v{vT4}, v[{SX+4*s}:{SX+4*s+3}] offset:{4*g*2048+s*1024}", ("pub",)))
        return F, G

    def q_convert(self, t):
        I = self.I; b = Y + 16*t; F = []
        for i in range(8):
            F.append(I(f"v_cvt_pk_bf16_f32 v{b+i}, v{b+2*i}, v{b+2*i+1}"))
            if i > 0: F.append(I(f"v_accvgpr_write_b32 a{8*t+i-1}, v{b+i-1}"))
        F.append(I(f"v_accvgpr_write_b32 a{8*t+7}, v{b+7}"))
        return F

    def qx_publish(self):
        I = self.I; F = []
        F.append(I(f"v_add_u32 v{vT0}, s{sW4096}, v{vL16}"))
        for t in range(2):
            b = SXA + 16*t
            for i in range(8): F.append(I(f"v_cvt_pk_bf16_f32 v{b+i}, v{b+2*i}, v{b+2*i+1}"))
            for s in range(2):
                F.append(self.L(f"ds_write_b128 v{vT0}, v[{b+4*s}:{b+4*s+3}] offset:{(2*t+s)*1024}", ("pub",)))
        return F

    def epi_tile(self, k):
        I = self.I; F = []
        ab = 16 * k
        vl = vLo if k < 8 else vLx
        tmp = X; dst = X + 16 + 8 * (k & 1)
        tp = k if k < 8 else k - 8
        F.append(I(f"s_xor_b32 s{sT1}, s{s2W}, {tp}\ns_mul_i32 s{sT1}, s{sT1}, 10240\ns_add_u32 s{sT1}, s{sT1}, s{sObo if k < 8 else sObx}"))
        for i in range(16): F.append(I(f"v_accvgpr_read_b32 v{tmp+i}, a{ab+i}"))
        F[-1].epi = k
        for i in range(16): F.append(I(f"v_mul_f32 v{tmp+i}, v{tmp+i}, v{vl}"))
        for s in range(2):
            for i in range(4*s, 4*s+4): F.append(I(f"v_cvt_pk_bf16_f32 v{dst+i}, v{tmp+2*i}, v{tmp+2*i+1}"))
            F.append(Item(lambda e, s=s: e.vm_op(f"buffer_store_dwordx4 v[{dst+4*s}:{dst+4*s+3}], v{vOo}, {srd(sO)}, s{sT1} offen offset:{512*s}{self.opol}", ("ost",)), self.dmacost))
        return F

    def x_reads(self, i):
        R = {}
        for s in range(4):
            if s == 0: R[("o", 0)] = [self.L(f"ds_read_b128 a[{aXO}:{aXO+3}], v{vA+6}", ("xo", i, 0))]
            else: R[("o", s)] = [self.I(f"v_xor_b32 v{vA+7}, {32*s}, v{vA+6}"), self.L(f"ds_read_b128 a[{aXO+4*s}:{aXO+4*s+3}], v{vA+7}", ("xo", i, s))]
            if s == 0: R[("e", 0)] = [self.L(f"ds_read_b128 a[{aXE}:{aXE+3}], v{vKPX} offset:{4096*i}", ("xe", i, 0))]
            else: R[("e", s)] = [self.I(f"v_xor_b32 v{vA+7}, {32*s}, v{vKPX}"), self.L(f"ds_read_b128 a[{aXE+4*s}:{aXE+4*s+3}], v{vA+7} offset:{4096*i}", ("xe", i, s))]
        return R

    def stamp(self, e):
        if self.stamps:
            e(f"{self.clk} s[{sStamp+2*self.nstamp}:{sStamp+2*self.nstamp+1}]")
            self.nstamp += 1

    def build_body(self):
        LA = self.LA
        M = []; start = []
        for n in range(NS):
            start.append(len(M))
            for m in self.slot_mfmas(n):
                m["slot"] = n; M.append(m)
        NM = len(M)
        assert NM == 920
        fid = 0
        for m in M:
            if m["frag"] is not None:
                m["fid"] = fid; fid += 1
            else:
                m["fid"] = fid - 1
        self.nfrag = fid
        fill = [[] for _ in range(NM)]
        pre = [[] for _ in range(NM)]
        upd = [[] for _ in range(NM)]
        postbar = [[] for _ in range(NS)]
        S = lambda n: start[n % NS] + NM * (n // NS)
        cost = [8 + 4.0 / self.WSTEP] * NM
        for i, m in enumerate(M):
            g = (i - LA) % NM
            if m["frag"] is not None: cost[g] += 4 if m["frag"][0] == "b128" else 8
            if i in start: cost[g] += 24
        for n in range(NS):
            lo, hi = S(n), S(n) + 20
            last = {}
            for i in range(lo, hi):
                if M[i]["frag"] is not None: last[M[i]["frag"][1]] = i
            kind, j = self.slot_kind(n)
            if kind == "W" and j % 2 == 0:
                last[6] = lo + 12 + LA; last[7] = lo + 12 + LA
            first = {}
            for i in range(hi + 19, hi - 1, -1):
                m = M[i % NM]
                if m["frag"] is not None: first[m["frag"][1]] = i
            first[6] = min(first.get(6, 1 << 30), hi) if self.slot_kind(n + 1)[0] == "W" else first.get(6, 1 << 30)
            pos = {}
            used = {}
            for r, text, dep in self.addr_updates(n + 1):
                p = max(last.get(r, lo), pos[dep] if dep is not None else lo)
                while used.get(p, 0) >= 2 and p + 1 < first.get(r, hi + 19): p += 1
                assert p < first.get(r, 1 << 30), (n, r, p, first)
                used[p] = used.get(p, 0) + 1
                pos[r] = p
                upd[p % NM].append(((n + 1) % NS, text))
                cost[(p - LA) % NM] += cost_of(text)
        def put(i, it):
            fill[i % NM].append(it); cost[i % NM] += it.cost
        def spread(items, lo, hi):
            if "nofill" in self.mode: return
            tot = sum(it.cost for it in items)
            base = [cost[g % NM] for g in range(lo, hi)]
            a, b = min(base), max(base) + tot
            for _ in range(40):
                mid = (a + b) / 2
                if sum(max(0, mid - x) for x in base) >= tot: b = mid
                else: a = mid
            room = [max(0, b - x) for x in base]
            cum = 0; k = 0; acc = 0
            for gi in range(hi - lo):
                cum += room[gi]
                while k < len(items) and (acc + items[k].cost / 2 <= cum or gi == hi - lo - 1):
                    acc += items[k].cost; put(lo + gi, items[k]); k += 1
        want = []
        order = list(range(21, NT)) + list(range(21))
        for tau in order:
            g = (self.issue[tau] + (NS if tau < 21 else 0)) * 20 - LA + 2
            k = self.kv_index(tau)
            if self.pace and k is not None and k >= self.pace[0]:
                g = max(g, int(round((self.pace[1] + (k - self.pace[0]) * self.pace[2]) * 20)))
            if want: g = max(g, want[-1])
            want.append(g)
        self.first_gap = {}
        cur = -1000
        for n_, tau in enumerate(order):
            d = self.dma_items(tau, "drain" if self.kv_index(tau) in self.park else None)
            g = max(want[n_], cur)
            later = [w for w in want[n_+1:] + [want[0] + NM] if w > g]
            backlog = sum(1 for w in want[n_:] if w <= g)
            room = (later[0] - g) if backlog <= 1 else max(later[0] - g, 18) / backlog
            sp = max(2, min(4, int(room // len(d))))
            self.first_gap[tau] = g
            deadline = (self.cons[tau] + (NS if tau < 21 else 0)) * 20 - LA
            assert g + sp * len(d) + 25 < deadline, (tau, g, deadline)
            for k, it in enumerate(d):
                gg = g + sp * k
                it.tau = tau; it.gap = gg
                if "nodma" not in self.mode: put(gg, it)
            cur = g + sp * len(d)
        assert cur <= want[0] + NM
        for tau in range(NT):
            k = self.kv_index(tau)
            if k in self.park:
                g0 = int(round(self.park[k][1] * 20))
                assert g0 + 9 + 30 < self.first_gap[tau], (k, g0, self.first_gap[tau])
                assert g0 >= 0 or g0 + NM > self.first_gap[52] + 20
                for q, it in enumerate(self.dma_items(tau, "load")): put(g0 + self.psp * q, it)
        for i, sl in self.pfkv.items():
            put(S(sl % NS) + 7, self.pf_item("K" if i < 8 else "V", i % 8, sl))
        for i, sl in self.pfw.items():
            put(S(sl % NS) + 11, self.pf_item("W", i, sl))
        for i in range(7):
            R = self.x_reads(i); n = 2 * i
            postbar[n] += R[("o", 0)]
            cost[(S(n) - LA) % NM] += 4
            for k, key in enumerate([("o", 1), ("e", 0), ("e", 1), ("o", 2), ("o", 3), ("e", 2), ("e", 3)]):
                for it in R[key]: put(S(n) + [0, 2, 4, 6, 8, 10, 12][k], it)
        for c in range(4):
            for s in range(4):
                ks = 4*c + s
                put(S(14 + c) + 2 + 2*s, self.L(f"ds_read_b128 a[{64+4*ks}:{64+4*ks+3}], v{vL16} offset:{ks*1024}", ("qx", ks)))
        for j in range(16):
            for s in range(2):
                put(S(30 + j) - 8 + 5*s, self.L(f"ds_read_b128 v[{SXA+8*(j&1)+4*s}:{SXA+8*(j&1)+4*s+3}], v{vL16} offset:{(2*j+s)*1024}", ("px", j, s)))
        spread([it for k in range(10) for it in self.epi_tile(k)], S(0), int(self.epi_end * 20))
        self.epi_done = {}
        for gi in range(NM):
            for it in fill[gi]:
                if hasattr(it, 'epi'): self.epi_done[it.epi] = gi
        for k, (R, f) in self.park.items():
            if R[0] == 'a' and int(R[1:]) < 160 and 0 <= f < 14 and 'nofill' not in self.mode: assert f * 20 > self.epi_done[int(R[1:]) // 16], (k, R, f, self.epi_done)
        put(S(13), self.I(f"s_mov_b32 s{sO+2}, {0 if 'nost' in self.mode else O_GB}\ns_add_u32 s{sObo}, s{sObo}, {8*8*10240}\ns_add_u32 s{sObx}, s{sObx}, {8*8*10240}"))
        spread(self.qx_publish(), S(13) + 5, S(13) + 20 - LA - 2)
        spread(self.q_convert(0), S(13) + 8, S(13) + 15)
        spread(self.q_convert(1), S(13) + 15, S(13) + 20)
        spread(self.q_convert(2) + self.q_convert(3), S(14), S(14) + 19)
        spread(self.q_convert(4) + self.q_convert(5), S(15), S(15) + 19)
        spread(self.q_convert(6) + self.q_convert(7), S(16), S(16) + 19)
        put(S(14), self.I(f"""s_add_u32 s{sWoff}, s{sWoff}, 4096
            s_cmp_eq_u32 s{sIter}, 0
            s_cselect_b32 s{sW+2}, s{sW+2}, 0
            s_cselect_b32 s{sX+2}, s{sX+2}, 0
            s_mov_b32 s{sFlag}, 0"""))
        win = {0: (S(18), S(22)), 1: (S(22), S(26)), 2: (S(26), S(34)), 3: (S(34), S(42) - 2)}
        for g in range(4):
            x1 = self.softmax_x1(g)
            f2, g2 = self.softmax_x2(g)
            xq0 = S(14 + 4*g + 4)
            spread(x1, xq0 + 4, xq0 + 20 - LA - 2)
            spread(f2, xq0 + 22, xq0 + 24)
            spread(g2, xq0 + 28, xq0 + 66)
        for g in range(4):
            q0, q1 = win[g]
            omax, oexp = self.softmax_own(g)
            nm = 9 if g < 2 else 14
            spread(omax, q0, q0 + nm)
            spread(oexp, q0 + nm, q1 - 1)
        for g in range(1, 4):
            def chk(e, g=g):
                lab = e.label("L_nores")
                e(f"s_bitcmp1_b32 s{sFlag}, {g}")
                e(f"s_cbranch_scc0 {lab}")
                e(f"s_mov_b32 s{sSh}, {8*(g-1)}")
                e(f"s_call_b64 s[{sRet}:{sRet+1}], L_rescale")
                e(f"{lab}:")
            pre[S(30 + 4*g)].append(chk)
        I = self.I
        lf = [I(f"v_mov_b32 v{vT0}, v{vLo}"), I(f"v_mov_b32 v{vT1}, v{vLx}"), I(f"v_add_u32 v{vT4}, s{sW4}, v{vL16}"),
              I(f"v_permlane32_swap_b32 v{vLx}, v{vT1}\nv_add_f32 v{vLx}, v{vLx}, v{vT1}"),
              I(f"v_permlane32_swap_b32 v{vLo}, v{vT0}\nv_add_f32 v{vLo}, v{vLo}, v{vT0}"),
              self.L(f"ds_write_b32 v{vT4}, v{vLx} offset:16384", ("pub",)),
              I(f"v_rcp_f32 v{vLo}, v{vLo}")]
        spread(lf, S(42), S(42) + 10)
        def lx2(e):
            e.wait(lds=("lx",))
            e(f"v_add_f32 v{vT4}, v{vT4}, v{vT4+1}\nv_add_f32 v{vT4+2}, v{vT4+2}, v{vT4+3}\nv_add_f32 v{vLx}, v{vT4}, v{vT4+2}\nv_rcp_f32 v{vLx}, v{vLx}")
        put(S(44) + 2, self.L(f"ds_read_b128 v[{vT4}:{vT4+3}], v{vL16} offset:16384", ("lx",)))
        put(S(44) + 10, Item(lx2, 20))
        self.M, self.start, self.fill, self.pre, self.upd, self.postbar, self.cost = M, start, fill, pre, upd, postbar, cost

    def frag_read(self, e, m):
        fr = m["frag"]; b = 160 + 4 * (m["fid"] % NFB)
        tag = ("f", m["fid"])
        if fr[0] == "b128":
            e.lds_op(f"ds_read_b128 a[{b}:{b+3}], v{vA+fr[1]} offset:{fr[2]}", tag)
        else:
            e.lds_op(f"ds_read_b64_tr_b16 a[{b}:{b+1}], v{vA+fr[1]} offset:{fr[2]}", tag)
            e.lds_op(f"ds_read_b64_tr_b16 a[{b+2}:{b+3}], v{vA+fr[1]} offset:{fr[2]+fr[3]}", tag)

    def lookahead(self, e, i):
        NM = len(self.M); m = self.M[i % NM]
        if (i % NM) in self.start:
            n = m["slot"]
            pubs = [t for t in e.lds[e.lds_done:] if t == ("pub",)]
            if "nodma" not in self.mode: e.wait(vm=("tile",) + self.slot_kind(n), lds=(("pub",) if pubs else None))
            if "slot" in self.mode:
                e(f"v_writelane_b32 v{vDx}, s{86 + 2*((n+1)&1)}, {(n + NS - 1) % NS}")
                if "pre" in self.mode: e(f"s_memtime s[{86 + 2*(n&1)}:{87 + 2*(n&1)}]")
            if "nobar" not in self.mode: e("s_barrier")
            if "slot" in self.mode and "pre" not in self.mode: e(f"s_memtime s[{86 + 2*(n&1)}:{87 + 2*(n&1)}]")
            for it in self.postbar[n]: it(e)
        if m["frag"] is not None:
            self.frag_read(e, m)
        for _, t in self.upd[i % NM]: e(t)

    def emit_body(self, e):
        NM = len(self.M)
        assert self.nfrag % NFB == 0, self.nfrag
        for i, m in enumerate(self.M):
            if i in self.start and m["slot"] in (14, 30):
                self.stamp_inloop(e, m["slot"])
            for it in self.pre[i]: it(e)
            l = [("f", m["fid"])]
            if m.get("lds"): l.append(m["lds"])
            if i % self.WSTEP == 0:
                for d in range(1, self.WSTEP):
                    m2 = self.M[(i + d) % NM]
                    l.append(("f", m2["fid"]))
            e.wait(lds=l)
            b = 160 + 4 * (m["fid"] % NFB)
            acc = rr(m["acc"], 16)
            e(f"v_mfma_f32_32x32x16_bf16 {acc}, a[{b}:{b+3}], {m['B']}, {'0' if m['first'] else acc}")
            self.lookahead(e, i + self.LA)
            for it in self.fill[i]: it(e)

    def stamp_inloop(self, e, slot):
        if not self.stamps: return
        k = {14: 0, 30: 1, 46: 2}[slot]
        e(f"{self.clk} s[{sStamp+20+2*k}:{sStamp+21+2*k}]")

    def gen(self, code_bytes=45056, tail=None):
        self.build_body()
        def run(override):
            e = Emit(); e.wait_override = override
            self.nstamp = 0
            self.prologue(e, code_bytes)
            e("L_loop:")
            w0 = len(e.waits)
            self.emit_body(e)
            w1 = len(e.waits)
            return e, w0, w1
        e, w0, w1 = run(None)
        wa = list(e.waits)
        self.emit_body(e)
        wb = e.waits[w1:]
        self.pass1_nops = list(e.noplog)
        def mn(a, b):
            if a is None: return b
            if b is None: return a
            return min(a, b)
        ov = wa[:w0] + [(mn(a[0], b[0]), mn(a[1], b[1])) for a, b in zip(wa[w0:w1], wb)]
        e, w0, w1 = run(ov)
        e.wait_override = None
        self.stamp_inloop(e, 46)
        if self.stamps:
            e("s_waitcnt lgkmcnt(0)")
            e(f"s_cmp_eq_u32 s{sIter}, 0")
            for k in range(6):
                e(f"s_cselect_b32 s{sStamp+4+k}, s{sStamp+20+k}, s{sStamp+4+k}")
                e(f"s_mov_b32 s{sStamp+10+k}, s{sStamp+20+k}")
        if "slot" in self.mode:
            e(f"s_cmp_eq_u32 s{sIter}, 0\ns_cbranch_scc0 L_noc\nv_mov_b32 v{vDo}, v{vDx}\nL_noc:")
        e(f"s_add_u32 s{sIter}, s{sIter}, 1")
        e(f"s_cmp_lt_u32 s{sIter}, 2")
        e("s_cbranch_scc1 L_loop")
        e("s_nop 15")
        for k in range(10):
            for it in self.epi_tile(k): it(e)
        if self.stamps:
            e("s_waitcnt vmcnt(0)")
            e(f"{self.clk} s[{sStamp+16}:{sStamp+17}]")
            e("s_waitcnt lgkmcnt(0)")
            e(f"s_mov_b32 s{sWs+2}, 0x100000\ns_mov_b32 s{sWs+3}, 0x20000")
            if "slot" in self.mode:
                e(f"s_lshl_b32 s{sT0}, s2, 2\ns_add_u32 s{sT0}, s{sT0}, s{sWave}\ns_lshl_b32 s{sT0}, s{sT0}, 9\ns_add_u32 s{sT0}, s{sT0}, 0x10000")
                e(f"v_subrev_u32 v40, {XBASE}, v{vL16}\nv_lshrrev_b32 v40, 2, v40")
                e(f"buffer_store_dword v{vDo}, v40, {srd(sWs)}, s{sT0} offen")
                e(f"buffer_store_dword v{vDx}, v40, {srd(sWs)}, s{sT0} offen offset:256")
            e(f"s_mul_i32 s{sT0}, s2, 72")
            e(f"s_cmp_lg_u32 s{sWave}, 0\ns_cbranch_scc1 L_end")
            e(f"v_mov_b32 v40, s{sT0}")
            e("s_mov_b64 exec, 1")
            for k in range(9):
                e(f"v_mov_b32 v42, s{sStamp+2*k}\nv_mov_b32 v43, s{sStamp+2*k+1}")
                e(f"buffer_store_dwordx2 v[42:43], v40, {srd(sWs)}, 0 offen offset:{8*k}")
                e("s_nop 1")
        e("L_end:\ns_endpgm")
        for g in range(1, 4):
            if "nofill" in self.mode: break
            self.rare_block(e, g, vMCo, vLo, vDo, "o")
            self.rare_block(e, g, vMCx, vLx, vDx, "x")
        e("L_rescale:")
        e("s_waitcnt lgkmcnt(0)")
        e("s_nop 15")
        for i in range(6): e(f"v_accvgpr_write_b32 a{aSave+i}, v{vT0+i}")
        e(f"v_lshrrev_b32 v{vT0}, s{sSh}, v{vDo}\nv_and_b32 v{vT0}, 255, v{vT0}\nv_sub_u32 v{vT0}, 0, v{vT0}")
        e(f"v_lshrrev_b32 v{vT1}, s{sSh}, v{vDx}\nv_and_b32 v{vT1}, 255, v{vT1}\nv_sub_u32 v{vT1}, 0, v{vT1}")
        for i in range(0, 160, 4):
            for q in range(4): e(f"v_accvgpr_read_b32 v{vT4+q}, a{i+q}")
            for q in range(4): e(f"v_ldexp_f32 v{vT4+q}, v{vT4+q}, v{vT0 if i < 128 else vT1}")
            for q in range(4): e(f"v_accvgpr_write_b32 a{i+q}, v{vT4+q}")
        for i in range(6): e(f"v_accvgpr_read_b32 v{vT0+i}, a{aSave+i}")
        e("s_nop 3")
        e(f"s_setpc_b64 s[{sRet}:{sRet+1}]")
        return e

    def prologue(self, e, code_bytes):
        e(f"""
        s_cmp_ge_u32 s2, 256
        s_cbranch_scc1 L_end
        """)
        self.stamp(e)
        e(f"""
        {"s_lshr_b32 s3, s2, 5" if "badmap" in self.mode else "s_and_b32 s3, s2, 7"}
        {"s_and_b32 s4, s2, 31" if "badmap" in self.mode else "s_lshr_b32 s4, s2, 3"}
        s_lshr_b32 s5, s3, 2
        s_mul_i32 s6, s5, 40
        s_add_u32 s56, s0, s6
        s_addc_u32 s57, s1, 0
        s_load_dwordx2 s[{sX}:{sX+1}], s[56:57], 0
        s_load_dwordx2 s[{sK}:{sK+1}], s[56:57], 8
        s_load_dwordx2 s[{sV}:{sV+1}], s[56:57], 16
        s_load_dwordx2 s[{sW}:{sW+1}], s[56:57], 24
        s_load_dwordx2 s[{sO}:{sO+1}], s[56:57], 32
        s_load_dwordx2 s[{sWs}:{sWs+1}], s[0:1], 96
        v_lshrrev_b32 v32, 6, v0
        v_and_b32 v33, 63, v0
        v_lshlrev_b32 v40, 4, v0
        v_readfirstlane_b32 s{sWave}, v32
        """)
        if self.prefetch_code:
            e(f"""
            s_getpc_b64 s[92:93]
            s_mov_b32 s94, {code_bytes}
            s_mov_b32 s95, 0x20000
            s_and_b32 s7, s4, 15
            s_lshl_b32 s7, s7, 12
            """)
            e.vm_op(f"buffer_load_dwordx4 v[44:47], v40, s[92:95], s7 offen", ("code",))
        e(f"""
        {self.map_code()}
        s_lshl_b32 s{sW4096}, s{sWave}, 12
        s_lshl_b32 s{sXE}, s{sWave}, 10
        s_add_u32 s{sXE}, s{sXE}, {XBASE}
        s_lshl_b32 s{sWoff}, s7, 9
        {"s_mov_b32 s%d, 0" % sWoff if "samew" in self.mode else ""}
        s_mov_b32 s{sRd}, 0
        s_mov_b32 s{sWr}, 0
        s_bfe_u32 s{sKap}, s2, 0x20004
        s_lshl_b32 s{sKap}, s{sKap}, 7
        {"" if self.kap else "s_mov_b32 s%d, 0" % sKap}
        s_and_b32 s{sRhoV}, s2, 15
        {"" if self.rot else "s_mov_b32 s%d, 0" % sRhoV}
        s_add_u32 s{sRhoK}, s{sRhoV}, s{sWave}
        s_lshl_b32 s{sRhoV}, s{sRhoV}, 14
        s_lshl_b32 s{sRhoK}, s{sRhoK}, 14
        s_add_u32 s{sRhoK}, s{sRhoK}, s{sKap}
        v_lshrrev_b32 v34, 5, v33          ; hf
        v_and_b32 v35, 31, v33             ; l%32
        v_lshrrev_b32 v41, 3, v33          ; l/8
        v_and_b32 v39, 7, v33              ; l%8
        """)
        for q in range(2):
            e(f"""
            v_add_u32 v36, {8*q}, v41
            v_lshl_add_u32 v36, v32, 5, v36
            v_bfe_u32 v37, v36, 1, 3
            v_xor_b32 v37, v37, v39
            v_lshlrev_b32 v37, 4, v37
            v_subrev_u32 v37, {1024*q}, v37
            v_mul_u32_u24 v38, 896, v36
            v_add_u32 v{vDX+q}, v38, v37
            v_and_b32 v36, 31, v36
            v_lshl_add_u32 v38, v36, 9, v37
            v_accvgpr_write_b32 a{aDK+q}, v38
            """)
        e(f"""
        v_lshl_add_u32 v36, v32, 3, v41
        v_bfe_u32 v37, v36, 1, 3
        v_xor_b32 v37, v37, v39
        v_lshlrev_b32 v37, 4, v37
        v_add_u32 v36, 128, v36
        v_mul_u32_u24 v38, 896, v36
        v_add_u32 v38, v38, v37
        v_accvgpr_write_b32 a{aDE}, v38
        """)
        for q in range(2):
            e(f"""
            v_add_u32 v36, {2*q}, v34
            v_lshlrev_b32 v37, 2, v36
            v_xor_b32 v37, v37, v35
            v_lshlrev_b32 v37, 4, v37
            v_subrev_u32 v37, {1024*q}, v37
            v_lshl_add_u32 v36, v32, 3, v36
            v_lshl_add_u32 v38, v36, 13, v37
            v_xor_b32 v{vDW+q}, s{sKap}, v38
            v_lshl_add_u32 v38, v36, 9, v37
            v_accvgpr_write_b32 a{aDV+q}, v38
            """)
        e(f"""
        v_lshlrev_b32 v48, 4, v33
        s_mul_i32 s{sT1}, s6, 143360
        s_mov_b32 s{sX+2}, 143360
        s_mov_b32 s{sX+3}, 0x20000
        s_mov_b32 s{sW+2}, 3670016
        s_mov_b32 s{sW+3}, 0x20000
        s_mov_b32 s{sO+2}, 3670016
        s_mov_b32 s{sO+3}, 0x20000
        s_waitcnt lgkmcnt(0)
        s_add_u32 s{sX}, s{sX}, s{sT1}
        s_addc_u32 s{sX+1}, s{sX+1}, 0
        """)
        NM = len(self.M)
        carried = [it for gi in range(NM) for it in self.fill[gi] if getattr(it, "tau", 99) < 21 and it.gap < NM]
        early = [it for it in carried if it.tau < 6]
        late = [it for it in carried if it.tau >= 6]
        assert all(it.gap >= NM - self.LA for it in late)
        if early and early[-1].tau < 6 and not late:
            lt = early[-1].tau
            if sum(1 for it in early if it.tau == lt) < (5 if self.tiles[lt][0] == "X" else 4):
                late = [it for it in early if it.tau == lt]; early = [it for it in early if it.tau != lt]
        for it in early:
            if it.tau < 2: it(e)
        WST = 6 * 16384
        e(f"""
        s_and_b32 s58, s3, 3
        s_lshl_b32 s58, s58, 5
        s_add_u32 s58, s58, s4                        ; u_t
        s_mul_i32 s{sT0}, s58, 28672
        s_mul_i32 s{sT1}, s{sWave}, 7168
        s_add_u32 s{sT0}, s{sT0}, s{sT1}
        s_add_u32 m0, s{sT1}, {WST}
        """)
        for q in range(7):
            if q == 4:
                e(f"s_add_u32 s{sT0}, s{sT0}, 4096\ns_add_u32 m0, m0, 4096")
            e.vm_op(f"buffer_load_dwordx4 v48, {srd(sO)}, s{sT0} offen offset:{1024*(q%4)} nt lds", ("wo",))
        for it in early:
            if it.tau >= 2: it(e)
        e(f"""
        v_lshlrev_b32 v36, 3, v40
        v_accvgpr_write_b32 a{aPL}, v36               ; tid*128
        v_lshrrev_b32 v36, 5, v40
        v_lshlrev_b32 v36, 9, v36
        v_and_b32 v37, 16, v40
        v_lshl_add_u32 v36, v37, 3, v36
        v_accvgpr_write_b32 a{aPK}, v36
        v_lshrrev_b32 v36, 6, v40
        v_lshlrev_b32 v36, {13 + 5 - self.hb}, v36
        v_and_b32 v37, 48, v40
        v_lshl_add_u32 v36, v37, 3, v36
        s_lshl_b32 s{sPW}, s{sPW}, 13
        v_add_u32 v36, s{sPW}, v36
        v_accvgpr_write_b32 a{aPW}, v36
        s_lshl_b32 s{sKVoff}, s6, 4
        s_add_u32 s{sKVoff}, s{sKVoff}, s7
        s_lshl_b32 s{sKVoff}, s{sKVoff}, 18
        {"s_mov_b32 s%d, 0" % sKVoff if "samekv" in self.mode else ""}
        s_mov_b32 s{sK+2}, 0x4000000
        s_mov_b32 s{sK+3}, 0x20000
        s_mov_b32 s{sV+2}, 0x4000000
        s_mov_b32 s{sV+3}, 0x20000
        """)
        if self.pfx:
            assert self.hb == 3
            e(f"v_lshlrev_b32 v36, 3, v40\nv_cmp_gt_u32 vcc, {140*128}, v36\nv_mov_b32 v37, 0x7fffffff\nv_cndmask_b32 v36, v37, v36, vcc\ns_mul_i32 s{sT3}, s7, {140*128}")
            e.vm_op(f"buffer_load_dword a{aDummy}, v36, {srd(sX)}, s{sT3} offen{self.xpol}", ("pf",))
        for i, sl in sorted(self.pfw.items(), key=lambda t: t[1]):
            self.pf_item("W", i, None)(e)
        for tau in range(NT):
            k = self.kv_index(tau)
            if k in self.park and self.park[k][1] < 0:
                for it in self.dma_items(tau, "load"): it(e)
        e(f"""
        s_sub_u32 s{sWX}, s{sW4096}, {XBASE}
        s_lshl_b32 s{s2W}, s{sWave}, 1
        s_lshl_b32 s{sW128}, s{sWave}, 7
        s_lshl_b32 s{sW2048}, s{sWave}, 11
        s_lshl_b32 s{sW4}, s{sWave}, 2
        s_mov_b32 s{sC}, 0x{f32bits(math.log2(math.e)/16.0):08x}
        s_mov_b32 s{sIter}, 0
        s_mov_b32 s{sFlag}, 0
        s_mul_i32 s{sObo}, s7, {8*10240}
        s_sub_u32 s{sObo}, s{sObo}, {8*8*10240}
        s_add_u32 s{sObx}, s{sObo}, 8192
        s_add_u32 s{sObo}, s{sObo}, s{sW2048}
        v_bfe_u32 v36, v35, 1, 3
        v_xor_b32 v36, v36, v34
        v_lshlrev_b32 v36, 4, v36
        v_lshl_add_u32 v{vKP}, v35, 7, v36
        v_add_u32 v{vKPX}, {XBASE}, v{vKP}
        v_and_b32 v36, 15, v33                        ; i
        v_lshrrev_b32 v37, 2, v36                     ; rho = i/4
        v_and_b32 v38, 3, v36                         ; cc
        v_bfe_u32 v39, v33, 4, 1                      ; g%2
        v_lshlrev_b32 v42, 6, v37
        v_lshl_add_u32 v42, v39, 5, v42               ; rho*64 + (g%2)*32
        v_lshl_add_u32 v43, v34, 2, v37
        v_lshl_add_u32 v43, v43, 9, v42
        v_lshl_add_u32 v43, v38, 3, v43
        v_xor_b32 v43, s{sW128}, v43
        v_accvgpr_write_b32 a{aTV}, v43
        v_lshl_add_u32 v43, v34, 3, v37
        v_lshl_add_u32 v43, v43, 9, v42
        v_and_b32 v36, 1, v38
        v_lshrrev_b32 v38, 1, v38
        v_lshl_add_u32 v38, v36, 1, v38
        v_lshl_add_u32 v43, v38, 3, v43
        v_accvgpr_write_b32 a{aTW}, v43
        v_lshlrev_b32 v36, 10, v39                    ; (row/16)*1024
        v_lshl_add_u32 v36, v34, 8, v36
        v_and_b32 v37, 15, v33
        v_lshl_add_u32 v{vOo}, v37, 4, v36
        v_add_u32 v{vL16}, {XBASE}, v48
        """)
        e(f"""
        v_lshlrev_b32 v36, 4, v34
        v_lshl_add_u32 v36, v39, 2, v36
        v_bfe_u32 v37, v33, 2, 2
        v_add_u32 v36, v36, v37
        v_mul_u32_u24 v36, 896, v36
        v_and_b32 v37, 3, v33
        v_lshl_add_u32 v36, v37, 3, v36
        s_mul_i32 s{sT1}, s{sWave}, 224
        s_add_u32 s{sT1}, s{sT1}, {WST}
        v_add_u32 v36, s{sT1}, v36
        s_mul_i32 s{sT0}, s5, {WT_BLK}
        s_mul_i32 s{sT1}, s58, 28672
        s_add_u32 s{sT0}, s{sT0}, s{sT1}
        s_mul_i32 s{sT1}, s{sWave}, 7168
        s_add_u32 s{sT0}, s{sT0}, s{sT1}
        s_add_u32 s{sT0}, s{sT0}, {WT_OFF}
        s_mov_b32 s{sWs+2}, {WT_OFF + 2*WT_BLK}
        s_mov_b32 s{sWs+3}, 0x20000
        """)
        NM = len(self.M)
        done = set()
        for i in range(self.start[45], NM):
            for sl, t in self.upd[i]:
                if sl == 0: e(t)
        if self.warm: e(warm_call("A", sWave))
        e.wait(vm=("wo",))
        e("s_barrier")
        for c in range(7):
            e.lds_op(f"ds_read_b64_tr_b16 v[{96+4*c}:{97+4*c}], v36 offset:{32*c}", ("wt", c))
            e.lds_op(f"ds_read_b64_tr_b16 v[{98+4*c}:{99+4*c}], v36 offset:{32*c+8*896}", ("wt", c))
        for c in range(7):
            e.wait(lds=("wt", c))
            if c == 4: e(f"s_add_u32 s{sT0}, s{sT0}, 4096")
            e.vm_op(f"buffer_store_dwordx4 v[{96+4*c}:{99+4*c}], v48, {srd(sWs)}, s{sT0} offen offset:{1024*(c%4)}{self.opol}", ("wst",))
        e(f"""
        s_lshl_b32 s{sT0}, s5, 4
        s_add_u32 s{sT0}, s{sT0}, s6
        s_mul_i32 s{sT0}, s{sT0}, {O_GB}
        s_add_u32 s{sT0}, s{sT0}, {O_OFF}
        s_add_u32 s{sO}, s{sWs}, s{sT0}
        s_addc_u32 s{sO+1}, s{sWs+1}, 0
        s_mov_b32 s{sO+2}, 0
        v_mov_b32 v{vLo}, 0
        v_mov_b32 v{vLx}, 0
        """)
        self.stamp(e)
        for i in range(self.LA):
            self.lookahead(e, i)
        for it in late: it(e)

if __name__ == "__main__":
    from asmlib import *
    import sys
    def out(name, **kw):
        k = K1(stamps=True, **kw)
        e = k.gen()
        print(name, "instructions", e.ninst, "auto nops", e.nops, len(k.pass1_nops))
        for x in k.pass1_nops[:12]: print("   ", x)
        write_file(f"work/{name}.s", [(NAME + "_kernel", 256, 256, LDS1)], [(NAME + "_kernel", e.text(), 512, 256, 102)])
        return k
    k = out("k1")
    print([round(sum(max(32, c) for c in k.cost[k.start[n]:k.start[n]+20])) for n in range(NS)])
    base = "samekv samew nost cyc "
    out("a0", mode=base, kvpol="")
    out("a1", mode=base, kvpol="", LA=5, WSTEP=1)
    out("a2", mode=base + "nodma", kvpol="")
    out("a3", mode=base + "nodma nobar", kvpol="")
    out("a5", mode=base + "nofill", kvpol="")
    out("k1c", mode="cyc")
```

```python
from emit import Emit
from asmlib import warm_call
from gen1 import O_GB, O_OFF, WT_OFF, WT_BLK, srd

LDS2 = 4 * 35 * 1024
NB = 6
def buf(k, f):
    if k < 5: b = 16 + 48 * k + 4 * f; return f"v[{b}:{b+3}]"
    b = 144 + 4 * f; return f"a[{b}:{b+3}]"

class K2:
    def __init__(self, stamps=False, opol="", wpol="", mode="", interleave=False):
        self.stamps = stamps; self.opol = opol; self.wpol = wpol; self.mode = mode; self.interleave = interleave
        self.clk = 's_memtime' if 'cyc' in mode else 's_memrealtime'

    def gen(self, code_bytes=14336):
        e = Emit()
        sO, sWt, sOut, sWs = 8, 12, 16, 52
        so0, so1, sw0, sw1, sWave = 20, 21, 22, 23, 24
        ustep = 4 if self.interleave else 1
        e(f"""
        s_cmp_ge_u32 s2, 256
        s_cbranch_scc1 L2_end
        """)
        if self.stamps: e(f"{self.clk} s[60:61]")
        e(f"""
        s_load_dwordx2 s[{sWs}:{sWs+1}], s[0:1], 96
        s_load_dwordx2 s[{sOut}:{sOut+1}], s[0:1], 80
        {"s_lshr_b32 s3, s2, 5" if "badmap" in self.mode else "s_and_b32 s3, s2, 7"}
        {"s_and_b32 s4, s2, 31" if "badmap" in self.mode else "s_lshr_b32 s4, s2, 3"}
        v_lshrrev_b32 v1, 6, v0
        v_and_b32 v2, 63, v0
        v_lshlrev_b32 v4, 4, v0
        v_readfirstlane_b32 s{sWave}, v1
        s_getpc_b64 s[92:93]
        s_mov_b32 s94, {code_bytes}
        s_mov_b32 s95, 0x20000
        s_and_b32 s7, s4, 3
        s_lshl_b32 s7, s7, 12
        """)
        e.vm_op("buffer_load_dwordx4 v[8:11], v4, s[92:95], s7 offen", ("code",))
        e(f"""
        s_lshr_b32 s5, s3, 2               ; blk
        s_and_b32 s6, s3, 3
        s_lshl_b32 s6, s6, 2
        s_lshr_b32 s7, s4, 3
        s_add_u32 s6, s6, s7               ; b
        s_bfe_u32 s26, s4, 0x10002         ; rh
        s_and_b32 s27, s4, 3               ; ct
        v_lshlrev_b32 v3, 4, v2            ; lane*16
        s_lshl_b32 s28, s5, 4
        s_add_u32 s28, s28, s6             ; gb
        s_mul_i32 s28, s28, {O_GB}
        s_add_u32 s28, s28, {O_OFF}
        s_mul_i32 s29, s5, {WT_BLK}
        s_add_u32 s29, s29, {WT_OFF}
        s_mul_i32 s{so0}, s{sWave}, {10240 * (1 if self.interleave else 32)}
        s_mul_i32 s30, s26, 5120
        s_add_u32 s{so0}, s{so0}, s30
        s_mul_i32 s{sw0}, s{sWave}, {28672 * (1 if self.interleave else 32)}
        s_mul_i32 s30, s27, 7168
        s_add_u32 s{sw0}, s{sw0}, s30
        s_mov_b32 s{sO+2}, {O_GB}
        s_mov_b32 s{sO+3}, 0x20000
        s_mov_b32 s{sWt+2}, {WT_BLK}
        s_mov_b32 s{sWt+3}, 0x20000
        s_waitcnt lgkmcnt(0)
        s_add_u32 s{sO}, s{sWs}, s28
        s_addc_u32 s{sO+1}, s{sWs+1}, 0
        s_add_u32 s{sWt}, s{sWs}, s29
        s_addc_u32 s{sWt+1}, s{sWs+1}, 0
        """)
        def loads(u):
            k = u % NB; L = []
            def mk(f):
                def fn():
                    if f == 0: e(f"s_add_u32 s{so1}, s{so0}, 4096\ns_add_u32 s{sw1}, s{sw0}, 4096")
                    if f < 5:
                        e.vm_op(f"buffer_load_dwordx4 {buf(k, f)}, v3, {srd(sO)}, s{so0 if f < 4 else so1} offen offset:{1024*(f%4)}{self.opol}", ("u", u))
                    else:
                        c = f - 5
                        e.vm_op(f"buffer_load_dwordx4 {buf(k, f)}, v3, {srd(sWt)}, s{sw0 if c < 4 else sw1} offen offset:{1024*(c%4)}{self.wpol}", ("u", u))
                    if f == 11:
                        if "l2" in self.mode and u % 4 == 3: e(f"s_sub_u32 s{so0}, s{so0}, {3*10240*ustep}\ns_sub_u32 s{sw0}, s{sw0}, {3*28672*ustep}")
                        else: e(f"s_add_u32 s{so0}, s{so0}, {10240*ustep}\ns_add_u32 s{sw0}, s{sw0}, {28672*ustep}")
                return fn
            return [mk(f) for f in range(12)]
        for u in range(NB - 1):
            for f in loads(u): f()
        e(warm_call("B", sWave))
        if self.stamps: e(f"{self.clk} s[62:63]")
        for u in range(32):
            k = u % NB
            e.wait(vm=("u", u))
            if u == 0 and self.stamps: e(f"{self.clk} s[64:65]")
            nl = loads(u + NB - 1) if u + NB - 1 < 32 else []
            i = 0
            for c in range(7):
                for r in range(5):
                    t = 4 * (c * 5 + r)
                    if "nomf" not in self.mode or u == 0: e(f"v_mfma_f32_16x16x32_bf16 a[{t}:{t+3}], {buf(k, 5+c)}, {buf(k, r)}, {'0' if u == 0 else f'a[{t}:{t+3}]'}")
                    if i % 3 == 0 and nl and i // 3 < 12: nl[i // 3]()
                    i += 1
        if self.stamps: e(f"{self.clk} s[66:67]")
        e(f"""
        s_mul_i32 s30, s{sWave}, {35*1024}
        v_add_u32 v5, s30, v3
        s_nop 7
        """)
        for t in range(35):
            e.lds_op(f"ds_write_b128 v5, a[{4*t}:{4*t+3}] offset:{1024*t}", ("pw",))
        e(f"""
        s_mov_b32 s31, 4682
        s_mul_i32 s30, s6, {160*1792}
        s_mul_i32 s32, s26, {80*1792}
        s_add_u32 s30, s30, s32
        s_mul_i32 s32, s5, 896
        s_add_u32 s30, s30, s32
        s_mul_i32 s32, s27, 224
        s_add_u32 s30, s30, s32
        s_mov_b32 s{sOut+2}, {16*160*896*2}
        s_mov_b32 s{sOut+3}, 0x20000
        """)
        for k in range(5):
            a, o = 16 + 2 * k, 17 + 2 * k
            e(f"""
            v_add_u32 v6, {256*k}, v0
            v_mul_lo_u32 v7, v6, s31
            v_lshrrev_b32 v7, 16, v7
            v_mul_u32_u24 v8, 14, v7
            v_sub_u32 v8, v6, v8               ; ch
            v_lshrrev_b32 v9, 1, v8            ; c
            v_mul_u32_u24 v9, 5, v9
            v_lshrrev_b32 v10, 4, v7           ; r
            v_add_u32 v9, v9, v10
            v_lshlrev_b32 v9, 10, v9           ; tile*1024
            v_and_b32 v10, 1, v8
            v_lshl_add_u32 v9, v10, 9, v9      ; + (ch%2)*512
            v_and_b32 v10, 15, v7
            v_lshl_add_u32 v{a}, v10, 4, v9
            v_mul_u32_u24 v9, 1792, v7
            v_lshl_add_u32 v{o}, v8, 4, v9
            """)
            if k == 4:
                e(f"""
                v_cmp_gt_u32 vcc, 96, v0
                v_mov_b32 v9, 0x7fffffff
                v_cndmask_b32 v{o}, v9, v{o}, vcc
                v_cndmask_b32 v{a}, 0, v{a}, vcc
                """)
        e.wait_all(vm=False)
        e("s_barrier")
        for k in range(5):
            a = 16 + 2 * k
            e(f"v_add_u32 v{26+k}, {2*35*1024}, v{a}")
        for k in range(5):
            a = 16 + 2 * k; b = 32 + 32 * k
            for w in range(4):
                ar = a if w < 2 else 26 + k
                for h in range(2):
                    e.lds_op(f"ds_read_b128 v[{b+8*w+4*h}:{b+8*w+4*h+3}], v{ar} offset:{(w%2)*35*1024 + 256*h}", ("pr", k))
        for k in range(5):
            o = 17 + 2 * k; b = 32 + 32 * k
            e.wait(lds=("pr", k))
            for i in range(8):
                e(f"v_add_f32 v{b+i}, v{b+i}, v{b+8+i}")
                e(f"v_add_f32 v{b+16+i}, v{b+16+i}, v{b+24+i}")
            for i in range(8): e(f"v_add_f32 v{b+i}, v{b+i}, v{b+16+i}")
            for i in range(4): e(f"v_cvt_pk_bf16_f32 v{b+8+i}, v{b+2*i}, v{b+2*i+1}")
            e.vm_op(f"buffer_store_dwordx4 v[{b+8}:{b+11}], v{o}, {srd(sOut)}, s30 offen", ("st",))
        if self.stamps:
            e("s_waitcnt vmcnt(0)")
            e(f"{self.clk} s[68:69]")
            e("s_waitcnt lgkmcnt(0)")
            e(f"s_mov_b32 s{sWs+2}, 0x100000\ns_mov_b32 s{sWs+3}, 0x20000")
            e(f"s_mul_i32 s30, s2, 40\ns_add_u32 s30, s30, 0x8000")
            e(f"s_cmp_lg_u32 s{sWave}, 0\ns_cbranch_scc1 L2_end")
            e(f"v_mov_b32 v40, s30")
            e("s_mov_b64 exec, 1")
            for k in range(5):
                e(f"v_mov_b32 v42, s{60+2*k}\nv_mov_b32 v43, s{61+2*k}")
                e(f"buffer_store_dwordx2 v[42:43], v40, {srd(sWs)}, 0 offen offset:{8*k}")
                e("s_nop 1")
        e("L2_end:\ns_endpgm")
        return e
```

```python
from build import build
from cfg import *
from asmlib import NAME
W = "work/"
build("cdna_kernels/%s.s" % NAME, BEST)
build(W+"o_b.s", dict(opol=" sc1", hb=1, pfw={0: -31}, epi_end=9))
build(W+"o_c.s", dict(BEST, pfw={}))
```

```python
import sys
from asmlib import *
from gen1 import K1, LDS1
from gen2 import K2, LDS2
def build(path, k1kw={}, k2kw={}, stamps=False):
    k1 = K1(stamps=stamps, **k1kw); e1 = k1.gen()
    k2 = K2(stamps=stamps, **k2kw); e2 = k2.gen()
    print(path, "k1 inst", e1.ninst, "nops", e1.nops, "k2 inst", e2.ninst, "nops", e2.nops)
    write_file(path, [("attn_kernel", 256, 256, LDS1), ("oproj_kernel", 256, 256, LDS2)],
               [("attn_kernel", page_stubs(e1.text(), "A", "L_end"), 512, 256, 102), ("oproj_kernel", page_stubs(e2.text(), "B"), 512, 256, 102)])
def build1(path, kw={}, stamps=False):
    k1 = K1(stamps=stamps, merged=True, **kw); e1 = k1.gen(code_bytes=(68608 if kw.get("fused") else 62464))
    print(path, "inst", e1.ninst, "nops", e1.nops)
    write_file(path, [(NAME + "_kernel", 256, 256, LDS1)], [(NAME + "_kernel", page_stubs(e1.text(), "A", "L_end"), 512, 256, 102)])
    return e1
if __name__ == "__main__":
    build("f1.s", stamps=True)
    build("cdna_kernels/%s.s" % NAME)
```

```python
import math, struct
from emit import Emit
from asmlib import warm_call

def f32bits(x): return struct.unpack("<I", struct.pack("<f", x))[0]

O_GB = 128 * 10240
import os
O_OFF = int(os.environ.get("O_OFF", "0x100000"), 0)
WT_OFF = O_OFF + 32 * O_GB
WT_BLK = 128 * 28 * 1024

NPOS = 8
XBASE = NPOS * 16384
LDS1 = XBASE + 32768
NFB = 8
TTHR = 10.0
NS = 46
NT = 53

sX, sW, sK, sV, sO = 8, 12, 16, 20, 24
sWave, sW4096, sRd, sWr, sWoff, sKVoff, sT0, sT1, sC, sFlag, sIter = 28, 29, 30, 31, 32, 33, 34, 35, 36, 37, 38
sXE, sT2, sObo, sObx, s2W, sW128, sW2048, sW4, sRet, sSh = 39, 40, 41, 42, 43, 44, 45, 46, 48, 50
sWs = 52
sStamp = 60
vDKV, vDW, vDX, vDE = 0, 2, 4, 6
vKP, vTP, vKPX = 7, 16, 17
vA = 8
vOo, vL16 = 18, 19
vMCo, vLo, vMCx, vLx, vDo, vDx = 20, 21, 22, 23, 24, 25
vT0, vT1 = 26, 27
vT4 = 28
X, Y, P0, P1, SXA, SXB = 32, 96, 160, 192, 224, 240
aXO, aXE = 192, 208
aDK, aDV, aTW, aTV, aSave = 224, 226, 228, 229, 232
aDE, aPK, aPL, aPW, aDummy = 230, 231, 238, 239, 240
sT3, sT4, sWX, sPW, sRhoV, sRhoK, sKap = 47, 51, 59, 90, 91, 96, 97
sDbg, sSig = 92, 100

def rr(base, n=4):
    k, i = base[0], int(base[1:])
    return "%s[%d:%d]" % (k, i, i + n - 1)
def srd(s): return "s[%d:%d]" % (s, s + 3)

class Item:
    def __init__(self, f, cost): self.f = f; self.cost = cost
    def __call__(self, e): self.f(e)

def cost_of(text):
    c = 0
    for l in text.split("\n"):
        l = l.strip()
        if not l or l.endswith(":"): continue
        c += 8 if l.startswith(("v_exp", "v_rcp")) else 4
    return c

class K1:
    def __init__(self, stamps=False, kvpol=" nt", wpol="", xpol="", opol="", prefetch_code=True, mode="", LA=6, WSTEP=2, dmacost=16, pfkv=None, pfw=None, pfx=False, pfwpol='', park=None, epi_end=12.5, pfsplit=True, psp=3, rot=False, kap=False, hb=3, pace=None, warm=True, merged=False):
        self.merged = merged
        self.warm = warm
        self.pace = pace
        self.hb = hb
        self.rot = rot; self.kap = kap
        self.psp = psp
        self.park = park or {}; self.epi_end = epi_end; self.pfsplit = pfsplit
        self.pfkv = pfkv or {}; self.pfw = pfw or {}; self.pfx = pfx; self.pfwpol = pfwpol
        self.mode = mode
        self.clk = 's_memtime' if 'cyc' in mode else 's_memrealtime'
        self.stamps = stamps; self.kvpol = kvpol; self.wpol = wpol; self.xpol = xpol; self.opol = opol
        self.prefetch_code = prefetch_code
        self.nstamp = 0
        self.LA = LA; self.WSTEP = WSTEP; self.dmacost = dmacost
        self.tiles = []
        for i in range(7): self.tiles += [("X", i), ("W", 2*i), ("W", 2*i+1)]
        self.tiles += [("K", j) for j in range(16)] + [("V", j) for j in range(16)]
        def cons(t):
            k, j = t
            return {"X": 2*j, "W": j, "K": 14 + j, "V": 30 + j}[k]
        self.cons = [cons(t) for t in self.tiles]
        rel = [self.cons[i] + (1 if self.tiles[i][0] == "X" else 2) for i in range(NT)]
        iss = {}
        for tau in range(NPOS, 3*NT):
            p = tau - NPOS
            r = rel[p % NT] + NS * (p // NT)
            iss[tau] = max(r, iss.get(tau - 1, 0))
        self.issue = [iss[NT + t] - NS for t in range(NT)]
        assert self.issue == [iss[2*NT + t] - 2*NS for t in range(NT)]

    @staticmethod
    def slot_kind(n):
        n %= NS
        if n < 14: return "W", n
        if n < 30: return "K", n - 14
        return "V", n - 30

    def I(self, text): return Item(lambda e: e(text), cost_of(text))
    def L(self, text, tag): return Item(lambda e: e.lds_op(text, tag), 4)

    def kv_index(self, tau):
        kind, j = self.tiles[tau]
        return {"K": j, "V": 16 + j}.get(kind)

    def dma_items(self, tau, part=None):
        kind, j = self.tiles[tau]
        tag = ("tile", kind, j)
        if kind == "W": base, o, d2, vb, s, pol = sWoff, j * 262144, 30720, vDW, sW, self.wpol
        elif kind == "K": base, o, d2, vb, s, pol = sKVoff, (j // 4) * 65536 + (j % 4) * 128, 6144, vDKV, sK, self.kvpol
        elif kind == "V": base, o, d2, vb, s, pol = sKVoff, j * 16384, 0, vDKV, sV, self.kvpol
        else: base, o, d2, vb, s, pol = None, j * 128, 12288, vDX, sX, self.xpol
        adv = f"s_add_u32 s{sWr}, s{sWr}, 16384\ns_and_b32 s{sWr}, s{sWr}, {NPOS*16384-1}"
        if part is not None:
            R = self.park[self.kv_index(tau)][0]
            reg = lambda q: rr(R[0] + str(int(R[1:]) + 4*q))
        if part == "drain":
            def mkd(q):
                def f(e):
                    if q == 0:
                        e(f"s_add_u32 s{sT0}, s{sWr}, s{sWX}")
                        e(f"v_add_u32 v{vDE}, s{sT0}, v{vL16}")
                        e.wait(vm=tag)
                    e.lds_op(f"ds_write_b128 v{vDE}, {reg(q)} offset:{1024*q}", ("pub",))
                    if q == 3: e(adv)
                return Item(f, 8 + (12 if q == 0 else 8 if q == 3 else 0))
            return [mkd(q) for q in range(4)]
        sOf = sT0 if part is None else sT4
        def mk(q):
            def f(e):
                if q == 0:
                    if (kind, j) == ("K", 0): e(f"v_accvgpr_read_b32 v{vDKV}, a{aDK}\nv_accvgpr_read_b32 v{vDKV+1}, a{aDK+1}")
                    if (kind, j) == ("V", 0): e(f"v_accvgpr_read_b32 v{vDKV}, a{aDV}\nv_accvgpr_read_b32 v{vDKV+1}, a{aDV+1}")
                    if part is None: e(f"s_add_u32 m0, s{sWr}, s{sW4096}")
                    if base is None: e(f"s_movk_i32 s{sOf}, {o}")
                    elif kind == "V":
                        e(f"s_add_u32 s{sOf}, s{sRhoV}, {o}\ns_and_b32 s{sOf}, s{sOf}, 0x3ffff\ns_add_u32 s{sOf}, s{sOf}, s{base}")
                    elif kind == "K":
                        e(f"s_add_u32 s{sOf}, s{sRhoK}, {(j // 4) * 65536}\ns_and_b32 s{sOf}, s{sOf}, 0x3ffff\ns_add_u32 s{sOf}, s{sOf}, s{base}")
                        if j % 4: e(f"s_xor_b32 s{sOf}, s{sOf}, {(j % 4) * 128}")
                    else: e(f"s_add_u32 s{sOf}, s{base}, {o}")
                if q == 2 and d2:
                    e(f"s_add_u32 s{sOf}, s{sOf}, {d2}")
                if q == 4:
                    if j == 0: e(f"v_accvgpr_read_b32 v{vDE}, a{aDE}")
                    e(f"s_add_u32 m0, s{sXE}, {4096*j}")
                    e(f"s_movk_i32 s{sT0}, {o}")
                    e.vm_op(f"buffer_load_dwordx4 v{vDE}, {srd(s)}, s{sT0} offen{pol} lds", tag)
                    return
                if part is None:
                    e.vm_op(f"buffer_load_dwordx4 v{vb + (q & 1)}, {srd(s)}, s{sOf} offen offset:{1024*q}{pol} lds", tag)
                else:
                    e.vm_op(f"buffer_load_dwordx4 {reg(q)}, v{vb + (q & 1)}, {srd(s)}, s{sOf} offen offset:{1024*q}{pol}", tag)
                if q == 3:
                    if part is None: e(adv)
                    if (kind, j) == ("V", 15):
                        e(f"s_add_u32 s{sKVoff}, s{sKVoff}, {8*262144}")
                        e(f"s_cmp_eq_u32 s{sIter}, 0\ns_cselect_b32 s{sK+2}, s{sK+2}, 0")
            return Item(f, self.dmacost + (8 if q in (0, 3, 4) else 0))
        return [mk(q) for q in range(5 if kind == "X" else 4)]

    def pf_item(self, kind, i, slot):
        tmp = 36 if slot is None else vDE
        assert slot is None or 15 <= slot % NS <= 39
        if kind == "K": st, s_, base, o, pol = aPK, sK, sKVoff, (i // 2) * 65536 + (i % 2) * 256, self.kvpol
        elif kind == "V": st, s_, base, o, pol = aPL, sV, sKVoff, i * 32768, self.kvpol
        elif kind == "W": st, s_, base, o, pol = aPW, sW, sWoff, i * 16 * 131072, self.pfwpol
        else: st, s_, base, o, pol = aPL, sX, None, i * 32768, self.xpol
        def f(e):
            e(f"v_accvgpr_read_b32 v{tmp}, a{st}")
            if base is None: e(f"s_mov_b32 s{sT3}, {o}")
            else: e(f"s_add_u32 s{sT3}, s{base}, {o}")
            e.vm_op(f"buffer_load_dword a{aDummy}, v{tmp}, {srd(s_)}, s{sT3} offen{pol}", ("pf",))
        return Item(f, 24)

    def map_code(self):
        hb = self.hb
        xb = 3 - hb
        return f"""s_and_b32 s7, s3, {(1 << xb) - 1}
        s_lshl_b32 s7, s7, {hb}
        s_and_b32 s6, s4, {(1 << hb) - 1}
        s_add_u32 s7, s7, s6
        s_bfe_u32 s6, s3, {((2 - xb) << 16) | xb}
        s_lshl_b32 s6, s6, {5 - hb}
        s_lshr_b32 s{sPW}, s4, {hb}
        s_add_u32 s6, s6, s{sPW}"""

    def adv_rd(self): return f"s_add_u32 s{sRd}, s{sRd}, 16384\ns_and_b32 s{sRd}, s{sRd}, {NPOS*16384-1}"

    def addr_updates(self, n):
        kind, j = self.slot_kind(n)
        U = []
        if kind == "K":
            U.append((0, f"v_add_u32 v{vA}, s{sRd}, v{vKP}\n" + self.adv_rd(), None))
            for s in range(1, 4): U.append((s, f"v_xor_b32 v{vA+s}, {32*s}, v{vA}", 0))
            for s in range(4): U.append((4+s, f"v_add_u32 v{vA+4+s}, s{sW4096}, v{vA+s}", s))
        elif kind == "V":
            pre = f"v_accvgpr_read_b32 v{vTP}, a{aTV}\n" if j == 0 else ""
            U.append((0, pre + f"v_add_u32 v{vA}, s{sRd}, v{vTP}\n" + self.adv_rd(), None))
            for t in range(1, 8): U.append((t, f"v_xor_b32 v{vA+t}, {64*t}, v{vA}", 0))
        else:
            pre = f"v_accvgpr_read_b32 v{vTP}, a{aTW}\n" if j == 0 else ""
            if j % 2 == 0:
                pre += f"s_add_u32 s{sT2}, s{sRd}, s{sW4096}\n" + self.adv_rd() + "\n"
            U.append((0, pre + f"v_add_u32 v{vA}, s{sRd}, v{vTP}\n" + self.adv_rd(), None))
            for t in range(1, 4): U.append((t, f"v_xor_b32 v{vA+t}, {64*t}, v{vA}", 0))
            U.append((4, f"v_xor_b32 v{vA+4}, s{sW128}, v{vA}", 0))
            U.append((5, f"v_xor_b32 v{vA+5}, 64, v{vA+4}", 4))
            if j % 2 == 0:
                U.append((6, f"v_add_u32 v{vA+6}, s{sT2}, v{vKP}", 0))
        return U

    def slot_mfmas(self, n):
        kind, j = self.slot_kind(n)
        L = []
        if kind == "W":
            s0 = 2 * (j & 1); i = j // 2
            own = lambda t, s: dict(acc=f"v{Y+16*t}", frag=("tr", (t & 3), (t >> 2) * 256 + s * 8192, 2048), B=rr(f"a{aXO+4*(s0+s)}"), first=(j == 0 and s == 0), lds=("xo", i, s0+s))
            ext = lambda t, s: dict(acc=f"v{SXA+16*t}", frag=("tr", 4 + t, s * 8192, 2048), B=rr(f"a{aXE+4*(s0+s)}"), first=(j == 0 and s == 0), lds=("xe", i, s0+s))
            if j < 13:
                L = [own(t, s) for s in range(2) for t in range(8)] + [ext(t, s) for s in range(2) for t in range(2)]
            else:
                L = [ext(t, s) for t in range(2) for s in range(2)] + [own(t, s) for t in range(8) for s in range(2)]
        elif kind == "K":
            g, c = j // 4, j % 4
            SB = X if g % 2 == 0 else Y
            SX = SXA if g % 2 == 0 else SXB
            L = [dict(acc=f"v{SB+16*T}", frag=("b128", s, T * 4096), B=rr(f"a{4*(4*c+s)}"), first=(c == 0 and s == 0)) for T in range(4) for s in range(4)]
            L += [dict(acc=f"v{SX}", frag=("b128", 4 + s, 0), B=rr(f"a{64+4*(4*c+s)}"), first=(c == 0 and s == 0), lds=(("qx", 4*c+s) if g == 0 else None)) for s in range(4)]
        else:
            g, T = j // 4, j % 4
            PB = [P0, P1, X, Y][g]
            for s in range(2):
                for t in range(8):
                    L.append(dict(acc=f"a{16*t}", frag=("tr", t, s * 8192, 4096), B=rr(f"v{PB+8*T+4*s}"), first=(j == 0 and s == 0)))
                    if t < 2:
                        L.append(dict(acc=f"a{128+16*t}", frag=None, B=rr(f"v{SXA + 8*(j&1) + 4*s}"), first=(j == 0 and s == 0), lds=("px", j, s)))
        return L

    def softmax_own(self, g):
        SB = X if g % 2 == 0 else Y
        PD = [P0, P1, X, Y][g]
        I = self.I; F = []
        F.append(I(f"v_max3_f32 v{vT0}, v{SB}, v{SB+1}, v{SB+2}"))
        F.append(I(f"v_max3_f32 v{vT1}, v{SB+3}, v{SB+4}, v{SB+5}"))
        i = 6; k = 0
        while i < 64:
            t = vT0 if k % 2 == 0 else vT1
            F.append(I(f"v_max3_f32 v{t}, v{t}, v{SB+i}, v{SB+i+1}")); i += 2; k += 1
        F.append(I(f"v_max_f32 v{vT0}, v{vT0}, v{vT1}"))
        F.append(I(f"v_mov_b32 v{vT1}, v{vT0}"))
        F.append(I(f"v_permlane32_swap_b32 v{vT0}, v{vT1}\nv_max_f32 v{vT0}, v{vT0}, v{vT1}"))
        F += self.max_update(g, vMCo, vLo, vDo, "o")
        return F, self.exp_block(SB, 64, PD, vMCo, vLo, g == 0)

    def max_update(self, g, vMC, vL, vD, nm):
        I = self.I
        if g == 0:
            return [I(f"v_mul_f32 v{vMC}, s{sC}, v{vT0}\nv_ceil_f32 v{vMC}, v{vMC}"), I(f"v_mov_b32 v{vD}, 0" if "slot" not in self.mode else "s_nop 0")]
        lab = f"L_rare_{nm}{g}"
        return [I(f"v_fma_f32 v{vT1}, v{vT0}, s{sC}, -v{vMC}\nv_cmp_lt_f32 vcc, 0x{f32bits(TTHR):08x}, v{vT1}\ns_cbranch_vccnz {lab}\n{lab}_back:")]

    def rare_block(self, e, g, vMC, vL, vD, nm):
        lab = f"L_rare_{nm}{g}"
        e(f"""{lab}:
        v_mul_f32 v{vT1}, s{sC}, v{vT0}
        v_ceil_f32 v{vT1}, v{vT1}
        v_max_f32 v{vT1}, v{vT1}, v{vMC}
        v_sub_f32 v{vT0}, v{vT1}, v{vMC}
        v_mov_b32 v{vMC}, v{vT1}
        v_min_f32 v{vT0}, 0x437f0000, v{vT0}
        v_cvt_u32_f32 v{vT0}, v{vT0}
        v_sub_u32 v{vT1}, 0, v{vT0}
        v_ldexp_f32 v{vL}, v{vL}, v{vT1}
        v_lshlrev_b32 v{vT0}, {8*(g-1)}, v{vT0}
        v_or_b32 v{vD}, v{vD}, v{vT0}
        s_bitset1_b32 s{sFlag}, {g}
        s_nop 1
        s_branch {lab}_back""")

    def exp_block(self, SB, n, PD, vMC, vL, first):
        I = self.I; F = []
        npair = n // 2
        def tail(p):
            a, b = SB + 2*p, SB + 2*p + 1
            if first and p == 0:
                r = [I(f"v_add_f32 v{vL}, v{a}, v{b}")]
            else:
                r = [I(f"v_add_f32 v{vL}, v{vL}, v{a}"), I(f"v_add_f32 v{vL}, v{vL}, v{b}")]
            return r + [I(f"v_cvt_pk_bf16_f32 v{PD+p}, v{a}, v{b}")]
        for p in range(npair):
            a, b = SB + 2*p, SB + 2*p + 1
            F.append(I(f"v_fma_f32 v{a}, v{a}, s{sC}, -v{vMC}"))
            F.append(I(f"v_fma_f32 v{b}, v{b}, s{sC}, -v{vMC}"))
            F.append(I(f"v_exp_f32 v{a}, v{a}"))
            if p > 0: F += tail(p - 1)[:1]
            F.append(I(f"v_exp_f32 v{b}, v{b}"))
            if p > 0: F += tail(p - 1)[1:]
        F += tail(npair - 1)
        return F

    def softmax_x1(self, g):
        SX = SXA if g % 2 == 0 else SXB
        I = self.I; F = []
        a, b = vT4, vT4 + 1
        F.append(I(f"v_max3_f32 v{a}, v{SX}, v{SX+1}, v{SX+2}"))
        F.append(I(f"v_max3_f32 v{b}, v{SX+3}, v{SX+4}, v{SX+5}"))
        for k, i in enumerate(range(6, 16, 2)):
            t = a if k % 2 == 0 else b
            F.append(I(f"v_max3_f32 v{t}, v{t}, v{SX+i}, v{SX+i+1}"))
        F.append(I(f"v_max_f32 v{a}, v{a}, v{b}"))
        F.append(I(f"v_mov_b32 v{b}, v{a}"))
        F.append(I(f"v_add_u32 v{vT4+2}, s{sW4}, v{vL16}"))
        F.append(I(f"v_permlane32_swap_b32 v{a}, v{b}\nv_max_f32 v{a}, v{a}, v{b}"))
        for r in range(4):
            F.append(self.L(f"ds_write_b32 v{vT4+2}, v{a} offset:{(4*g+r)*2048}", ("pub",)))
        return F

    def softmax_x2(self, g):
        SX = SXA if g % 2 == 0 else SXB
        I = self.I
        F = [I(f"v_add_u32 v{vT0}, s{sW2048}, v{vL16}"),
             self.L(f"ds_read_b128 v[{vT4}:{vT4+3}], v{vT0} offset:{4*g*2048}", ("st", g))]
        def comb(e):
            e.wait(lds=("st", g))
            e(f"v_max3_f32 v{vT0}, v{vT4}, v{vT4+1}, v{vT4+2}")
            e(f"v_max_f32 v{vT0}, v{vT0}, v{vT4+3}")
        G = [Item(comb, 8)]
        G += self.max_update(g, vMCx, vLx, vDx, "x")
        G += self.exp_block(SX, 16, SX, vMCx, vLx, g == 0)
        G.append(I(f"v_add_u32 v{vT4}, s{sW2048}, v{vL16}"))
        for s in range(2):
            G.append(self.L(f"ds_write_b128 v{vT4}, v[{SX+4*s}:{SX+4*s+3}] offset:{4*g*2048+s*1024}", ("pub",)))
        return F, G

    def q_convert(self, t):
        I = self.I; b = Y + 16*t; F = []
        for i in range(8):
            F.append(I(f"v_cvt_pk_bf16_f32 v{b+i}, v{b+2*i}, v{b+2*i+1}"))
            if i > 0: F.append(I(f"v_accvgpr_write_b32 a{8*t+i-1}, v{b+i-1}"))
        F.append(I(f"v_accvgpr_write_b32 a{8*t+7}, v{b+7}"))
        return F

    def qx_publish(self):
        I = self.I; F = []
        F.append(I(f"v_add_u32 v{vT0}, s{sW4096}, v{vL16}"))
        for t in range(2):
            b = SXA + 16*t
            for i in range(8): F.append(I(f"v_cvt_pk_bf16_f32 v{b+i}, v{b+2*i}, v{b+2*i+1}"))
            for s in range(2):
                F.append(self.L(f"ds_write_b128 v{vT0}, v[{b+4*s}:{b+4*s+3}] offset:{(2*t+s)*1024}", ("pub",)))
        return F

    def epi_tile(self, k):
        I = self.I; F = []
        ab = 16 * k
        vl = vLo if k < 8 else vLx
        tmp = X; dst = X + 16 + 8 * (k & 1)
        tp = k if k < 8 else k - 8
        F.append(I(f"s_xor_b32 s{sT1}, s{s2W}, {tp}\ns_mul_i32 s{sT1}, s{sT1}, 10240\ns_add_u32 s{sT1}, s{sT1}, s{sObo if k < 8 else sObx}"))
        for i in range(16): F.append(I(f"v_accvgpr_read_b32 v{tmp+i}, a{ab+i}"))
        F[-1].epi = k
        for i in range(16): F.append(I(f"v_mul_f32 v{tmp+i}, v{tmp+i}, v{vl}"))
        for s in range(2):
            for i in range(4*s, 4*s+4): F.append(I(f"v_cvt_pk_bf16_f32 v{dst+i}, v{tmp+2*i}, v{tmp+2*i+1}"))
            F.append(Item(lambda e, s=s: e.vm_op(f"buffer_store_dwordx4 v[{dst+4*s}:{dst+4*s+3}], v{vOo}, {srd(sO)}, s{sT1} offen offset:{512*s}{self.opol}", ("ost",)), self.dmacost))
        return F

    def x_reads(self, i):
        R = {}
        for s in range(4):
            if s == 0: R[("o", 0)] = [self.L(f"ds_read_b128 a[{aXO}:{aXO+3}], v{vA+6}", ("xo", i, 0))]
            else: R[("o", s)] = [self.I(f"v_xor_b32 v{vA+7}, {32*s}, v{vA+6}"), self.L(f"ds_read_b128 a[{aXO+4*s}:{aXO+4*s+3}], v{vA+7}", ("xo", i, s))]
            if s == 0: R[("e", 0)] = [self.L(f"ds_read_b128 a[{aXE}:{aXE+3}], v{vKPX} offset:{4096*i}", ("xe", i, 0))]
            else: R[("e", s)] = [self.I(f"v_xor_b32 v{vA+7}, {32*s}, v{vKPX}"), self.L(f"ds_read_b128 a[{aXE+4*s}:{aXE+4*s+3}], v{vA+7} offset:{4096*i}", ("xe", i, s))]
        return R

    def signal(self, e, val):
        lab = e.label("L_nosig")
        e(f"""v_mov_b32 v{vT4}, s{sSig}
        v_mov_b32 v{vT4+1}, {val}
        s_cmp_lg_u32 s{sWave}, 0
        s_cbranch_scc1 {lab}
        s_mov_b64 exec, 1
        buffer_atomic_add v{vT4+1}, v{vT4}, {srd(sDbg)}, 0 offen sc1
        s_mov_b64 exec, -1
        {lab}:""")

    def stamp(self, e):
        if self.stamps:
            e(f"{self.clk} s[{sStamp+2*self.nstamp}:{sStamp+2*self.nstamp+1}]")
            self.nstamp += 1

    def build_body(self):
        LA = self.LA
        M = []; start = []
        for n in range(NS):
            start.append(len(M))
            for m in self.slot_mfmas(n):
                m["slot"] = n; M.append(m)
        NM = len(M)
        assert NM == 920
        fid = 0
        for m in M:
            if m["frag"] is not None:
                m["fid"] = fid; fid += 1
            else:
                m["fid"] = fid - 1
        self.nfrag = fid
        fill = [[] for _ in range(NM)]
        pre = [[] for _ in range(NM)]
        upd = [[] for _ in range(NM)]
        postbar = [[] for _ in range(NS)]
        S = lambda n: start[n % NS] + NM * (n // NS)
        cost = [8 + 4.0 / self.WSTEP] * NM
        for i, m in enumerate(M):
            g = (i - LA) % NM
            if m["frag"] is not None: cost[g] += 4 if m["frag"][0] == "b128" else 8
            if i in start: cost[g] += 24
        for n in range(NS):
            lo, hi = S(n), S(n) + 20
            last = {}
            for i in range(lo, hi):
                if M[i]["frag"] is not None: last[M[i]["frag"][1]] = i
            kind, j = self.slot_kind(n)
            if kind == "W" and j % 2 == 0:
                last[6] = lo + 12 + LA; last[7] = lo + 12 + LA
            first = {}
            for i in range(hi + 19, hi - 1, -1):
                m = M[i % NM]
                if m["frag"] is not None: first[m["frag"][1]] = i
            first[6] = min(first.get(6, 1 << 30), hi) if self.slot_kind(n + 1)[0] == "W" else first.get(6, 1 << 30)
            pos = {}
            used = {}
            for r, text, dep in self.addr_updates(n + 1):
                p = max(last.get(r, lo), pos[dep] if dep is not None else lo)
                while used.get(p, 0) >= 2 and p + 1 < first.get(r, hi + 19): p += 1
                assert p < first.get(r, 1 << 30), (n, r, p, first)
                used[p] = used.get(p, 0) + 1
                pos[r] = p
                upd[p % NM].append(((n + 1) % NS, text))
                cost[(p - LA) % NM] += cost_of(text)
        def put(i, it):
            fill[i % NM].append(it); cost[i % NM] += it.cost
        def spread(items, lo, hi):
            if "nofill" in self.mode: return
            tot = sum(it.cost for it in items)
            base = [cost[g % NM] for g in range(lo, hi)]
            a, b = min(base), max(base) + tot
            for _ in range(40):
                mid = (a + b) / 2
                if sum(max(0, mid - x) for x in base) >= tot: b = mid
                else: a = mid
            room = [max(0, b - x) for x in base]
            cum = 0; k = 0; acc = 0
            for gi in range(hi - lo):
                cum += room[gi]
                while k < len(items) and (acc + items[k].cost / 2 <= cum or gi == hi - lo - 1):
                    acc += items[k].cost; put(lo + gi, items[k]); k += 1
        want = []
        order = list(range(21, NT)) + list(range(21))
        for tau in order:
            g = (self.issue[tau] + (NS if tau < 21 else 0)) * 20 - LA + 2
            k = self.kv_index(tau)
            if self.pace and k is not None and k >= self.pace[0]:
                g = max(g, int(round((self.pace[1] + (k - self.pace[0]) * self.pace[2]) * 20)))
            if want: g = max(g, want[-1])
            want.append(g)
        self.first_gap = {}
        cur = -1000
        for n_, tau in enumerate(order):
            d = self.dma_items(tau, "drain" if self.kv_index(tau) in self.park else None)
            g = max(want[n_], cur)
            later = [w for w in want[n_+1:] + [want[0] + NM] if w > g]
            backlog = sum(1 for w in want[n_:] if w <= g)
            room = (later[0] - g) if backlog <= 1 else max(later[0] - g, 18) / backlog
            sp = max(2, min(4, int(room // len(d))))
            self.first_gap[tau] = g
            deadline = (self.cons[tau] + (NS if tau < 21 else 0)) * 20 - LA
            assert g + sp * len(d) + 25 < deadline, (tau, g, deadline)
            for k, it in enumerate(d):
                gg = g + sp * k
                it.tau = tau; it.gap = gg
                if "nodma" not in self.mode: put(gg, it)
            cur = g + sp * len(d)
        assert cur <= want[0] + NM
        for tau in range(NT):
            k = self.kv_index(tau)
            if k in self.park:
                g0 = int(round(self.park[k][1] * 20))
                assert g0 + 9 + 30 < self.first_gap[tau], (k, g0, self.first_gap[tau])
                assert g0 >= 0 or g0 + NM > self.first_gap[52] + 20
                for q, it in enumerate(self.dma_items(tau, "load")): put(g0 + self.psp * q, it)
        for i, sl in self.pfkv.items():
            put(S(sl % NS) + 7, self.pf_item("K" if i < 8 else "V", i % 8, sl))
        for i, sl in self.pfw.items():
            put(S(sl % NS) + 11, self.pf_item("W", i, sl))
        for i in range(7):
            R = self.x_reads(i); n = 2 * i
            postbar[n] += R[("o", 0)]
            cost[(S(n) - LA) % NM] += 4
            for k, key in enumerate([("o", 1), ("e", 0), ("e", 1), ("o", 2), ("o", 3), ("e", 2), ("e", 3)]):
                for it in R[key]: put(S(n) + [0, 2, 4, 6, 8, 10, 12][k], it)
        for c in range(4):
            for s in range(4):
                ks = 4*c + s
                put(S(14 + c) + 2 + 2*s, self.L(f"ds_read_b128 a[{64+4*ks}:{64+4*ks+3}], v{vL16} offset:{ks*1024}", ("qx", ks)))
        for j in range(16):
            for s in range(2):
                put(S(30 + j) - 8 + 5*s, self.L(f"ds_read_b128 v[{SXA+8*(j&1)+4*s}:{SXA+8*(j&1)+4*s+3}], v{vL16} offset:{(2*j+s)*1024}", ("px", j, s)))
        spread([it for k in range(10) for it in self.epi_tile(k)], S(0), int(self.epi_end * 20))
        self.epi_done = {}
        for gi in range(NM):
            for it in fill[gi]:
                if hasattr(it, 'epi'): self.epi_done[it.epi] = gi
        for k, (R, f) in self.park.items():
            if R[0] == 'a' and int(R[1:]) < 160 and 0 <= f < 14 and 'nofill' not in self.mode: assert f * 20 > self.epi_done[int(R[1:]) // 16], (k, R, f, self.epi_done)
        put(S(13), self.I(f"s_mov_b32 s{sO+2}, {0 if 'nost' in self.mode else O_GB}\ns_add_u32 s{sObo}, s{sObo}, {8*8*10240}\ns_add_u32 s{sObx}, s{sObx}, {8*8*10240}"))
        if self.merged:
            assert self.epi_end <= 13
            put(S(13) + 12, Item(lambda e: e.wait_all(vm=True, lds=False), 4))
            put(S(14) + 1, Item(lambda e: self.signal(e, f"s{sIter}"), 36))
        spread(self.qx_publish(), S(13) + 5, S(13) + 20 - LA - 2)
        spread(self.q_convert(0), S(13) + 8, S(13) + 15)
        spread(self.q_convert(1), S(13) + 15, S(13) + 20)
        spread(self.q_convert(2) + self.q_convert(3), S(14), S(14) + 19)
        spread(self.q_convert(4) + self.q_convert(5), S(15), S(15) + 19)
        spread(self.q_convert(6) + self.q_convert(7), S(16), S(16) + 19)
        put(S(14), self.I(f"""s_add_u32 s{sWoff}, s{sWoff}, 4096
            s_cmp_eq_u32 s{sIter}, 0
            s_cselect_b32 s{sW+2}, s{sW+2}, 0
            s_cselect_b32 s{sX+2}, s{sX+2}, 0
            s_mov_b32 s{sFlag}, 0"""))
        win = {0: (S(18), S(22)), 1: (S(22), S(26)), 2: (S(26), S(34)), 3: (S(34), S(42) - 2)}
        for g in range(4):
            x1 = self.softmax_x1(g)
            f2, g2 = self.softmax_x2(g)
            xq0 = S(14 + 4*g + 4)
            spread(x1, xq0 + 4, xq0 + 20 - LA - 2)
            spread(f2, xq0 + 22, xq0 + 24)
            spread(g2, xq0 + 28, xq0 + 66)
        for g in range(4):
            q0, q1 = win[g]
            omax, oexp = self.softmax_own(g)
            nm = 9 if g < 2 else 14
            spread(omax, q0, q0 + nm)
            spread(oexp, q0 + nm, q1 - 1)
        for g in range(1, 4):
            def chk(e, g=g):
                lab = e.label("L_nores")
                e(f"s_bitcmp1_b32 s{sFlag}, {g}")
                e(f"s_cbranch_scc0 {lab}")
                e(f"s_mov_b32 s{sSh}, {8*(g-1)}")
                e(f"s_call_b64 s[{sRet}:{sRet+1}], L_rescale")
                e(f"{lab}:")
            pre[S(30 + 4*g)].append(chk)
        I = self.I
        lf = [I(f"v_mov_b32 v{vT0}, v{vLo}"), I(f"v_mov_b32 v{vT1}, v{vLx}"), I(f"v_add_u32 v{vT4}, s{sW4}, v{vL16}"),
              I(f"v_permlane32_swap_b32 v{vLx}, v{vT1}\nv_add_f32 v{vLx}, v{vLx}, v{vT1}"),
              I(f"v_permlane32_swap_b32 v{vLo}, v{vT0}\nv_add_f32 v{vLo}, v{vLo}, v{vT0}"),
              self.L(f"ds_write_b32 v{vT4}, v{vLx} offset:16384", ("pub",)),
              I(f"v_rcp_f32 v{vLo}, v{vLo}")]
        spread(lf, S(42), S(42) + 10)
        def lx2(e):
            e.wait(lds=("lx",))
            e(f"v_add_f32 v{vT4}, v{vT4}, v{vT4+1}\nv_add_f32 v{vT4+2}, v{vT4+2}, v{vT4+3}\nv_add_f32 v{vLx}, v{vT4}, v{vT4+2}\nv_rcp_f32 v{vLx}, v{vLx}")
        put(S(44) + 2, self.L(f"ds_read_b128 v[{vT4}:{vT4+3}], v{vL16} offset:16384", ("lx",)))
        put(S(44) + 10, Item(lx2, 20))
        self.M, self.start, self.fill, self.pre, self.upd, self.postbar, self.cost = M, start, fill, pre, upd, postbar, cost

    def frag_read(self, e, m):
        fr = m["frag"]; b = 160 + 4 * (m["fid"] % NFB)
        tag = ("f", m["fid"])
        if fr[0] == "b128":
            e.lds_op(f"ds_read_b128 a[{b}:{b+3}], v{vA+fr[1]} offset:{fr[2]}", tag)
        else:
            e.lds_op(f"ds_read_b64_tr_b16 a[{b}:{b+1}], v{vA+fr[1]} offset:{fr[2]}", tag)
            e.lds_op(f"ds_read_b64_tr_b16 a[{b+2}:{b+3}], v{vA+fr[1]} offset:{fr[2]+fr[3]}", tag)

    def lookahead(self, e, i):
        NM = len(self.M); m = self.M[i % NM]
        if (i % NM) in self.start:
            n = m["slot"]
            pubs = [t for t in e.lds[e.lds_done:] if t == ("pub",)]
            if "nodma" not in self.mode: e.wait(vm=("tile",) + self.slot_kind(n), lds=(("pub",) if pubs else None))
            if "slot" in self.mode:
                e(f"v_writelane_b32 v{vDx}, s{86 + 2*((n+1)&1)}, {(n + NS - 1) % NS}")
                if "pre" in self.mode: e(f"s_memtime s[{86 + 2*(n&1)}:{87 + 2*(n&1)}]")
            if "nobar" not in self.mode: e("s_barrier")
            if "slot" in self.mode and "pre" not in self.mode: e(f"s_memtime s[{86 + 2*(n&1)}:{87 + 2*(n&1)}]")
            for it in self.postbar[n]: it(e)
        if m["frag"] is not None:
            self.frag_read(e, m)
        for _, t in self.upd[i % NM]: e(t)

    def emit_body(self, e):
        NM = len(self.M)
        assert self.nfrag % NFB == 0, self.nfrag
        for i, m in enumerate(self.M):
            if i in self.start and m["slot"] in (14, 30):
                self.stamp_inloop(e, m["slot"])
            for it in self.pre[i]: it(e)
            l = [("f", m["fid"])]
            if m.get("lds"): l.append(m["lds"])
            if i % self.WSTEP == 0:
                for d in range(1, self.WSTEP):
                    m2 = self.M[(i + d) % NM]
                    l.append(("f", m2["fid"]))
            e.wait(lds=l)
            b = 160 + 4 * (m["fid"] % NFB)
            acc = rr(m["acc"], 16)
            e(f"v_mfma_f32_32x32x16_bf16 {acc}, a[{b}:{b+3}], {m['B']}, {'0' if m['first'] else acc}")
            self.lookahead(e, i + self.LA)
            for it in self.fill[i]: it(e)

    def stamp_inloop(self, e, slot):
        if not self.stamps: return
        k = {14: 0, 30: 1, 46: 2}[slot]
        e(f"{self.clk} s[{sStamp+20+2*k}:{sStamp+21+2*k}]")

    def gen(self, code_bytes=45056, tail=None):
        self.build_body()
        def run(override):
            e = Emit(); e.wait_override = override
            self.nstamp = 0
            self.prologue(e, code_bytes)
            e("L_loop:")
            w0 = len(e.waits)
            self.emit_body(e)
            w1 = len(e.waits)
            return e, w0, w1
        e, w0, w1 = run(None)
        wa = list(e.waits)
        self.emit_body(e)
        wb = e.waits[w1:]
        self.pass1_nops = list(e.noplog)
        def mn(a, b):
            if a is None: return b
            if b is None: return a
            return min(a, b)
        ov = wa[:w0] + [(mn(a[0], b[0]), mn(a[1], b[1])) for a, b in zip(wa[w0:w1], wb)]
        e, w0, w1 = run(ov)
        e.wait_override = None
        self.stamp_inloop(e, 46)
        if self.stamps:
            e("s_waitcnt lgkmcnt(0)")
            e(f"s_cmp_eq_u32 s{sIter}, 0")
            for k in range(6):
                e(f"s_cselect_b32 s{sStamp+4+k}, s{sStamp+20+k}, s{sStamp+4+k}")
                e(f"s_mov_b32 s{sStamp+10+k}, s{sStamp+20+k}")
        if "slot" in self.mode:
            e(f"s_cmp_eq_u32 s{sIter}, 0\ns_cbranch_scc0 L_noc\nv_mov_b32 v{vDo}, v{vDx}\nL_noc:")
        e(f"s_add_u32 s{sIter}, s{sIter}, 1")
        e(f"s_cmp_lt_u32 s{sIter}, 2")
        e("s_cbranch_scc1 L_loop")
        if self.merged:
            self.tail(e)
        else:
            e("s_nop 15")
            for k in range(10):
                for it in self.epi_tile(k): it(e)
        if self.stamps:
            e("s_waitcnt vmcnt(0)")
            e(f"{self.clk} s[{sStamp+16}:{sStamp+17}]")
            e("s_waitcnt lgkmcnt(0)")
            e(f"s_mov_b32 s{sWs+2}, 0x100000\ns_mov_b32 s{sWs+3}, 0x20000")
            if "slot" in self.mode:
                e(f"s_lshl_b32 s{sT0}, s2, 2\ns_add_u32 s{sT0}, s{sT0}, s{sWave}\ns_lshl_b32 s{sT0}, s{sT0}, 9\ns_add_u32 s{sT0}, s{sT0}, 0x10000")
                e(f"v_subrev_u32 v40, {XBASE}, v{vL16}\nv_lshrrev_b32 v40, 2, v40")
                e(f"buffer_store_dword v{vDo}, v40, {srd(sWs)}, s{sT0} offen")
                e(f"buffer_store_dword v{vDx}, v40, {srd(sWs)}, s{sT0} offen offset:256")
            NST = 12 if self.merged else 9
            e(f"s_mul_i32 s{sT0}, s2, {8*NST}")
            e(f"s_cmp_lg_u32 s{sWave}, 0\ns_cbranch_scc1 L_end")
            e(f"v_mov_b32 v40, s{sT0}")
            e("s_mov_b64 exec, 1")
            for k, sr in enumerate([0, 1, 2, 3, 4, 5, 6, 7, 10, 11, 12, 8] if self.merged else range(9)):
                e(f"v_mov_b32 v42, s{sStamp+2*sr}\nv_mov_b32 v43, s{sStamp+2*sr+1}")
                e(f"buffer_store_dwordx2 v[42:43], v40, {srd(sWs)}, 0 offen offset:{8*k}")
                e("s_nop 1")
        e("L_end:\ns_endpgm")
        if self.merged: self.tail_slow(e)
        for g in range(1, 4):
            if "nofill" in self.mode: break
            self.rare_block(e, g, vMCo, vLo, vDo, "o")
            self.rare_block(e, g, vMCx, vLx, vDx, "x")
        e("L_rescale:")
        e("s_waitcnt lgkmcnt(0)")
        e("s_nop 15")
        for i in range(6): e(f"v_accvgpr_write_b32 a{aSave+i}, v{vT0+i}")
        e(f"v_lshrrev_b32 v{vT0}, s{sSh}, v{vDo}\nv_and_b32 v{vT0}, 255, v{vT0}\nv_sub_u32 v{vT0}, 0, v{vT0}")
        e(f"v_lshrrev_b32 v{vT1}, s{sSh}, v{vDx}\nv_and_b32 v{vT1}, 255, v{vT1}\nv_sub_u32 v{vT1}, 0, v{vT1}")
        for i in range(0, 160, 4):
            for q in range(4): e(f"v_accvgpr_read_b32 v{vT4+q}, a{i+q}")
            for q in range(4): e(f"v_ldexp_f32 v{vT4+q}, v{vT4+q}, v{vT0 if i < 128 else vT1}")
            for q in range(4): e(f"v_accvgpr_write_b32 a{i+q}, v{vT4+q}")
        for i in range(6): e(f"v_accvgpr_read_b32 v{vT0+i}, a{aSave+i}")
        e("s_nop 3")
        e(f"s_setpc_b64 s[{sRet}:{sRet+1}]")
        return e

    def obuf(self, k, f):
        if k < 4: b = 64 + 48 * k + 4 * f; return f"v[{b}:{b+3}]"
        b = 160 + 48 * (k - 4) + 4 * f; return f"a[{b}:{b+3}]"

    def poll_check(self, e, which):
        vP = 2 + which
        if which == 0:
            e(f"v_and_b32 v{vP}, 255, v{vP}")
        else:
            e(f"v_lshrrev_b32 v{vP}, 8, v{vP}")
        e(f"v_cmp_le_u32 vcc, 8, v{vP}")
        e(f"s_cmp_eq_u64 vcc, -1")

    def poll_load(self, e, which):
        e.vm_op(f"buffer_load_dword v{2+which}, v{4+which}, {srd(sDbg)}, 0 offen sc1", ("poll", which))

    def tail_slow(self, e):
        for which in range(2):
            e(f"""L_spin{which}:
            s_mov_b32 s{sT3}, 0
            L_spin{which}_l:
            s_sleep 2""")
            e(f"buffer_load_dword v{2+which}, v{4+which}, {srd(sDbg)}, 0 offen sc1")
            e("s_waitcnt vmcnt(0)")
            self.poll_check(e, which)
            e(f"""s_cbranch_scc1 L_spin{which}_back
            s_add_u32 s{sT3}, s{sT3}, 1
            s_cmp_lt_u32 s{sT3}, 0x200000
            s_cbranch_scc1 L_spin{which}_l
            s_branch L_spin{which}_back""")

    def tail(self, e):
        NB = 6
        sO2, sWt, sOut = sX, sW, sK
        so0, so1, sw0, sw1, sRh, sCt, sB2, sOb = sRd, sWr, sWoff, sKVoff, sXE, sT2, sW128, sW4
        vLn = 6
        st = lambda k: e(f"{self.clk} s[{sStamp+2*k}:{sStamp+2*k+1}]") if self.stamps else None
        e(f"""
        s_load_dwordx2 s[{sOut}:{sOut+1}], s[0:1], 80
        v_subrev_u32 v{vLn}, {XBASE}, v{vL16}
        s_and_b32 s{sB2}, s3, 3
        s_lshl_b32 s{sB2}, s{sB2}, 2
        s_lshr_b32 s{sT0}, s4, 3
        s_add_u32 s{sB2}, s{sB2}, s{sT0}
        s_lshl_b32 s{sT0}, s5, 6
        v_bfe_u32 v4, v{vLn}, 2, 6
        v_and_b32 v4, 60, v4
        v_add_u32 v4, s{sT0}, v4
        s_lshl_b32 s{sT3}, s{sB2}, 2
        s_add_u32 s{sT3}, s{sT3}, s{sT0}
        v_mov_b32 v5, s{sT3}
        """)
        self.poll_load(e, 0)
        e(f"""
        s_bfe_u32 s{sRh}, s4, 0x10002
        s_and_b32 s{sCt}, s4, 3
        s_lshl_b32 s{sT0}, s5, 4
        s_add_u32 s{sT0}, s{sT0}, s{sB2}
        s_mul_i32 s{sT0}, s{sT0}, {O_GB}
        s_add_u32 s{sT0}, s{sT0}, {O_OFF}
        s_add_u32 s{sO2}, s{sWs}, s{sT0}
        s_addc_u32 s{sO2+1}, s{sWs+1}, 0
        s_mov_b32 s{sO2+2}, {O_GB}
        s_mul_i32 s{sT0}, s5, {WT_BLK}
        s_add_u32 s{sT0}, s{sT0}, {WT_OFF}
        s_add_u32 s{sWt}, s{sWs}, s{sT0}
        s_addc_u32 s{sWt+1}, s{sWs+1}, 0
        s_mov_b32 s{sWt+2}, {WT_BLK}
        s_mul_i32 s{so0}, s{sWave}, {10240 * 16}
        s_mul_i32 s{sT0}, s{sRh}, 5120
        s_add_u32 s{so0}, s{so0}, s{sT0}
        s_mul_i32 s{sw0}, s{sWave}, {28672 * 16}
        s_mul_i32 s{sT0}, s{sCt}, 7168
        s_add_u32 s{sw0}, s{sw0}, s{sT0}
        s_mul_i32 s{sOb}, s{sB2}, {160*1792}
        s_mul_i32 s{sT0}, s{sRh}, {80*1792}
        s_add_u32 s{sOb}, s{sOb}, s{sT0}
        s_mul_i32 s{sT0}, s5, 896
        s_add_u32 s{sOb}, s{sOb}, s{sT0}
        s_mul_i32 s{sT0}, s{sCt}, 224
        s_add_u32 s{sOb}, s{sOb}, s{sT0}
        s_waitcnt lgkmcnt(0)
        s_mov_b32 s{sOut+2}, {16*160*896*2}
        """)
        e.lds_done = len(e.lds)
        def loads(u):
            k = u % NB
            def mk(f):
                def fn():
                    if f == 0: e(f"s_add_u32 s{so1}, s{so0}, 4096\ns_add_u32 s{sw1}, s{sw0}, 4096")
                    if f < 5:
                        e.vm_op(f"buffer_load_dwordx4 {self.obuf(k, f)}, v{vLn}, {srd(sO2)}, s{so0 if f < 4 else so1} offen offset:{1024*(f%4)} sc1", ("u", u))
                    else:
                        c = f - 5
                        e.vm_op(f"buffer_load_dwordx4 {self.obuf(k, f)}, v{vLn}, {srd(sWt)}, s{sw0 if c < 4 else sw1} offen offset:{1024*(c%4)} sc1", ("u", u))
                    if f == 11:
                        n = 49 if u == 15 else 1
                        e(f"s_add_u32 s{so0}, s{so0}, {10240*n}\ns_add_u32 s{sw0}, s{sw0}, {28672*n}")
                return fn
            return [mk(f) for f in range(12)]
        epi = [it for k in range(10) for it in self.epi_tile(k)]
        n0 = len(epi) * 3 // 10
        for it in epi[:n0]: it(e)
        e.wait(vm=("poll", 0))
        self.poll_check(e, 0)
        e("s_cbranch_scc0 L_spin0\nL_spin0_back:")
        pl = [f for u in range(3) for f in loads(u)]
        rest = epi[n0:]
        for i, it in enumerate(rest):
            it(e)
            if i % 8 == 0 and pl: pl.pop(0)()
        for f in pl: f()
        e.wait_all(vm=True, lds=False)
        e("s_barrier")
        self.signal(e, 256)
        st(10)
        for u in range(3, NB - 1):
            for f in loads(u): f()
        prep = []
        vTid = 7
        prep.append(f"v_lshrrev_b32 v{vTid}, 4, v{vLn}\nv_lshl_add_u32 v{vTid}, s{sWave}, 6, v{vTid}\ns_mov_b32 s{sT4}, 4682")
        for k in range(5):
            a, o = 16 + 2 * k, 17 + 2 * k
            prep += f"""v_add_u32 v8, {256*k}, v{vTid}
            v_mul_lo_u32 v9, v8, s{sT4}
            v_lshrrev_b32 v9, 16, v9
            v_mul_u32_u24 v10, 14, v9
            v_sub_u32 v10, v8, v10
            v_lshrrev_b32 v11, 1, v10
            v_mul_u32_u24 v11, 5, v11
            v_lshrrev_b32 v12, 4, v9
            v_add_u32 v11, v11, v12
            v_lshlrev_b32 v11, 10, v11
            v_and_b32 v12, 1, v10
            v_lshl_add_u32 v11, v12, 9, v11
            v_and_b32 v12, 15, v9
            v_lshl_add_u32 v{a}, v12, 4, v11
            v_mul_u32_u24 v11, 1792, v9
            v_lshl_add_u32 v{o}, v10, 4, v11""".split("\n")
            if k == 4:
                prep.append(f"v_cmp_gt_u32 vcc, 96, v{vTid}\nv_mov_b32 v11, 0x7ffffff0\ns_nop 0\nv_cndmask_b32 v{o}, v11, v{o}, vcc\nv_cndmask_b32 v{a}, 0, v{a}, vcc")
            prep.append(f"v_add_u32 v{26+k}, {2*35*1024}, v{a}")
        prep.append(f"s_mul_i32 s{sT0}, s{sWave}, {35*1024}\nv_add_u32 v13, s{sT0}, v{vLn}")
        if "slot" in self.mode: prep = [f"v_mov_b32 v14, v{vDo}\nv_mov_b32 v15, v{vDx}"] + prep
        for u in range(32):
            k = u % NB
            if u == 11:
                e.wait(vm=("poll", 1))
                self.poll_check(e, 1)
                e("s_cbranch_scc0 L_spin1\nL_spin1_back:")
            e.wait(vm=("u", u))
            nl = loads(u + NB - 1) if u + NB - 1 < 32 else []
            i = 0
            for c in range(7):
                for r in range(5):
                    t = 4 * (c * 5 + r)
                    e(f"v_mfma_f32_16x16x32_bf16 a[{t}:{t+3}], {self.obuf(k, 5+c)}, {self.obuf(k, r)}, {'0' if u == 0 else f'a[{t}:{t+3}]'}")
                    if i % 3 == 0 and nl and i // 3 < 12: nl[i // 3]()
                    if i % 3 == 1 and prep and u >= 13: e(prep.pop(0))
                    if u == 31 and i >= 8:
                        tt = i - 8
                        e.lds_op(f"ds_write_b128 v13, a[{4*tt}:{4*tt+3}] offset:{1024*tt}", ("pw",))
                    i += 1
            if u == 6: self.poll_load(e, 1)
        assert not prep
        st(11)
        for tt in range(27, 35):
            e.lds_op(f"ds_write_b128 v13, a[{4*tt}:{4*tt+3}] offset:{1024*tt}", ("pw",))
        e.wait_all(vm=False)
        e("s_barrier")
        for k in range(5):
            a = 16 + 2 * k; b = 32 + 32 * k
            for w in range(4):
                ar = a if w < 2 else 26 + k
                for h in range(2):
                    e.lds_op(f"ds_read_b128 v[{b+8*w+4*h}:{b+8*w+4*h+3}], v{ar} offset:{(w%2)*35*1024 + 256*h}", ("pr", k))
        for k in range(5):
            o = 17 + 2 * k; b = 32 + 32 * k
            e.wait(lds=("pr", k))
            for i in range(8):
                e(f"v_add_f32 v{b+i}, v{b+i}, v{b+8+i}")
                e(f"v_add_f32 v{b+16+i}, v{b+16+i}, v{b+24+i}")
            for i in range(8): e(f"v_add_f32 v{b+i}, v{b+i}, v{b+16+i}")
            for i in range(4): e(f"v_cvt_pk_bf16_f32 v{b+8+i}, v{b+2*i}, v{b+2*i+1}")
            e.vm_op(f"buffer_store_dwordx4 v[{b+8}:{b+11}], v{o}, {srd(sOut)}, s{sOb} offen", ("st",))
        st(12)
        if "slot" in self.mode: e(f"v_mov_b32 v{vDo}, v14\nv_mov_b32 v{vDx}, v15\nv_add_u32 v{vL16}, {XBASE}, v{vLn}")

    def prologue(self, e, code_bytes):
        e(f"""
        s_cmp_ge_u32 s2, 256
        s_cbranch_scc1 L_end
        """)
        self.stamp(e)
        e(f"""
        {"s_lshr_b32 s3, s2, 5" if "badmap" in self.mode else "s_and_b32 s3, s2, 7"}
        {"s_and_b32 s4, s2, 31" if "badmap" in self.mode else "s_lshr_b32 s4, s2, 3"}
        s_lshr_b32 s5, s3, 2
        s_mul_i32 s6, s5, 40
        s_add_u32 s56, s0, s6
        s_addc_u32 s57, s1, 0
        s_load_dwordx2 s[{sX}:{sX+1}], s[56:57], 0
        s_load_dwordx2 s[{sK}:{sK+1}], s[56:57], 8
        s_load_dwordx2 s[{sV}:{sV+1}], s[56:57], 16
        s_load_dwordx2 s[{sW}:{sW+1}], s[56:57], 24
        s_load_dwordx2 s[{sO}:{sO+1}], s[56:57], 32
        s_load_dwordx2 s[{sWs}:{sWs+1}], s[0:1], 96
        s_load_dwordx2 s[98:99], s[0:1], 88
        v_lshrrev_b32 v32, 6, v0
        v_and_b32 v33, 63, v0
        v_lshlrev_b32 v40, 4, v0
        v_readfirstlane_b32 s{sWave}, v32
        """)
        if self.prefetch_code:
            e(f"""
            s_getpc_b64 s[92:93]
            s_mov_b32 s94, {code_bytes}
            s_mov_b32 s95, 0x20000
            s_and_b32 s7, s4, 15
            s_lshl_b32 s7, s7, 12
            """)
            e.vm_op(f"buffer_load_dwordx4 v[44:47], v40, s[92:95], s7 offen", ("code",))
        e(f"""
        {self.map_code()}
        s_lshl_b32 s{sW4096}, s{sWave}, 12
        s_lshl_b32 s{sXE}, s{sWave}, 10
        s_add_u32 s{sXE}, s{sXE}, {XBASE}
        s_lshl_b32 s{sWoff}, s7, 9
        {"s_mov_b32 s%d, 0" % sWoff if "samew" in self.mode else ""}
        s_mov_b32 s{sRd}, 0
        s_mov_b32 s{sWr}, 0
        s_bfe_u32 s{sKap}, s2, 0x20004
        s_lshl_b32 s{sKap}, s{sKap}, 7
        {"" if self.kap else "s_mov_b32 s%d, 0" % sKap}
        s_and_b32 s{sRhoV}, s2, 15
        {"" if self.rot else "s_mov_b32 s%d, 0" % sRhoV}
        s_add_u32 s{sRhoK}, s{sRhoV}, s{sWave}
        s_lshl_b32 s{sRhoV}, s{sRhoV}, 14
        s_lshl_b32 s{sRhoK}, s{sRhoK}, 14
        s_add_u32 s{sRhoK}, s{sRhoK}, s{sKap}
        v_lshrrev_b32 v34, 5, v33          ; hf
        v_and_b32 v35, 31, v33             ; l%32
        v_lshrrev_b32 v41, 3, v33          ; l/8
        v_and_b32 v39, 7, v33              ; l%8
        """)
        for q in range(2):
            e(f"""
            v_add_u32 v36, {8*q}, v41
            v_lshl_add_u32 v36, v32, 5, v36
            v_bfe_u32 v37, v36, 1, 3
            v_xor_b32 v37, v37, v39
            v_lshlrev_b32 v37, 4, v37
            v_subrev_u32 v37, {1024*q}, v37
            v_mul_u32_u24 v38, 896, v36
            v_add_u32 v{vDX+q}, v38, v37
            v_and_b32 v36, 31, v36
            v_lshl_add_u32 v38, v36, 9, v37
            v_accvgpr_write_b32 a{aDK+q}, v38
            """)
        e(f"""
        v_lshl_add_u32 v36, v32, 3, v41
        v_bfe_u32 v37, v36, 1, 3
        v_xor_b32 v37, v37, v39
        v_lshlrev_b32 v37, 4, v37
        v_add_u32 v36, 128, v36
        v_mul_u32_u24 v38, 896, v36
        v_add_u32 v38, v38, v37
        v_accvgpr_write_b32 a{aDE}, v38
        """)
        for q in range(2):
            e(f"""
            v_add_u32 v36, {2*q}, v34
            v_lshlrev_b32 v37, 2, v36
            v_xor_b32 v37, v37, v35
            v_lshlrev_b32 v37, 4, v37
            v_subrev_u32 v37, {1024*q}, v37
            v_lshl_add_u32 v36, v32, 3, v36
            v_lshl_add_u32 v38, v36, 13, v37
            v_xor_b32 v{vDW+q}, s{sKap}, v38
            v_lshl_add_u32 v38, v36, 9, v37
            v_accvgpr_write_b32 a{aDV+q}, v38
            """)
        e(f"""
        v_lshlrev_b32 v48, 4, v33
        s_mul_i32 s{sT1}, s6, 143360
        s_mov_b32 s{sX+2}, 143360
        s_mov_b32 s{sX+3}, 0x20000
        s_mov_b32 s{sW+2}, 3670016
        s_mov_b32 s{sW+3}, 0x20000
        s_mov_b32 s{sO+2}, 3670016
        s_mov_b32 s{sO+3}, 0x20000
        s_waitcnt lgkmcnt(0)
        s_add_u32 s{sX}, s{sX}, s{sT1}
        s_addc_u32 s{sX+1}, s{sX+1}, 0
        """)
        NM = len(self.M)
        carried = [it for gi in range(NM) for it in self.fill[gi] if getattr(it, "tau", 99) < 21 and it.gap < NM]
        early = [it for it in carried if it.tau < 6]
        late = [it for it in carried if it.tau >= 6]
        assert all(it.gap >= NM - self.LA for it in late)
        if early and early[-1].tau < 6 and not late:
            lt = early[-1].tau
            if sum(1 for it in early if it.tau == lt) < (5 if self.tiles[lt][0] == "X" else 4):
                late = [it for it in early if it.tau == lt]; early = [it for it in early if it.tau != lt]
        for it in early:
            if it.tau < 2: it(e)
        WST = 6 * 16384
        e(f"""
        s_and_b32 s58, s3, 3
        s_lshl_b32 s58, s58, 5
        s_add_u32 s58, s58, s4                        ; u_t
        s_mul_i32 s{sT0}, s58, 28672
        s_mul_i32 s{sT1}, s{sWave}, 7168
        s_add_u32 s{sT0}, s{sT0}, s{sT1}
        s_add_u32 m0, s{sT1}, {WST}
        """)
        for q in range(7):
            if q == 4:
                e(f"s_add_u32 s{sT0}, s{sT0}, 4096\ns_add_u32 m0, m0, 4096")
            e.vm_op(f"buffer_load_dwordx4 v48, {srd(sO)}, s{sT0} offen offset:{1024*(q%4)} nt lds", ("wo",))
        for it in early:
            if it.tau >= 2: it(e)
        e(f"""
        v_lshlrev_b32 v36, 3, v40
        v_accvgpr_write_b32 a{aPL}, v36               ; tid*128
        v_lshrrev_b32 v36, 5, v40
        v_lshlrev_b32 v36, 9, v36
        v_and_b32 v37, 16, v40
        v_lshl_add_u32 v36, v37, 3, v36
        v_accvgpr_write_b32 a{aPK}, v36
        v_lshrrev_b32 v36, 6, v40
        v_lshlrev_b32 v36, {13 + 5 - self.hb}, v36
        v_and_b32 v37, 48, v40
        v_lshl_add_u32 v36, v37, 3, v36
        s_lshl_b32 s{sPW}, s{sPW}, 13
        v_add_u32 v36, s{sPW}, v36
        v_accvgpr_write_b32 a{aPW}, v36
        s_lshl_b32 s{sKVoff}, s6, 4
        s_add_u32 s{sKVoff}, s{sKVoff}, s7
        s_lshl_b32 s{sKVoff}, s{sKVoff}, 18
        {"s_mov_b32 s%d, 0" % sKVoff if "samekv" in self.mode else ""}
        s_mov_b32 s{sK+2}, 0x4000000
        s_mov_b32 s{sK+3}, 0x20000
        s_mov_b32 s{sV+2}, 0x4000000
        s_mov_b32 s{sV+3}, 0x20000
        """)
        if self.pfx:
            assert self.hb == 3
            e(f"v_lshlrev_b32 v36, 3, v40\nv_cmp_gt_u32 vcc, {140*128}, v36\nv_mov_b32 v37, 0x7ffffff0\nv_cndmask_b32 v36, v37, v36, vcc\ns_mul_i32 s{sT3}, s7, {140*128}")
            e.vm_op(f"buffer_load_dword a{aDummy}, v36, {srd(sX)}, s{sT3} offen{self.xpol}", ("pf",))
        for i, sl in sorted(self.pfw.items(), key=lambda t: t[1]):
            self.pf_item("W", i, None)(e)
        for tau in range(NT):
            k = self.kv_index(tau)
            if k in self.park and self.park[k][1] < 0:
                for it in self.dma_items(tau, "load"): it(e)
        e(f"""
        s_sub_u32 s{sWX}, s{sW4096}, {XBASE}
        s_lshl_b32 s{s2W}, s{sWave}, 1
        s_lshl_b32 s{sW128}, s{sWave}, 7
        s_lshl_b32 s{sW2048}, s{sWave}, 11
        s_lshl_b32 s{sW4}, s{sWave}, 2
        s_mov_b32 s{sC}, 0x{f32bits(math.log2(math.e)/16.0):08x}
        s_mov_b32 s{sIter}, 0
        s_mov_b32 s{sFlag}, 0
        s_mul_i32 s{sObo}, s7, {8*10240}
        s_sub_u32 s{sObo}, s{sObo}, {8*8*10240}
        s_add_u32 s{sObx}, s{sObo}, 8192
        s_add_u32 s{sObo}, s{sObo}, s{sW2048}
        v_bfe_u32 v36, v35, 1, 3
        v_xor_b32 v36, v36, v34
        v_lshlrev_b32 v36, 4, v36
        v_lshl_add_u32 v{vKP}, v35, 7, v36
        v_add_u32 v{vKPX}, {XBASE}, v{vKP}
        v_and_b32 v36, 15, v33                        ; i
        v_lshrrev_b32 v37, 2, v36                     ; rho = i/4
        v_and_b32 v38, 3, v36                         ; cc
        v_bfe_u32 v39, v33, 4, 1                      ; g%2
        v_lshlrev_b32 v42, 6, v37
        v_lshl_add_u32 v42, v39, 5, v42               ; rho*64 + (g%2)*32
        v_lshl_add_u32 v43, v34, 2, v37
        v_lshl_add_u32 v43, v43, 9, v42
        v_lshl_add_u32 v43, v38, 3, v43
        v_xor_b32 v43, s{sW128}, v43
        v_accvgpr_write_b32 a{aTV}, v43
        v_lshl_add_u32 v43, v34, 3, v37
        v_lshl_add_u32 v43, v43, 9, v42
        v_and_b32 v36, 1, v38
        v_lshrrev_b32 v38, 1, v38
        v_lshl_add_u32 v38, v36, 1, v38
        v_lshl_add_u32 v43, v38, 3, v43
        v_accvgpr_write_b32 a{aTW}, v43
        v_lshlrev_b32 v36, 10, v39                    ; (row/16)*1024
        v_lshl_add_u32 v36, v34, 8, v36
        v_and_b32 v37, 15, v33
        v_lshl_add_u32 v{vOo}, v37, 4, v36
        v_add_u32 v{vL16}, {XBASE}, v48
        """)
        e(f"""
        v_lshlrev_b32 v36, 4, v34
        v_lshl_add_u32 v36, v39, 2, v36
        v_bfe_u32 v37, v33, 2, 2
        v_add_u32 v36, v36, v37
        v_mul_u32_u24 v36, 896, v36
        v_and_b32 v37, 3, v33
        v_lshl_add_u32 v36, v37, 3, v36
        s_mul_i32 s{sT1}, s{sWave}, 224
        s_add_u32 s{sT1}, s{sT1}, {WST}
        v_add_u32 v36, s{sT1}, v36
        s_mul_i32 s{sT0}, s5, {WT_BLK}
        s_mul_i32 s{sT1}, s58, 28672
        s_add_u32 s{sT0}, s{sT0}, s{sT1}
        s_mul_i32 s{sT1}, s{sWave}, 7168
        s_add_u32 s{sT0}, s{sT0}, s{sT1}
        s_add_u32 s{sT0}, s{sT0}, {WT_OFF}
        s_mov_b32 s{sWs+2}, {WT_OFF + 2*WT_BLK}
        s_mov_b32 s{sWs+3}, 0x20000
        """)
        NM = len(self.M)
        done = set()
        for i in range(self.start[45], NM):
            for sl, t in self.upd[i]:
                if sl == 0: e(t)
        if self.warm: e(warm_call("A", sWave))
        e.wait(vm=("wo",))
        e("s_barrier")
        for c in range(7):
            e.lds_op(f"ds_read_b64_tr_b16 v[{96+4*c}:{97+4*c}], v36 offset:{32*c}", ("wt", c))
            e.lds_op(f"ds_read_b64_tr_b16 v[{98+4*c}:{99+4*c}], v36 offset:{32*c+8*896}", ("wt", c))
        for c in range(7):
            e.wait(lds=("wt", c))
            if c == 4: e(f"s_add_u32 s{sT0}, s{sT0}, 4096")
            e.vm_op(f"buffer_store_dwordx4 v[{96+4*c}:{99+4*c}], v48, {srd(sWs)}, s{sT0} offen offset:{1024*(c%4)}{self.opol}", ("wst",))
        e(f"""
        s_lshl_b32 s{sT0}, s5, 4
        s_add_u32 s{sT0}, s{sT0}, s6
        s_lshl_b32 s{sSig}, s{sT0}, 2
        s_mov_b32 s{sDbg}, s98
        s_mov_b32 s{sDbg+1}, s99
        s_mov_b32 s{sDbg+2}, 256
        s_mov_b32 s{sDbg+3}, 0x20000
        s_mul_i32 s{sT0}, s{sT0}, {O_GB}
        s_add_u32 s{sT0}, s{sT0}, {O_OFF}
        s_add_u32 s{sO}, s{sWs}, s{sT0}
        s_addc_u32 s{sO+1}, s{sWs+1}, 0
        s_mov_b32 s{sO+2}, 0
        v_mov_b32 v{vLo}, 0
        v_mov_b32 v{vLx}, 0
        """)
        self.stamp(e)
        for i in range(self.LA):
            self.lookahead(e, i)
        for it in late: it(e)

if __name__ == "__main__":
    from asmlib import *
    import sys
    def out(name, **kw):
        k = K1(stamps=True, **kw)
        e = k.gen()
        print(name, "instructions", e.ninst, "auto nops", e.nops, len(k.pass1_nops))
        for x in k.pass1_nops[:12]: print("   ", x)
        write_file(f"work/{name}.s", [(NAME + "_kernel", 256, 256, LDS1)], [(NAME + "_kernel", e.text(), 512, 256, 102)])
        return k
    k = out("k1")
    print([round(sum(max(32, c) for c in k.cost[k.start[n]:k.start[n]+20])) for n in range(NS)])
    base = "samekv samew nost cyc "
    out("a0", mode=base, kvpol="")
    out("a1", mode=base, kvpol="", LA=5, WSTEP=1)
    out("a2", mode=base + "nodma", kvpol="")
    out("a3", mode=base + "nodma nobar", kvpol="")
    out("a5", mode=base + "nofill", kvpol="")
    out("k1c", mode="cyc")
```

```python
import math, struct
from emit import Emit
from asmlib import warm_call

def f32bits(x): return struct.unpack("<I", struct.pack("<f", x))[0]

O_GB = 128 * 10240
import os
O_OFF = int(os.environ.get("O_OFF", "0x100000"), 0)
WT_OFF = O_OFF + 32 * O_GB
WT_BLK = 128 * 28 * 1024

OP_WG = 81920
PP_OFF = O_OFF + 256 * OP_WG
PP_GB = 140 * 8 * 1024
CT_OFF = PP_OFF + 32 * PP_GB
NPOS = 8
XBASE = NPOS * 16384
LDS1 = XBASE + 32768
NFB = 8
TTHR = 10.0
NS = 46
NT = 53

sX, sW, sK, sV, sO = 8, 12, 16, 20, 24
sWave, sW4096, sRd, sWr, sWoff, sKVoff, sT0, sT1, sC, sFlag, sIter = 28, 29, 30, 31, 32, 33, 34, 35, 36, 37, 38
sXE, sT2, sObo, sObx, s2W, sW128, sW2048, sW4, sRet, sSh = 39, 40, 41, 42, 43, 44, 45, 46, 48, 50
sWs = 52
sStamp = 60
vDKV, vDW, vDX, vDE = 0, 2, 4, 6
vKP, vTP, vKPX = 7, 16, 17
vA = 8
vOo, vL16 = 18, 19
vMCo, vLo, vMCx, vLx, vDo, vDx = 20, 21, 22, 23, 24, 25
vT0, vT1 = 26, 27
vT4 = 28
X, Y, P0, P1, SXA, SXB = 32, 96, 160, 192, 224, 240
aXO, aXE = 192, 208
aDK, aDV, aTW, aTV, aSave = 224, 226, 228, 229, 232
aDE, aPK, aPW, aDummy = 230, 231, 238, 239
aPL = aDummy
def PK(k): return 192 + 8*k if k < 4 else 128 + 8*(k-4) if k < 8 else 240 + 8*(k-8)
sT3, sT4, sWX, sPW, sRhoV, sRhoK, sKap = 47, 51, 59, 90, 91, 96, 97
sDbg, sSig, sWoP = 92, 100, 54

def rr(base, n=4):
    k, i = base[0], int(base[1:])
    return "%s[%d:%d]" % (k, i, i + n - 1)
def srd(s): return "s[%d:%d]" % (s, s + 3)

class Item:
    def __init__(self, f, cost): self.f = f; self.cost = cost
    def __call__(self, e): self.f(e)

def cost_of(text):
    c = 0
    for l in text.split("\n"):
        l = l.strip()
        if not l or l.endswith(":"): continue
        c += 8 if l.startswith(("v_exp", "v_rcp")) else 4
    return c

class K1:
    def __init__(self, stamps=False, kvpol=" nt", wpol="", xpol="", opol="", prefetch_code=True, mode="", LA=6, WSTEP=2, dmacost=16, pfkv=None, pfw=None, pfx=False, pfwpol='', park=None, epi_end=12.5, pfsplit=True, psp=3, rot=False, kap=False, hb=3, pace=None, warm=True, merged=False, fused=False, pfo=None, slp=1, pfq=None, pf0=False, rpark=False):
        self.rpark = rpark
        self.XO, self.XE = (('v', 32), ('v', 48)) if rpark else (('a', aXO), ('a', aXE))
        self.pfq = pfq; self.pf0 = pf0
        self.slp = slp
        self.fused = fused; self.pfo = pfo
        self.merged = merged
        self.warm = warm
        self.pace = pace
        self.hb = hb
        self.rot = rot; self.kap = kap
        self.psp = psp
        self.park = park or {}; self.epi_end = epi_end; self.pfsplit = pfsplit
        self.pfkv = pfkv or {}; self.pfw = pfw or {}; self.pfx = pfx; self.pfwpol = pfwpol
        self.mode = mode
        self.clk = 's_memtime' if 'cyc' in mode else 's_memrealtime'
        self.stamps = stamps; self.kvpol = kvpol; self.wpol = wpol; self.xpol = xpol; self.opol = opol
        self.prefetch_code = prefetch_code
        self.nstamp = 0
        self.LA = LA; self.WSTEP = WSTEP; self.dmacost = dmacost
        self.tiles = []
        for i in range(7): self.tiles += [("X", i), ("W", 2*i), ("W", 2*i+1)]
        self.tiles += [("K", j) for j in range(16)] + [("V", j) for j in range(16)]
        def cons(t):
            k, j = t
            return {"X": 2*j, "W": j, "K": 14 + j, "V": 30 + j}[k]
        self.cons = [cons(t) for t in self.tiles]
        rel = [self.cons[i] + (1 if self.tiles[i][0] == "X" else 2) for i in range(NT)]
        iss = {}
        for tau in range(NPOS, 3*NT):
            p = tau - NPOS
            r = rel[p % NT] + NS * (p // NT)
            iss[tau] = max(r, iss.get(tau - 1, 0))
        self.issue = [iss[NT + t] - NS for t in range(NT)]
        assert self.issue == [iss[2*NT + t] - 2*NS for t in range(NT)]

    @staticmethod
    def slot_kind(n):
        n %= NS
        if n < 14: return "W", n
        if n < 30: return "K", n - 14
        return "V", n - 30

    def I(self, text): return Item(lambda e: e(text), cost_of(text))
    def L(self, text, tag): return Item(lambda e: e.lds_op(text, tag), 4)

    def kv_index(self, tau):
        kind, j = self.tiles[tau]
        return {"K": j, "V": 16 + j}.get(kind)

    def dma_items(self, tau, part=None):
        kind, j = self.tiles[tau]
        tag = ("tile", kind, j)
        if kind == "W": base, o, d2, vb, s, pol = sWoff, j * 262144, 30720, vDW, sW, self.wpol
        elif kind == "K": base, o, d2, vb, s, pol = sKVoff, (j // 4) * 65536 + (j % 4) * 128, 6144, vDKV, sK, self.kvpol
        elif kind == "V": base, o, d2, vb, s, pol = sKVoff, j * 16384, 0, vDKV, sV, self.kvpol
        else: base, o, d2, vb, s, pol = None, j * 128, 12288, vDX, sX, self.xpol
        adv = f"s_add_u32 s{sWr}, s{sWr}, 16384\ns_and_b32 s{sWr}, s{sWr}, {NPOS*16384-1}"
        if part is not None:
            R = self.park[self.kv_index(tau)][0]
            reg = lambda q: rr(R[0] + str(int(R[1:]) + 4*q))
        if part == "drain":
            def mkd(q):
                def f(e):
                    if q == 0:
                        e(f"s_add_u32 s{sT0}, s{sWr}, s{sWX}")
                        e(f"v_add_u32 v{vDE}, s{sT0}, v{vL16}")
                        e.wait(vm=tag)
                    e.lds_op(f"ds_write_b128 v{vDE}, {reg(q)} offset:{1024*q}", ("pub",))
                    if q == 3: e(adv)
                return Item(f, 8 + (12 if q == 0 else 8 if q == 3 else 0))
            return [mkd(q) for q in range(4)]
        sOf = sT0 if part is None else sT4
        def mk(q):
            def f(e):
                if q == 0:
                    if (kind, j) == ("K", 0): e(f"v_accvgpr_read_b32 v{vDKV}, a{aDK}\nv_accvgpr_read_b32 v{vDKV+1}, a{aDK+1}")
                    if (kind, j) == ("V", 0): e(f"v_accvgpr_read_b32 v{vDKV}, a{aDV}\nv_accvgpr_read_b32 v{vDKV+1}, a{aDV+1}")
                    if part is None: e(f"s_add_u32 m0, s{sWr}, s{sW4096}")
                    if base is None: e(f"s_movk_i32 s{sOf}, {o}")
                    elif kind == "V":
                        e(f"s_add_u32 s{sOf}, s{sRhoV}, {o}\ns_and_b32 s{sOf}, s{sOf}, 0x3ffff\ns_add_u32 s{sOf}, s{sOf}, s{base}")
                    elif kind == "K":
                        e(f"s_add_u32 s{sOf}, s{sRhoK}, {(j // 4) * 65536}\ns_and_b32 s{sOf}, s{sOf}, 0x3ffff\ns_add_u32 s{sOf}, s{sOf}, s{base}")
                        if j % 4: e(f"s_xor_b32 s{sOf}, s{sOf}, {(j % 4) * 128}")
                    else: e(f"s_add_u32 s{sOf}, s{base}, {o}")
                if q == 2 and d2:
                    e(f"s_add_u32 s{sOf}, s{sOf}, {d2}")
                if q == 4:
                    if j == 0: e(f"v_accvgpr_read_b32 v{vDE}, a{aDE}")
                    e(f"s_add_u32 m0, s{sXE}, {4096*j}")
                    e(f"s_movk_i32 s{sT0}, {o}")
                    e.vm_op(f"buffer_load_dwordx4 v{vDE}, {srd(s)}, s{sT0} offen{pol} lds", tag)
                    return
                if part is None:
                    e.vm_op(f"buffer_load_dwordx4 v{vb + (q & 1)}, {srd(s)}, s{sOf} offen offset:{1024*q}{pol} lds", tag)
                else:
                    e.vm_op(f"buffer_load_dwordx4 {reg(q)}, v{vb + (q & 1)}, {srd(s)}, s{sOf} offen offset:{1024*q}{pol}", tag)
                if q == 3:
                    if part is None: e(adv)
                    if (kind, j) == ("V", 15):
                        e(f"s_add_u32 s{sKVoff}, s{sKVoff}, {8*262144}")
                        e(f"s_cmp_eq_u32 s{sIter}, 0\ns_cselect_b32 s{sK+2}, s{sK+2}, 0")
            return Item(f, self.dmacost + (8 if q in (0, 3, 4) else 0))
        return [mk(q) for q in range(5 if kind == "X" else 4)]

    def pf_item(self, kind, i, slot):
        tmp = 36 if slot is None else vDE
        assert slot is None or 15 <= slot % NS <= 39
        if kind == "K": st, s_, base, o, pol = aPK, sK, sKVoff, (i // 2) * 65536 + (i % 2) * 256, self.kvpol
        elif kind == "V": st, s_, base, o, pol = aPL, sV, sKVoff, i * 32768, self.kvpol
        elif kind == "W": st, s_, base, o, pol = aPW, sW, sWoff, i * 16 * 131072, self.pfwpol
        else: st, s_, base, o, pol = aPL, sX, None, i * 32768, self.xpol
        def f(e):
            e(f"v_accvgpr_read_b32 v{tmp}, a{st}")
            if base is None: e(f"s_mov_b32 s{sT3}, {o}")
            else: e(f"s_add_u32 s{sT3}, s{base}, {o}")
            e.vm_op(f"buffer_load_dword a{aDummy}, v{tmp}, {srd(s_)}, s{sT3} offen{pol}", ("pf",))
        return Item(f, 24)

    def map_code(self):
        hb = self.hb
        xb = 3 - hb
        return f"""s_and_b32 s7, s3, {(1 << xb) - 1}
        s_lshl_b32 s7, s7, {hb}
        s_and_b32 s6, s4, {(1 << hb) - 1}
        s_add_u32 s7, s7, s6
        s_bfe_u32 s6, s3, {((2 - xb) << 16) | xb}
        s_lshl_b32 s6, s6, {5 - hb}
        s_lshr_b32 s{sPW}, s4, {hb}
        s_add_u32 s6, s6, s{sPW}"""

    def adv_rd(self): return f"s_add_u32 s{sRd}, s{sRd}, 16384\ns_and_b32 s{sRd}, s{sRd}, {NPOS*16384-1}"

    def addr_updates(self, n):
        kind, j = self.slot_kind(n)
        U = []
        if kind == "K":
            U.append((0, f"v_add_u32 v{vA}, s{sRd}, v{vKP}\n" + self.adv_rd(), None))
            for s in range(1, 4): U.append((s, f"v_xor_b32 v{vA+s}, {32*s}, v{vA}", 0))
            for s in range(4): U.append((4+s, f"v_add_u32 v{vA+4+s}, s{sW4096}, v{vA+s}", s))
        elif kind == "V":
            pre = f"v_accvgpr_read_b32 v{vTP}, a{aTV}\n" if j == 0 else ""
            U.append((0, pre + f"v_add_u32 v{vA}, s{sRd}, v{vTP}\n" + self.adv_rd(), None))
            for t in range(1, 8): U.append((t, f"v_xor_b32 v{vA+t}, {64*t}, v{vA}", 0))
        else:
            pre = f"v_accvgpr_read_b32 v{vTP}, a{aTW}\n" if j == 0 else ""
            if j % 2 == 0:
                pre += f"s_add_u32 s{sT2}, s{sRd}, s{sW4096}\n" + self.adv_rd() + "\n"
            U.append((0, pre + f"v_add_u32 v{vA}, s{sRd}, v{vTP}\n" + self.adv_rd(), None))
            for t in range(1, 4): U.append((t, f"v_xor_b32 v{vA+t}, {64*t}, v{vA}", 0))
            U.append((4, f"v_xor_b32 v{vA+4}, s{sW128}, v{vA}", 0))
            U.append((5, f"v_xor_b32 v{vA+5}, 64, v{vA+4}", 4))
            if j % 2 == 0:
                U.append((6, f"v_add_u32 v{vA+6}, s{sT2}, v{vKP}", 0))
        return U

    def slot_mfmas(self, n):
        kind, j = self.slot_kind(n)
        L = []
        if kind == "W":
            s0 = 2 * (j & 1); i = j // 2
            own = lambda t, s: dict(acc=f"v{Y+16*t}", frag=("tr", (t & 3), (t >> 2) * 256 + s * 8192, 2048), B=rr(f"{self.XO[0]}{self.XO[1]+4*(s0+s)}"), first=(j == 0 and s == 0), lds=("xo", i, s0+s))
            ext = lambda t, s: dict(acc=f"v{SXA+16*t}", frag=("tr", 4 + t, s * 8192, 2048), B=rr(f"{self.XE[0]}{self.XE[1]+4*(s0+s)}"), first=(j == 0 and s == 0), lds=("xe", i, s0+s))
            if j < 13:
                L = [own(t, s) for s in range(2) for t in range(8)] + [ext(t, s) for s in range(2) for t in range(2)]
            else:
                L = [ext(t, s) for t in range(2) for s in range(2)] + [own(t, s) for t in range(8) for s in range(2)]
        elif kind == "K":
            g, c = j // 4, j % 4
            SB = X if g % 2 == 0 else Y
            SX = SXA if g % 2 == 0 else SXB
            L = [dict(acc=f"v{SB+16*T}", frag=("b128", s, T * 4096), B=rr(f"a{4*(4*c+s)}"), first=(c == 0 and s == 0)) for T in range(4) for s in range(4)]
            L += [dict(acc=f"v{SX}", frag=("b128", 4 + s, 0), B=rr(f"a{64+4*(4*c+s)}"), first=(c == 0 and s == 0), lds=(("qx", 4*c+s) if g == 0 else None)) for s in range(4)]
        else:
            g, T = j // 4, j % 4
            PB = [P0, P1, X, Y][g]
            for s in range(2):
                for t in range(8):
                    L.append(dict(acc=f"a{16*t}", frag=("tr", t, s * 8192, 4096), B=rr(f"v{PB+8*T+4*s}"), first=(j == 0 and s == 0)))
                    if t < 2:
                        L.append(dict(acc=(f"v{64+16*t}" if self.rpark else f"a{128+16*t}"), frag=None, B=rr(f"v{SXA + 8*(j&1) + 4*s}"), first=(j == 0 and s == 0), lds=("px", j, s)))
        return L

    def softmax_own(self, g):
        SB = X if g % 2 == 0 else Y
        PD = [P0, P1, X, Y][g]
        I = self.I; F = []
        F.append(I(f"v_max3_f32 v{vT0}, v{SB}, v{SB+1}, v{SB+2}"))
        F.append(I(f"v_max3_f32 v{vT1}, v{SB+3}, v{SB+4}, v{SB+5}"))
        i = 6; k = 0
        while i < 64:
            t = vT0 if k % 2 == 0 else vT1
            F.append(I(f"v_max3_f32 v{t}, v{t}, v{SB+i}, v{SB+i+1}")); i += 2; k += 1
        F.append(I(f"v_max_f32 v{vT0}, v{vT0}, v{vT1}"))
        F.append(I(f"v_mov_b32 v{vT1}, v{vT0}"))
        F.append(I(f"v_permlane32_swap_b32 v{vT0}, v{vT1}\nv_max_f32 v{vT0}, v{vT0}, v{vT1}"))
        F += self.max_update(g, vMCo, vLo, vDo, "o")
        return F, self.exp_block(SB, 64, PD, vMCo, vLo, g == 0)

    def max_update(self, g, vMC, vL, vD, nm):
        I = self.I
        if g == 0:
            return [I(f"v_mul_f32 v{vMC}, s{sC}, v{vT0}\nv_ceil_f32 v{vMC}, v{vMC}"), I(f"v_mov_b32 v{vD}, 0" if "slot" not in self.mode else "s_nop 0")]
        lab = f"L_rare_{nm}{g}"
        return [I(f"v_fma_f32 v{vT1}, v{vT0}, s{sC}, -v{vMC}\nv_cmp_lt_f32 vcc, 0x{f32bits(TTHR):08x}, v{vT1}\ns_cbranch_vccnz {lab}\n{lab}_back:")]

    def rare_block(self, e, g, vMC, vL, vD, nm):
        lab = f"L_rare_{nm}{g}"
        e(f"""{lab}:
        v_mul_f32 v{vT1}, s{sC}, v{vT0}
        v_ceil_f32 v{vT1}, v{vT1}
        v_max_f32 v{vT1}, v{vT1}, v{vMC}
        v_sub_f32 v{vT0}, v{vT1}, v{vMC}
        v_mov_b32 v{vMC}, v{vT1}
        v_min_f32 v{vT0}, 0x437f0000, v{vT0}
        v_cvt_u32_f32 v{vT0}, v{vT0}
        v_sub_u32 v{vT1}, 0, v{vT0}
        v_ldexp_f32 v{vL}, v{vL}, v{vT1}
        v_lshlrev_b32 v{vT0}, {8*(g-1)}, v{vT0}
        v_or_b32 v{vD}, v{vD}, v{vT0}
        s_bitset1_b32 s{sFlag}, {g}
        s_nop 1
        s_branch {lab}_back""")

    def exp_block(self, SB, n, PD, vMC, vL, first):
        I = self.I; F = []
        npair = n // 2
        def tail(p):
            a, b = SB + 2*p, SB + 2*p + 1
            if first and p == 0:
                r = [I(f"v_add_f32 v{vL}, v{a}, v{b}")]
            else:
                r = [I(f"v_add_f32 v{vL}, v{vL}, v{a}"), I(f"v_add_f32 v{vL}, v{vL}, v{b}")]
            return r + [I(f"v_cvt_pk_bf16_f32 v{PD+p}, v{a}, v{b}")]
        for p in range(npair):
            a, b = SB + 2*p, SB + 2*p + 1
            F.append(I(f"v_fma_f32 v{a}, v{a}, s{sC}, -v{vMC}"))
            F.append(I(f"v_fma_f32 v{b}, v{b}, s{sC}, -v{vMC}"))
            F.append(I(f"v_exp_f32 v{a}, v{a}"))
            if p > 0: F += tail(p - 1)[:1]
            F.append(I(f"v_exp_f32 v{b}, v{b}"))
            if p > 0: F += tail(p - 1)[1:]
        F += tail(npair - 1)
        return F

    def softmax_x1(self, g):
        SX = SXA if g % 2 == 0 else SXB
        I = self.I; F = []
        a, b = vT4, vT4 + 1
        F.append(I(f"v_max3_f32 v{a}, v{SX}, v{SX+1}, v{SX+2}"))
        F.append(I(f"v_max3_f32 v{b}, v{SX+3}, v{SX+4}, v{SX+5}"))
        for k, i in enumerate(range(6, 16, 2)):
            t = a if k % 2 == 0 else b
            F.append(I(f"v_max3_f32 v{t}, v{t}, v{SX+i}, v{SX+i+1}"))
        F.append(I(f"v_max_f32 v{a}, v{a}, v{b}"))
        F.append(I(f"v_mov_b32 v{b}, v{a}"))
        F.append(I(f"v_add_u32 v{vT4+2}, s{sW4}, v{vL16}"))
        F.append(I(f"v_permlane32_swap_b32 v{a}, v{b}\nv_max_f32 v{a}, v{a}, v{b}"))
        for r in range(4):
            F.append(self.L(f"ds_write_b32 v{vT4+2}, v{a} offset:{(4*g+r)*2048}", ("pub",)))
        return F

    def softmax_x2(self, g):
        SX = SXA if g % 2 == 0 else SXB
        I = self.I
        F = [I(f"v_add_u32 v{vT0}, s{sW2048}, v{vL16}"),
             self.L(f"ds_read_b128 v[{vT4}:{vT4+3}], v{vT0} offset:{4*g*2048}", ("st", g))]
        def comb(e):
            e.wait(lds=("st", g))
            e(f"v_max3_f32 v{vT0}, v{vT4}, v{vT4+1}, v{vT4+2}")
            e(f"v_max_f32 v{vT0}, v{vT0}, v{vT4+3}")
        G = [Item(comb, 8)]
        G += self.max_update(g, vMCx, vLx, vDx, "x")
        G += self.exp_block(SX, 16, SX, vMCx, vLx, g == 0)
        G.append(I(f"v_add_u32 v{vT4}, s{sW2048}, v{vL16}"))
        for s in range(2):
            G.append(self.L(f"ds_write_b128 v{vT4}, v[{SX+4*s}:{SX+4*s+3}] offset:{4*g*2048+s*1024}", ("pub",)))
        return F, G

    def q_convert(self, t):
        I = self.I; b = Y + 16*t; F = []
        for i in range(8):
            F.append(I(f"v_cvt_pk_bf16_f32 v{b+i}, v{b+2*i}, v{b+2*i+1}"))
            if i > 0: F.append(I(f"v_accvgpr_write_b32 a{8*t+i-1}, v{b+i-1}"))
        F.append(I(f"v_accvgpr_write_b32 a{8*t+7}, v{b+7}"))
        return F

    def qx_publish(self):
        I = self.I; F = []
        F.append(I(f"v_add_u32 v{vT0}, s{sW4096}, v{vL16}"))
        for t in range(2):
            b = SXA + 16*t
            for i in range(8): F.append(I(f"v_cvt_pk_bf16_f32 v{b+i}, v{b+2*i}, v{b+2*i+1}"))
            for s in range(2):
                F.append(self.L(f"ds_write_b128 v{vT0}, v[{b+4*s}:{b+4*s+3}] offset:{(2*t+s)*1024}", ("pub",)))
        return F

    def epi_tile(self, k):
        I = self.I; F = []
        if self.rpark:
            vl = vLo if k < 8 else vLx
            tmp = 64 if k < 8 else 64 + 16 * (k - 8)
            if k < 8:
                for i in range(16): F.append(I(f"v_accvgpr_read_b32 v{tmp+i}, a{16*k+i}"))
                F[-1].epi = k
            for i in range(16): F.append(I(f"v_mul_f32 v{tmp+i}, v{tmp+i}, v{vl}"))
            for i in range(8): F.append(I(f"v_cvt_pk_bf16_f32 v{tmp+i}, v{tmp+2*i}, v{tmp+2*i+1}"))
            for i in range(8): F.append(I(f"v_accvgpr_write_b32 a{PK(k)+i}, v{tmp+i}"))
            if k >= 8: F[-1].epi = k
            return F
        ab = 16 * k
        vl = vLo if k < 8 else vLx
        tmp = X; dst = X + 16 + 8 * (k & 1)
        tp = k if k < 8 else k - 8
        if self.fused: F.append(I(f"s_add_u32 s{sT1}, s{sObo}, {2048*k}"))
        else: F.append(I(f"s_xor_b32 s{sT1}, s{s2W}, {tp}\ns_mul_i32 s{sT1}, s{sT1}, 10240\ns_add_u32 s{sT1}, s{sT1}, s{sObo if k < 8 else sObx}"))
        for i in range(16): F.append(I(f"v_accvgpr_read_b32 v{tmp+i}, a{ab+i}"))
        F[-1].epi = k
        for i in range(16): F.append(I(f"v_mul_f32 v{tmp+i}, v{tmp+i}, v{vl}"))
        for s in range(2):
            for i in range(4*s, 4*s+4): F.append(I(f"v_cvt_pk_bf16_f32 v{dst+i}, v{tmp+2*i}, v{tmp+2*i+1}"))
            F.append(Item(lambda e, s=s: e.vm_op(f"buffer_store_dwordx4 v[{dst+4*s}:{dst+4*s+3}], v{vOo}, {srd(sO)}, s{sT1} offen offset:{(1024 if self.fused else 512)*s}{self.opol}", ("ost",)), self.dmacost))
        return F

    def x_reads(self, i):
        R = {}
        xo = lambda s: rr(f"{self.XO[0]}{self.XO[1]+4*s}")
        xe = lambda s: rr(f"{self.XE[0]}{self.XE[1]+4*s}")
        for s in range(4):
            if s == 0: R[("o", 0)] = [self.L(f"ds_read_b128 {xo(0)}, v{vA+6}", ("xo", i, 0))]
            else: R[("o", s)] = [self.I(f"v_xor_b32 v{vA+7}, {32*s}, v{vA+6}"), self.L(f"ds_read_b128 {xo(s)}, v{vA+7}", ("xo", i, s))]
            if s == 0: R[("e", 0)] = [self.L(f"ds_read_b128 {xe(0)}, v{vKPX} offset:{4096*i}", ("xe", i, 0))]
            else: R[("e", s)] = [self.I(f"v_xor_b32 v{vA+7}, {32*s}, v{vKPX}"), self.L(f"ds_read_b128 {xe(s)}, v{vA+7} offset:{4096*i}", ("xe", i, s))]
        return R

    def signal(self, e, val):
        lab = e.label("L_nosig")
        e(f"""v_mov_b32 v{vT4}, s{sSig}
        v_mov_b32 v{vT4+1}, {val}
        s_cmp_lg_u32 s{sWave}, 0
        s_cbranch_scc1 {lab}
        s_mov_b64 exec, 1
        buffer_atomic_add v{vT4+1}, v{vT4}, {srd(sDbg)}, 0 offen sc1
        s_mov_b64 exec, -1
        {lab}:""")

    def stamp(self, e):
        if self.stamps:
            e(f"{self.clk} s[{sStamp+2*self.nstamp}:{sStamp+2*self.nstamp+1}]")
            self.nstamp += 1

    def build_body(self):
        LA = self.LA
        M = []; start = []
        for n in range(NS):
            start.append(len(M))
            for m in self.slot_mfmas(n):
                m["slot"] = n; M.append(m)
        NM = len(M)
        assert NM == 920
        fid = 0
        for m in M:
            if m["frag"] is not None:
                m["fid"] = fid; fid += 1
            else:
                m["fid"] = fid - 1
        self.nfrag = fid
        fill = [[] for _ in range(NM)]
        pre = [[] for _ in range(NM)]
        upd = [[] for _ in range(NM)]
        postbar = [[] for _ in range(NS)]
        S = lambda n: start[n % NS] + NM * (n // NS)
        cost = [8 + 4.0 / self.WSTEP] * NM
        for i, m in enumerate(M):
            g = (i - LA) % NM
            if m["frag"] is not None: cost[g] += 4 if m["frag"][0] == "b128" else 8
            if i in start: cost[g] += 24
        for n in range(NS):
            lo, hi = S(n), S(n) + 20
            last = {}
            for i in range(lo, hi):
                if M[i]["frag"] is not None: last[M[i]["frag"][1]] = i
            kind, j = self.slot_kind(n)
            if kind == "W" and j % 2 == 0:
                last[6] = lo + 12 + LA; last[7] = lo + 12 + LA
            first = {}
            for i in range(hi + 19, hi - 1, -1):
                m = M[i % NM]
                if m["frag"] is not None: first[m["frag"][1]] = i
            first[6] = min(first.get(6, 1 << 30), hi) if self.slot_kind(n + 1)[0] == "W" else first.get(6, 1 << 30)
            pos = {}
            used = {}
            for r, text, dep in self.addr_updates(n + 1):
                p = max(last.get(r, lo), pos[dep] if dep is not None else lo)
                while used.get(p, 0) >= 2 and p + 1 < first.get(r, hi + 19): p += 1
                assert p < first.get(r, 1 << 30), (n, r, p, first)
                used[p] = used.get(p, 0) + 1
                pos[r] = p
                upd[p % NM].append(((n + 1) % NS, text))
                cost[(p - LA) % NM] += cost_of(text)
        def put(i, it):
            fill[i % NM].append(it); cost[i % NM] += it.cost
        def spread(items, lo, hi):
            if "nofill" in self.mode: return
            tot = sum(it.cost for it in items)
            base = [cost[g % NM] for g in range(lo, hi)]
            a, b = min(base), max(base) + tot
            for _ in range(40):
                mid = (a + b) / 2
                if sum(max(0, mid - x) for x in base) >= tot: b = mid
                else: a = mid
            room = [max(0, b - x) for x in base]
            cum = 0; k = 0; acc = 0
            for gi in range(hi - lo):
                cum += room[gi]
                while k < len(items) and (acc + items[k].cost / 2 <= cum or gi == hi - lo - 1):
                    acc += items[k].cost; put(lo + gi, items[k]); k += 1
        want = []
        order = list(range(21, NT)) + list(range(21))
        for tau in order:
            g = (self.issue[tau] + (NS if tau < 21 else 0)) * 20 - LA + 2
            k = self.kv_index(tau)
            if self.pace and k is not None and k >= self.pace[0]:
                g = max(g, int(round((self.pace[1] + (k - self.pace[0]) * self.pace[2]) * 20)))
            if want: g = max(g, want[-1])
            want.append(g)
        self.first_gap = {}
        cur = -1000
        for n_, tau in enumerate(order):
            d = self.dma_items(tau, "drain" if self.kv_index(tau) in self.park else None)
            g = max(want[n_], cur)
            later = [w for w in want[n_+1:] + [want[0] + NM] if w > g]
            backlog = sum(1 for w in want[n_:] if w <= g)
            room = (later[0] - g) if backlog <= 1 else max(later[0] - g, 18) / backlog
            sp = max(2, min(4, int(room // len(d))))
            self.first_gap[tau] = g
            deadline = (self.cons[tau] + (NS if tau < 21 else 0)) * 20 - LA
            assert g + sp * len(d) + 25 < deadline, (tau, g, deadline)
            for k, it in enumerate(d):
                gg = g + sp * k
                it.tau = tau; it.gap = gg
                if "nodma" not in self.mode: put(gg, it)
            cur = g + sp * len(d)
        assert cur <= want[0] + NM
        for tau in range(NT):
            k = self.kv_index(tau)
            if k in self.park:
                g0 = int(round(self.park[k][1] * 20))
                assert g0 + 9 + 30 < self.first_gap[tau], (k, g0, self.first_gap[tau])
                assert g0 >= 0 or g0 + NM > self.first_gap[52] + 20
                for q, it in enumerate(self.dma_items(tau, "load")): put(g0 + self.psp * q, it)
        for i, sl in self.pfkv.items():
            put(S(sl % NS) + 7, self.pf_item("K" if i < 8 else "V", i % 8, sl))
        for i, sl in self.pfw.items():
            put(S(sl % NS) + 11, self.pf_item("W", i, sl))
        for i in range(7):
            R = self.x_reads(i); n = 2 * i
            postbar[n] += R[("o", 0)]
            cost[(S(n) - LA) % NM] += 4
            for k, key in enumerate([("o", 1), ("e", 0), ("e", 1), ("o", 2), ("o", 3), ("e", 2), ("e", 3)]):
                for it in R[key]: put(S(n) + [0, 2, 4, 6, 8, 10, 12][k], it)
        for c in range(4):
            for s in range(4):
                ks = 4*c + s
                put(S(14 + c) + 2 + 2*s, self.L(f"ds_read_b128 a[{64+4*ks}:{64+4*ks+3}], v{vL16} offset:{ks*1024}", ("qx", ks)))
        for j in range(16):
            for s in range(2):
                put(S(30 + j) - 8 + 5*s, self.L(f"ds_read_b128 v[{SXA+8*(j&1)+4*s}:{SXA+8*(j&1)+4*s+3}], v{vL16} offset:{(2*j+s)*1024}", ("px", j, s)))
        spread([it for k in ([9, 8] + list(range(8)) if self.rpark else range(10)) for it in self.epi_tile(k)], S(0), int(self.epi_end * 20))
        self.epi_done = {}
        for gi in range(NM):
            for it in fill[gi]:
                if hasattr(it, 'epi'): self.epi_done[it.epi] = gi
        for k, (R, f) in self.park.items():
            if self.rpark and R[0] == 'v': assert R == 'v80' and f * 20 > self.epi_done[9], (k, R, f, self.epi_done)
            if R[0] == 'a' and int(R[1:]) < 160 and 0 <= f < 14 and 'nofill' not in self.mode: assert f * 20 > self.epi_done[int(R[1:]) // 16], (k, R, f, self.epi_done)
        if self.fused: put(S(13), self.I(f"s_mov_b32 s{sO+2}, {OP_WG}"))
        else: put(S(13), self.I(f"s_mov_b32 s{sO+2}, {0 if 'nost' in self.mode else O_GB}\ns_add_u32 s{sObo}, s{sObo}, {8*8*10240}\ns_add_u32 s{sObx}, s{sObx}, {8*8*10240}"))
        if self.merged and not self.fused:
            assert self.epi_end <= 13
            put(S(13) + 12, Item(lambda e: e.wait_all(vm=True, lds=False), 4))
            put(S(14) + 1, Item(lambda e: self.signal(e, f"s{sIter}"), 36))
        if self.fused:
            def arm(e):
                lab = e.label("L_noarm")
                e(f"""s_add_u32 s{sT1}, s7, s{sWave}
                s_add_u32 s{sT1}, s{sT1}, s{sIter}
                s_cmp_lg_u32 s{sT1}, 0
                s_cbranch_scc1 {lab}
                s_waitcnt vmcnt(0)
                v_mov_b32 v{vT4}, s{sSig}
                v_mov_b32 v{vT4+1}, 1
                s_mov_b64 exec, 1
                buffer_atomic_add v{vT4+1}, v{vT4}, {srd(sDbg)}, 0 offen sc1
                s_mov_b64 exec, -1
                {lab}:""")
            put(S(13) + 12, Item(arm, 16))
        spread(self.qx_publish(), S(13) + 5, S(13) + 20 - LA - 2)
        spread(self.q_convert(0), S(13) + 8, S(13) + 15)
        spread(self.q_convert(1), S(13) + 15, S(13) + 20)
        spread(self.q_convert(2) + self.q_convert(3), S(14), S(14) + 19)
        spread(self.q_convert(4) + self.q_convert(5), S(15), S(15) + 19)
        spread(self.q_convert(6) + self.q_convert(7), S(16), S(16) + 19)
        if self.pfq is not None:
            assert self.fused and self.hb == 1 and not self.pfo
            g = int(self.pfq * 20)
            assert g > self.first_gap[20] - NM + 16
            def pfq(e):
                e(f"""s_add_u32 s{sWoff}, s{sWoff}, 4096
                s_cmp_eq_u32 s{sIter}, 0
                s_cselect_b32 s{sW}, s{sW}, s{sWoP}
                s_cselect_b32 s{sW+1}, s{sW+1}, s{sWoP+1}
                s_cselect_b32 s{sWoff}, s{sWoff}, 0
                v_accvgpr_read_b32 v{vT0}, a{aPW}""")
                e.vm_op(f"buffer_load_dword a{aDummy}, v{vT0}, {srd(sW)}, s{sWoff} offen", ("pf",))
                e(f"""v_accvgpr_mov_b32 a{aPW}, a{aPK}
                s_cselect_b32 s{sW+2}, s{sW+2}, 0
                s_cselect_b32 s{sX+2}, s{sX+2}, 0""")
            put(g, Item(pfq, 52))
            put(S(14), self.I(f"s_mov_b32 s{sFlag}, 0"))
        else:
            put(S(14), self.I(f"""s_add_u32 s{sWoff}, s{sWoff}, 4096
                s_cmp_eq_u32 s{sIter}, 0
                s_cselect_b32 s{sW+2}, s{sW+2}, 0
                s_cselect_b32 s{sX+2}, s{sX+2}, 0
                s_mov_b32 s{sFlag}, 0"""))
        if self.pfo:
            assert self.fused and self.hb == 1 and self.first_gap[0] <= S(43) + 6
            def pfo(e):
                e(f"""s_cmp_eq_u32 s{sIter}, 0
                s_cselect_b32 s{sV}, s{sV}, s{sWoP}
                s_cselect_b32 s{sV+1}, s{sV+1}, s{sWoP+1}
                s_cselect_b32 s{sV+2}, s{sV+2}, 3670016
                v_accvgpr_read_b32 v{vT0}, a{aPL}""")
                e.vm_op(f"buffer_load_dword a{aDummy}, v{vT0}, {srd(sV)}, 0 offen{self.pfo}", ("pf",))
                e(f"v_accvgpr_mov_b32 a{aPL}, a{aPK}")
            put(S(43) + 6, Item(pfo, 40))
        win = {0: (S(18), S(22)), 1: (S(22), S(26)), 2: (S(26), S(34)), 3: (S(34), S(42) - 2)}
        if self.rpark: win[2] = (S(26), S(30)); win[3] = (S(30), S(42) - 2)
        for g in range(4):
            x1 = self.softmax_x1(g)
            f2, g2 = self.softmax_x2(g)
            xq0 = S(14 + 4*g + 4)
            spread(x1, xq0 + 4, xq0 + 20 - LA - 2)
            spread(f2, xq0 + 22, xq0 + 24)
            spread(g2, xq0 + 28, xq0 + 66)
        for g in range(4):
            q0, q1 = win[g]
            omax, oexp = self.softmax_own(g)
            nm = 9 if g < (3 if self.rpark else 2) else 14
            spread(omax, q0, q0 + nm)
            spread(oexp, q0 + nm, q1 - 1)
        for g in range(1, 4):
            def chk(e, g=g):
                lab = e.label("L_nores")
                e(f"s_bitcmp1_b32 s{sFlag}, {g}")
                e(f"s_cbranch_scc0 {lab}")
                e(f"s_mov_b32 s{sSh}, {8*(g-1)}")
                e(f"s_call_b64 s[{sRet}:{sRet+1}], L_rescale")
                e(f"{lab}:")
            pre[S(30 + 4*g)].append(chk)
        I = self.I
        lf = [I(f"v_mov_b32 v{vT0}, v{vLo}"), I(f"v_mov_b32 v{vT1}, v{vLx}"), I(f"v_add_u32 v{vT4}, s{sW4}, v{vL16}"),
              I(f"v_permlane32_swap_b32 v{vLx}, v{vT1}\nv_add_f32 v{vLx}, v{vLx}, v{vT1}"),
              I(f"v_permlane32_swap_b32 v{vLo}, v{vT0}\nv_add_f32 v{vLo}, v{vLo}, v{vT0}"),
              self.L(f"ds_write_b32 v{vT4}, v{vLx} offset:16384", ("pub",)),
              I(f"v_rcp_f32 v{vLo}, v{vLo}")]
        spread(lf, S(42), S(42) + 10)
        def lx2(e):
            e.wait(lds=("lx",))
            e(f"v_add_f32 v{vT4}, v{vT4}, v{vT4+1}\nv_add_f32 v{vT4+2}, v{vT4+2}, v{vT4+3}\nv_add_f32 v{vLx}, v{vT4}, v{vT4+2}\nv_rcp_f32 v{vLx}, v{vLx}")
        put(S(44) + 2, self.L(f"ds_read_b128 v[{vT4}:{vT4+3}], v{vL16} offset:16384", ("lx",)))
        put(S(44) + 10, Item(lx2, 20))
        self.M, self.start, self.fill, self.pre, self.upd, self.postbar, self.cost = M, start, fill, pre, upd, postbar, cost

    def frag_read(self, e, m):
        fr = m["frag"]; b = 160 + 4 * (m["fid"] % NFB)
        tag = ("f", m["fid"])
        if fr[0] == "b128":
            e.lds_op(f"ds_read_b128 a[{b}:{b+3}], v{vA+fr[1]} offset:{fr[2]}", tag)
        else:
            e.lds_op(f"ds_read_b64_tr_b16 a[{b}:{b+1}], v{vA+fr[1]} offset:{fr[2]}", tag)
            e.lds_op(f"ds_read_b64_tr_b16 a[{b+2}:{b+3}], v{vA+fr[1]} offset:{fr[2]+fr[3]}", tag)

    def lookahead(self, e, i):
        NM = len(self.M); m = self.M[i % NM]
        if (i % NM) in self.start:
            n = m["slot"]
            pubs = [t for t in e.lds[e.lds_done:] if t == ("pub",)]
            if "nodma" not in self.mode: e.wait(vm=("tile",) + self.slot_kind(n), lds=(("pub",) if pubs else None))
            if "slot" in self.mode:
                e(f"v_writelane_b32 v{vDx}, s{86 + 2*((n+1)&1)}, {(n + NS - 1) % NS}")
                if "pre" in self.mode: e(f"s_memtime s[{86 + 2*(n&1)}:{87 + 2*(n&1)}]")
            if "nobar" not in self.mode: e("s_barrier")
            if "slot" in self.mode and "pre" not in self.mode: e(f"s_memtime s[{86 + 2*(n&1)}:{87 + 2*(n&1)}]")
            for it in self.postbar[n]: it(e)
        if m["frag"] is not None:
            self.frag_read(e, m)
        for _, t in self.upd[i % NM]: e(t)

    def emit_body(self, e):
        NM = len(self.M)
        assert self.nfrag % NFB == 0, self.nfrag
        for i, m in enumerate(self.M):
            if i in self.start and m["slot"] in (14, 30):
                self.stamp_inloop(e, m["slot"])
            for it in self.pre[i]: it(e)
            l = [("f", m["fid"])]
            if m.get("lds"): l.append(m["lds"])
            if i % self.WSTEP == 0:
                for d in range(1, self.WSTEP):
                    m2 = self.M[(i + d) % NM]
                    l.append(("f", m2["fid"]))
            e.wait(lds=l)
            b = 160 + 4 * (m["fid"] % NFB)
            acc = rr(m["acc"], 16)
            if "m16" in self.mode:
                self.hack16(e, m["acc"], b, m["B"], lambda: self.lookahead(e, i + self.LA), self.fill[i], m["first"])
                continue
            e(f"v_mfma_f32_32x32x16_bf16 {acc}, a[{b}:{b+3}], {m['B']}, {'0' if m['first'] else acc}")
            self.lookahead(e, i + self.LA)
            for it in self.fill[i]: it(e)

    def hack16(self, e, acc, b, B, look, fills, first):
        if not hasattr(self, "h16"): self.h16 = {}
        if first: self.h16[acc] = 0
        n = self.h16[acc]; self.h16[acc] = n + 1
        k, a0 = acc[0], int(acc[1:]) + 8 * (n & 1)
        bk = B[0]; b0 = int(B[2:].split(":")[0]); b1 = b0 ^ 4
        c = lambda o: "0" if n < 2 else f"{k}[{a0+o}:{a0+o+3}]"
        e(f"v_mfma_f32_16x16x32_bf16 {k}[{a0}:{a0+3}], a[{b}:{b+3}], {B}, {c(0)}")
        look()
        h = max(0, (len(fills) - 1) // 2)
        for it in fills[:h]: it(e)
        e(f"v_mfma_f32_16x16x32_bf16 {k}[{a0+4}:{a0+7}], a[{b}:{b+3}], {bk}[{b1}:{b1+3}], {c(4)}")
        for it in fills[h:]: it(e)

    def stamp_inloop(self, e, slot):
        if not self.stamps: return
        k = {14: 0, 30: 1, 46: 2}[slot]
        e(f"{self.clk} s[{sStamp+20+2*k}:{sStamp+21+2*k}]")

    def gen(self, code_bytes=45056, tail=None):
        self.build_body()
        def run(override):
            e = Emit(); e.wait_override = override
            self.nstamp = 0
            self.prologue(e, code_bytes)
            e("L_loop:")
            w0 = len(e.waits)
            self.emit_body(e)
            w1 = len(e.waits)
            return e, w0, w1
        e, w0, w1 = run(None)
        wa = list(e.waits)
        self.emit_body(e)
        wb = e.waits[w1:]
        self.pass1_nops = list(e.noplog)
        def mn(a, b):
            if a is None: return b
            if b is None: return a
            return min(a, b)
        ov = wa[:w0] + [(mn(a[0], b[0]), mn(a[1], b[1])) for a, b in zip(wa[w0:w1], wb)]
        e, w0, w1 = run(ov)
        e.wait_override = None
        self.stamp_inloop(e, 46)
        if self.stamps:
            e("s_waitcnt lgkmcnt(0)")
            e(f"s_cmp_eq_u32 s{sIter}, 0")
            for k in range(6):
                e(f"s_cselect_b32 s{sStamp+4+k}, s{sStamp+20+k}, s{sStamp+4+k}")
                e(f"s_mov_b32 s{sStamp+10+k}, s{sStamp+20+k}")
        if "slot" in self.mode:
            e(f"s_cmp_eq_u32 s{sIter}, 0\ns_cbranch_scc0 L_noc\nv_mov_b32 v{vDo}, v{vDx}\nL_noc:")
        e(f"s_add_u32 s{sIter}, s{sIter}, 1")
        e(f"s_cmp_lt_u32 s{sIter}, 2")
        e("s_cbranch_scc1 L_loop")
        if self.fused:
            self.tail_fused(e)
        elif self.merged:
            self.tail(e)
        else:
            e("s_nop 15")
            for k in range(10):
                for it in self.epi_tile(k): it(e)
        if self.stamps:
            e("s_waitcnt vmcnt(0)")
            e(f"{self.clk} s[{sStamp+16}:{sStamp+17}]")
            e("s_waitcnt lgkmcnt(0)")
            e(f"s_mov_b32 s{sWs+2}, 0x100000\ns_mov_b32 s{sWs+3}, 0x20000")
            if "slot" in self.mode:
                e(f"s_lshl_b32 s{sT0}, s2, 2\ns_add_u32 s{sT0}, s{sT0}, s{sWave}\ns_lshl_b32 s{sT0}, s{sT0}, 9\ns_add_u32 s{sT0}, s{sT0}, 0x10000")
                e(f"v_subrev_u32 v40, {XBASE}, v{vL16}\nv_lshrrev_b32 v40, 2, v40")
                e(f"buffer_store_dword v{vDo}, v40, {srd(sWs)}, s{sT0} offen")
                e(f"buffer_store_dword v{vDx}, v40, {srd(sWs)}, s{sT0} offen offset:256")
            NST = 12 if self.merged else 9
            e(f"s_mul_i32 s{sT0}, s2, {8*NST}")
            e(f"s_cmp_lg_u32 s{sWave}, 0\ns_cbranch_scc1 L_end")
            e(f"v_mov_b32 v40, s{sT0}")
            e("s_mov_b64 exec, 1")
            for k, sr in enumerate([0, 1, 2, 3, 4, 5, 6, 7, 10, 11, 12, 8] if self.merged else range(9)):
                e(f"v_mov_b32 v42, s{sStamp+2*sr}\nv_mov_b32 v43, s{sStamp+2*sr+1}")
                e(f"buffer_store_dwordx2 v[42:43], v40, {srd(sWs)}, 0 offen offset:{8*k}")
                e("s_nop 1")
        e("L_end:\ns_endpgm")
        if self.merged and not self.fused: self.tail_slow(e)
        for g in range(1, 4):
            if "nofill" in self.mode: break
            self.rare_block(e, g, vMCo, vLo, vDo, "o")
            self.rare_block(e, g, vMCx, vLx, vDx, "x")
        e("L_rescale:")
        e("s_waitcnt lgkmcnt(0)")
        e("s_nop 15")
        for i in range(6): e(f"v_accvgpr_write_b32 a{aSave+i}, v{vT0+i}")
        e(f"v_lshrrev_b32 v{vT0}, s{sSh}, v{vDo}\nv_and_b32 v{vT0}, 255, v{vT0}\nv_sub_u32 v{vT0}, 0, v{vT0}")
        e(f"v_lshrrev_b32 v{vT1}, s{sSh}, v{vDx}\nv_and_b32 v{vT1}, 255, v{vT1}\nv_sub_u32 v{vT1}, 0, v{vT1}")
        if self.rpark:
            for i in range(32): e(f"v_ldexp_f32 v{64+i}, v{64+i}, v{vT1}")
        for i in range(0, 128 if self.rpark else 160, 4):
            for q in range(4): e(f"v_accvgpr_read_b32 v{vT4+q}, a{i+q}")
            for q in range(4): e(f"v_ldexp_f32 v{vT4+q}, v{vT4+q}, v{vT0 if i < 128 else vT1}")
            for q in range(4): e(f"v_accvgpr_write_b32 a{i+q}, v{vT4+q}")
        for i in range(6): e(f"v_accvgpr_read_b32 v{vT0+i}, a{aSave+i}")
        e("s_nop 3")
        e(f"s_setpc_b64 s[{sRet}:{sRet+1}]")
        return e

    def obuf(self, k, f):
        if k < 4: b = 64 + 48 * k + 4 * f; return f"v[{b}:{b+3}]"
        b = 160 + 48 * (k - 4) + 4 * f; return f"a[{b}:{b+3}]"

    def poll_check(self, e, which):
        vP = 2 + which
        if which == 0:
            e(f"v_and_b32 v{vP}, 255, v{vP}")
        else:
            e(f"v_lshrrev_b32 v{vP}, 8, v{vP}")
        e(f"v_cmp_le_u32 vcc, 8, v{vP}")
        e(f"s_cmp_eq_u64 vcc, -1")

    def poll_load(self, e, which):
        e.vm_op(f"buffer_load_dword v{2+which}, v{4+which}, {srd(sDbg)}, 0 offen sc1", ("poll", which))

    def tail_slow(self, e):
        for which in ([1] if self.fused else range(2)):
            e(f"""L_spin{which}:
            s_mov_b32 s{sT3}, 0
            L_spin{which}_l:
            s_sleep 2""")
            e(f"buffer_load_dword v{2+which}, v{4+which}, {srd(sDbg)}, 0 offen sc1")
            e("s_waitcnt vmcnt(0)")
            self.poll_check(e, which)
            e(f"""s_cbranch_scc1 L_spin{which}_back
            s_add_u32 s{sT3}, s{sT3}, 1
            s_cmp_lt_u32 s{sT3}, 0x200000
            s_cbranch_scc1 L_spin{which}_l
            s_branch L_spin{which}_back""")

    def tail(self, e):
        NB = 6
        sO2, sWt, sOut = sX, sW, sK
        so0, so1, sw0, sw1, sRh, sCt, sB2, sOb = sRd, sWr, sWoff, sKVoff, sXE, sT2, sW128, sW4
        vLn = 6
        st = lambda k: e(f"{self.clk} s[{sStamp+2*k}:{sStamp+2*k+1}]") if self.stamps else None
        e(f"""
        s_load_dwordx2 s[{sOut}:{sOut+1}], s[0:1], 80
        v_subrev_u32 v{vLn}, {XBASE}, v{vL16}
        s_and_b32 s{sB2}, s3, 3
        s_lshl_b32 s{sB2}, s{sB2}, 2
        s_lshr_b32 s{sT0}, s4, 3
        s_add_u32 s{sB2}, s{sB2}, s{sT0}
        s_lshl_b32 s{sT0}, s5, 6
        v_bfe_u32 v4, v{vLn}, 2, 6
        v_and_b32 v4, 60, v4
        v_add_u32 v4, s{sT0}, v4
        s_lshl_b32 s{sT3}, s{sB2}, 2
        s_add_u32 s{sT3}, s{sT3}, s{sT0}
        v_mov_b32 v5, s{sT3}
        """)
        self.poll_load(e, 0)
        e(f"""
        s_bfe_u32 s{sRh}, s4, 0x10002
        s_and_b32 s{sCt}, s4, 3
        s_lshl_b32 s{sT0}, s5, 4
        s_add_u32 s{sT0}, s{sT0}, s{sB2}
        s_mul_i32 s{sT0}, s{sT0}, {O_GB}
        s_add_u32 s{sT0}, s{sT0}, {O_OFF}
        s_add_u32 s{sO2}, s{sWs}, s{sT0}
        s_addc_u32 s{sO2+1}, s{sWs+1}, 0
        s_mov_b32 s{sO2+2}, {O_GB}
        s_mul_i32 s{sT0}, s5, {WT_BLK}
        s_add_u32 s{sT0}, s{sT0}, {WT_OFF}
        s_add_u32 s{sWt}, s{sWs}, s{sT0}
        s_addc_u32 s{sWt+1}, s{sWs+1}, 0
        s_mov_b32 s{sWt+2}, {WT_BLK}
        s_mul_i32 s{so0}, s{sWave}, {10240 * 16}
        s_mul_i32 s{sT0}, s{sRh}, 5120
        s_add_u32 s{so0}, s{so0}, s{sT0}
        s_mul_i32 s{sw0}, s{sWave}, {28672 * 16}
        s_mul_i32 s{sT0}, s{sCt}, 7168
        s_add_u32 s{sw0}, s{sw0}, s{sT0}
        s_mul_i32 s{sOb}, s{sB2}, {160*1792}
        s_mul_i32 s{sT0}, s{sRh}, {80*1792}
        s_add_u32 s{sOb}, s{sOb}, s{sT0}
        s_mul_i32 s{sT0}, s5, 896
        s_add_u32 s{sOb}, s{sOb}, s{sT0}
        s_mul_i32 s{sT0}, s{sCt}, 224
        s_add_u32 s{sOb}, s{sOb}, s{sT0}
        s_waitcnt lgkmcnt(0)
        s_mov_b32 s{sOut+2}, {16*160*896*2}
        """)
        e.lds_done = len(e.lds)
        def loads(u):
            k = u % NB
            def mk(f):
                def fn():
                    if f == 0: e(f"s_add_u32 s{so1}, s{so0}, 4096\ns_add_u32 s{sw1}, s{sw0}, 4096")
                    if f < 5:
                        e.vm_op(f"buffer_load_dwordx4 {self.obuf(k, f)}, v{vLn}, {srd(sO2)}, s{so0 if f < 4 else so1} offen offset:{1024*(f%4)} sc1", ("u", u))
                    else:
                        c = f - 5
                        e.vm_op(f"buffer_load_dwordx4 {self.obuf(k, f)}, v{vLn}, {srd(sWt)}, s{sw0 if c < 4 else sw1} offen offset:{1024*(c%4)} sc1", ("u", u))
                    if f == 11:
                        n = 49 if u == 15 else 1
                        e(f"s_add_u32 s{so0}, s{so0}, {10240*n}\ns_add_u32 s{sw0}, s{sw0}, {28672*n}")
                return fn
            return [mk(f) for f in range(12)]
        epi = [it for k in range(10) for it in self.epi_tile(k)]
        n0 = len(epi) * 3 // 10
        for it in epi[:n0]: it(e)
        e.wait(vm=("poll", 0))
        self.poll_check(e, 0)
        e("s_cbranch_scc0 L_spin0\nL_spin0_back:")
        pl = [f for u in range(3) for f in loads(u)]
        rest = epi[n0:]
        for i, it in enumerate(rest):
            it(e)
            if i % 8 == 0 and pl: pl.pop(0)()
        for f in pl: f()
        e.wait_all(vm=True, lds=False)
        e("s_barrier")
        self.signal(e, 256)
        st(10)
        for u in range(3, NB - 1):
            for f in loads(u): f()
        prep = []
        vTid = 7
        prep.append(f"v_lshrrev_b32 v{vTid}, 4, v{vLn}\nv_lshl_add_u32 v{vTid}, s{sWave}, 6, v{vTid}\ns_mov_b32 s{sT4}, 4682")
        for k in range(5):
            a, o = 16 + 2 * k, 17 + 2 * k
            prep += f"""v_add_u32 v8, {256*k}, v{vTid}
            v_mul_lo_u32 v9, v8, s{sT4}
            v_lshrrev_b32 v9, 16, v9
            v_mul_u32_u24 v10, 14, v9
            v_sub_u32 v10, v8, v10
            v_lshrrev_b32 v11, 1, v10
            v_mul_u32_u24 v11, 5, v11
            v_lshrrev_b32 v12, 4, v9
            v_add_u32 v11, v11, v12
            v_lshlrev_b32 v11, 10, v11
            v_and_b32 v12, 1, v10
            v_lshl_add_u32 v11, v12, 9, v11
            v_and_b32 v12, 15, v9
            v_lshl_add_u32 v{a}, v12, 4, v11
            v_mul_u32_u24 v11, 1792, v9
            v_lshl_add_u32 v{o}, v10, 4, v11""".split("\n")
            if k == 4:
                prep.append(f"v_cmp_gt_u32 vcc, 96, v{vTid}\nv_mov_b32 v11, 0x7ffffff0\ns_nop 0\nv_cndmask_b32 v{o}, v11, v{o}, vcc\nv_cndmask_b32 v{a}, 0, v{a}, vcc")
            prep.append(f"v_add_u32 v{26+k}, {2*35*1024}, v{a}")
        prep.append(f"s_mul_i32 s{sT0}, s{sWave}, {35*1024}\nv_add_u32 v13, s{sT0}, v{vLn}")
        if "slot" in self.mode: prep = [f"v_mov_b32 v14, v{vDo}\nv_mov_b32 v15, v{vDx}"] + prep
        for u in range(32):
            k = u % NB
            if u == 11:
                e.wait(vm=("poll", 1))
                self.poll_check(e, 1)
                e("s_cbranch_scc0 L_spin1\nL_spin1_back:")
            e.wait(vm=("u", u))
            nl = loads(u + NB - 1) if u + NB - 1 < 32 else []
            i = 0
            for c in range(7):
                for r in range(5):
                    t = 4 * (c * 5 + r)
                    e(f"v_mfma_f32_16x16x32_bf16 a[{t}:{t+3}], {self.obuf(k, 5+c)}, {self.obuf(k, r)}, {'0' if u == 0 else f'a[{t}:{t+3}]'}")
                    if i % 3 == 0 and nl and i // 3 < 12: nl[i // 3]()
                    if i % 3 == 1 and prep and u >= 13: e(prep.pop(0))
                    if u == 31 and i >= 8:
                        tt = i - 8
                        e.lds_op(f"ds_write_b128 v13, a[{4*tt}:{4*tt+3}] offset:{1024*tt}", ("pw",))
                    i += 1
            if u == 6: self.poll_load(e, 1)
        assert not prep
        st(11)
        for tt in range(27, 35):
            e.lds_op(f"ds_write_b128 v13, a[{4*tt}:{4*tt+3}] offset:{1024*tt}", ("pw",))
        e.wait_all(vm=False)
        e("s_barrier")
        for k in range(5):
            a = 16 + 2 * k; b = 32 + 32 * k
            for w in range(4):
                ar = a if w < 2 else 26 + k
                for h in range(2):
                    e.lds_op(f"ds_read_b128 v[{b+8*w+4*h}:{b+8*w+4*h+3}], v{ar} offset:{(w%2)*35*1024 + 256*h}", ("pr", k))
        for k in range(5):
            o = 17 + 2 * k; b = 32 + 32 * k
            e.wait(lds=("pr", k))
            for i in range(8):
                e(f"v_add_f32 v{b+i}, v{b+i}, v{b+8+i}")
                e(f"v_add_f32 v{b+16+i}, v{b+16+i}, v{b+24+i}")
            for i in range(8): e(f"v_add_f32 v{b+i}, v{b+i}, v{b+16+i}")
            for i in range(4): e(f"v_cvt_pk_bf16_f32 v{b+8+i}, v{b+2*i}, v{b+2*i+1}")
            e.vm_op(f"buffer_store_dwordx4 v[{b+8}:{b+11}], v{o}, {srd(sOut)}, s{sOb} offen", ("st",))
        st(12)
        if "slot" in self.mode: e(f"v_mov_b32 v{vDo}, v14\nv_mov_b32 v{vDx}, v15\nv_add_u32 v{vL16}, {XBASE}, v{vLn}")

    def tail_fused(self, e):
        LA = self.LA
        sWo, sP, sOut = sW, sX, sK
        sWb, sPo, sPx, sOb, sColo, sCohi = sWoff, sRd, sWr, sKVoff, sXE, sT2
        vLn, vD0 = vOo, 0
        OB1, OX1, OX0, aO0 = 32, 96, 112, 192
        ACC = [128, 192]
        st = lambda k: e(f"{self.clk} s[{sStamp+2*k}:{sStamp+2*k+1}]") if self.stamps else None
        I = self.I
        e(f"""
        s_load_dwordx2 s[{sOut}:{sOut+1}], s[0:1], 80
        s_mov_b32 s{sWo}, s{sWoP}
        s_mov_b32 s{sWo+1}, s{sWoP+1}
        s_mov_b32 s{sWo+2}, 3670016
        s_mul_i32 s{sWb}, s7, {256*896}
        s_mul_i32 s{sT0}, s{sWave}, {64*896}
        s_add_u32 s{sWb}, s{sWb}, s{sT0}
        v_lshrrev_b32 v2, 7, v{vLn}                  ; l/8
        v_mul_u32_u24 v2, 896, v2
        v_and_b32 v3, 0x70, v{vLn}                   ; (l%8)*16
        v_lshrrev_b32 v4, 2, v{vLn}
        v_and_b32 v4, 64, v4                         ; ((l/16)&1)*64
        v_xor_b32 v3, v3, v4
        v_add_u32 v{vD0}, v2, v3
        v_add_u32 v{vD0+1}, {8*896-1024}, v{vD0}
        """)
        e.wait_all(vm=True, lds=True)
        e("s_barrier")
        tiles = [(cb, hd, half) for cb in range(7) for hd, half in ((1, 0), (1, 1), (0, 0), (0, 1))]
        def dma(i):
            cb, hd, half = tiles[i]
            def mk(q):
                def f(e):
                    if q == 0:
                        e(f"s_add_u32 m0, s{sW4096}, {(i % NPOS) * 16384}")
                        e(f"s_add_u32 s{sT0}, s{sWb}, {(hd * 2048 + 32 * half) * 896 + cb * 128}")
                    if q == 2: e(f"s_add_u32 s{sT0}, s{sT0}, 12288")
                    e.vm_op(f"buffer_load_dwordx4 v{vD0 + (q & 1)}, {srd(sWo)}, s{sT0} offen offset:{1024*q} lds", ("ot", i))
                return Item(f, self.dmacost + (8 if q == 0 else 0))
            return [mk(q) for q in range(4)]
        pre = [it for i in range(2) for it in dma(i)]
        for k in range(0 if self.rpark else 10):
            for s_ in range(2):
                dst = f"a[{aO0+8*k+4*s_}:{aO0+8*k+4*s_+3}]" if k < 8 else f"v[{OX0+8*(k-8)+4*s_}:{OX0+8*(k-8)+4*s_+3}]"
                def f(e, k=k, s_=s_, dst=dst):
                    if s_ == 0: e(f"s_add_u32 s{sT1}, s{sObo}, {2048*k}")
                    e.vm_op(f"buffer_load_dwordx4 {dst}, v{vLn}, {srd(sO)}, s{sT1} offen offset:{1024*s_} sc1", ("o0",))
                pre.append(Item(f, 16))
        pre += [it for i in range(2, 6) for it in dma(i)]
        conv = []
        for kk, k in enumerate([8, 9, 0, 2, 4, 6, 1, 3, 5, 7] if self.rpark else [0, 8, 2, 4, 6, 1, 9, 3, 5, 7]):
            tmp = ACC[1] + 16 * (kk % 2)
            vl = vLo if k < 8 else vLx
            dst = OB1 + 8 * k
            if self.rpark and k >= 8: tmp = 64 + 16 * (k - 8)
            else:
                for i in range(16): conv.append(I(f"v_accvgpr_read_b32 v{tmp+i}, a{16*k+i}"))
            for i in range(16): conv.append(I(f"v_mul_f32 v{tmp+i}, v{tmp+i}, v{vl}"))
            for i in range(8): conv.append(I(f"v_cvt_pk_bf16_f32 v{dst+i}, v{tmp+2*i}, v{tmp+2*i+1}"))
        setup = f"""
        v_bfe_u32 v2, v{vLn}, 6, 2                   ; rho
        v_lshrrev_b32 v3, 9, v{vLn}                  ; hf
        v_lshl_add_u32 v4, v3, 2, v2
        v_lshlrev_b32 v4, 7, v4                      ; (4hf+rho)*128
        v_lshlrev_b32 v2, 5, v2
        v_and_b32 v2, 64, v2
        v_add_u32 v4, v4, v2
        v_bfe_u32 v2, v{vLn}, 8, 1
        v_lshl_add_u32 v4, v2, 5, v4
        v_bfe_u32 v2, v{vLn}, 4, 1
        v_lshl_add_u32 v4, v2, 4, v4
        v_bfe_u32 v2, v{vLn}, 5, 1
        v_lshl_add_u32 v4, v2, 3, v4
        v_add_u32 v{vTP}, s{sW4096}, v4
        v_bfe_u32 v2, v{vLn}, 4, 5
        v_mul_u32_u24 v2, 1792, v2
        v_lshl_add_u32 v7, v3, 4, v2
        v_mov_b32 v5, s{sSig}
        s_lshl_b32 s{sT3}, s{sWave}, 13
        v_add_u32 v17, s{sT3}, v{vL16}
        v_add_u32 v6, s{sW2048}, v{vL16}
        s_lshr_b32 s{sT3}, s{sSig}, 2
        s_mul_i32 s{sT3}, s{sT3}, {PP_GB}
        s_add_u32 s{sT3}, s{sT3}, {PP_OFF}
        s_add_u32 s{sP}, s{sWs}, s{sT3}
        s_addc_u32 s{sP+1}, s{sWs+1}, 0
        s_mov_b32 s{sP+2}, {PP_GB}
        s_mul_i32 s{sPo}, s{sWave}, {28*8}
        s_add_u32 s{sPo}, s{sPo}, s7
        s_lshl_b32 s{sPo}, s{sPo}, 10
        s_lshl_b32 s{sPx}, s{sWave}, 3
        s_add_u32 s{sPx}, s{sPx}, s7
        s_add_u32 s{sPx}, s{sPx}, {112*8}
        s_lshl_b32 s{sPx}, s{sPx}, 10
        s_mul_i32 s{sOb}, s6, {160*1792}
        s_mul_i32 s{sT3}, s5, 896
        s_add_u32 s{sOb}, s{sOb}, s{sT3}
        s_mov_b32 s{sOut+2}, {16*160*896*2}
        s_mov_b32 s{sColo}, 0x3f80
        s_mov_b32 s{sCohi}, 0x3f800000
        """
        nfirst = 208 if self.rpark else 200
        k = 0
        for i, it in enumerate(conv[:nfirst]):
            it(e)
            if i % 4 == 0 and pre: pre.pop(0)(e)
        for it in pre: it(e)
        e(setup)
        e.vm_op(f"buffer_load_dword v4, v5, {srd(sDbg)}, 0 offen sc1", ("arm",))
        st(10)
        M = []
        for n, (cb, hd, half) in enumerate(tiles):
            A0 = ACC[cb & 1]
            for q in range(4):
                for s_ in range(2):
                    for mt in range(2):
                        t = 2 * q + half
                        B = f"v[{OB1+8*t+4*s_}:{OB1+8*t+4*s_+3}]" if hd == 1 else rr(f"a{(PK(t) if self.rpark else aO0+8*t)+4*s_}")
                        first = (n % 4 == 0 and q == 0 and s_ == 0)
                        M.append(dict(acc=A0 + 16 * mt, frag=("tr", 2 * q + mt, s_ * 2048, 1024), B=B, first=first, slot=n, vm=(("o0",) if n == 2 and not self.rpark else None)))
                        if q == 0:
                            xb = (OX1 if hd == 1 else OX0) + 8 * half + 4 * s_
                            Bx = rr(f"a{PK(8+half)+4*s_}") if (self.rpark and hd == 0) else f"v[{xb}:{xb+3}]"
                            M.append(dict(acc=A0 + 32 + 16 * mt, frag=None, B=Bx, first=first, slot=n))
        fid = 0
        for m in M:
            if m["frag"] is not None: m["fid"] = ("o", fid); m["fb"] = fid % NFB; fid += 1
            else: m["fid"] = ("o", fid - 1); m["fb"] = (fid - 1) % NFB
        NM = len(M)
        fill = [[] for _ in range(NM + 1)]
        upd = [[] for _ in range(NM)]
        def spread(items, lo, hi):
            for k, it in enumerate(items): fill[min(NM, lo + (k * (hi - lo)) // len(items))].append(it)
        def addr(n, r):
            if r == 0: return f"v_add_u32 v{vA}, {(n % NPOS) * 16384}, v{vTP}"
            return f"v_xor_b32 v{vA+r}, {(r >> 1) * 4096 + (r & 1) * 64}, v{vA}"
        for n in range(27):
            last = {}
            for i in range(20 * n, 20 * n + 20):
                if M[i]["frag"] is not None: last[M[i]["frag"][1]] = i
            for r in range(8): upd[last[r]].append(addr(n + 1, r))
        for n in range(22): spread(dma(n + 6), 20 * n - LA + 2 if n else 0, 20 * n + 12)
        spread(conv[nfirst:], 0, 20)
        def block_out(cb):
            A0 = ACC[cb & 1]
            own = []
            for mt in range(2):
                b = A0 + 16 * mt
                for s_ in range(2):
                    for i in range(4 * s_, 4 * s_ + 4): own.append(I(f"v_cvt_pk_bf16_f32 v{b+i}, v{b+2*i}, v{b+2*i+1}"))
                    def f(e, b=b, mt=mt, s_=s_):
                        e(f"s_add_u32 s{sT1}, s{sPo}, {(cb*4 + mt*2 + s_) * 8192}")
                        e.vm_op(f"buffer_store_dwordx4 v[{b+4*s_}:{b+4*s_+3}], v{vLn}, {srd(sP)}, s{sT1} offen sc1", ("ps",))
                    own.append(Item(f, 20))
            xb = A0 + 32
            wr = [self.L(f"ds_write_b128 v17, v[{xb+4*j}:{xb+4*j+3}] offset:{1024*j}", ("pub",)) for j in range(8)]
            rd = [self.L(f"ds_read_b128 v[{xb+8*w+4*h}:{xb+8*w+4*h+3}], v6 offset:{8192*w+1024*h}", ("xr", cb)) for w in range(4) for h in range(2)]
            ad = [Item(lambda e: e.wait(lds=("xr", cb)), 4)]
            for i in range(8): ad += [I(f"v_add_f32 v{xb+i}, v{xb+i}, v{xb+8+i}"), I(f"v_add_f32 v{xb+16+i}, v{xb+16+i}, v{xb+24+i}")]
            for i in range(8): ad.append(I(f"v_add_f32 v{xb+i}, v{xb+i}, v{xb+16+i}"))
            for i in range(4): ad.append(I(f"v_cvt_pk_bf16_f32 v{xb+i}, v{xb+2*i}, v{xb+2*i+1}"))
            def f(e):
                e(f"s_add_u32 s{sT1}, s{sPx}, {cb * 32768}")
                e.vm_op(f"buffer_store_dwordx4 v[{xb}:{xb+3}], v{vLn}, {srd(sP)}, s{sT1} offen sc1", ("ps",))
            ad.append(Item(f, 20))
            return own, wr, rd, ad
        for cb in range(6):
            own, wr, rd, ad = block_out(cb); g = 80 * (cb + 1)
            spread(wr, g, g + 11); spread(own, g + 3, g + 38); spread(rd, g + 20, g + 30); spread(ad, g + 40, g + 70)
        own6, wr6, rd6, ad6 = block_out(6)
        spread(wr6, NM - 9, NM - 1)
        def look(i):
            if i >= NM: return
            m = M[i]
            if i % 20 == 0:
                pubs = [t for t in e.lds[e.lds_done:] if t == ("pub",)]
                e.wait(vm=("ot", m["slot"]), lds=(("pub",) if pubs else None))
                e("s_barrier")
            if m["frag"] is not None:
                fr = m["frag"]; b = 160 + 4 * m["fb"]
                e.lds_op(f"ds_read_b64_tr_b16 a[{b}:{b+1}], v{vA+fr[1]} offset:{fr[2]}", m["fid"])
                e.lds_op(f"ds_read_b64_tr_b16 a[{b+2}:{b+3}], v{vA+fr[1]} offset:{fr[2]+fr[3]}", m["fid"])
            for t in upd[i]: e(t)
        for r in range(8): e(addr(0, r))
        for i in range(LA): look(i)
        for i, m in enumerate(M):
            l = [m["fid"]]
            if i % 2 == 0: l.append(M[i + 1]["fid"])
            e.wait(lds=l, vm=m.get("vm"))
            b = 160 + 4 * m["fb"]; acc = f"v[{m['acc']}:{m['acc']+15}]"
            if "m16" in self.mode:
                self.hack16(e, "v%d" % m["acc"], b, m["B"], lambda: look(i + LA), fill[i], m["first"])
                continue
            e(f"v_mfma_f32_32x32x16_bf16 {acc}, a[{b}:{b+3}], {m['B']}, {'0' if m['first'] else acc}")
            look(i + LA)
            for it in fill[i]: it(e)
        st(11)
        e.wait_all(vm=False)
        e("s_barrier")
        for it in rd6 + own6 + ad6: it(e)
        e.wait_all(vm=True, lds=False)
        e("s_barrier")
        e(f"""v_mov_b32 v3, 1
        v_mov_b32 v2, 0
        s_cmp_lg_u32 s{sWave}, 0
        s_cbranch_scc1 L_sync_done
        s_mov_b64 exec, 1
        s_mov_b32 s{sT3}, 0
        L_arm_l:
        v_readfirstlane_b32 s{sT0}, v4
        s_add_u32 s{sT3}, s{sT3}, 1
        s_cmp_lg_u32 s{sT0}, 0
        s_cbranch_scc1 L_arm_ok
        s_cmp_gt_u32 s{sT3}, 0x200000
        s_cbranch_scc1 L_arm_ok
        s_sleep 8
        buffer_load_dword v4, v5, {srd(sDbg)}, 0 offen sc1
        s_waitcnt vmcnt(0)
        s_branch L_arm_l
        L_arm_ok:
        global_atomic_add v3, v2, v3, s[98:99] sc0 sc1
        s_waitcnt vmcnt(0)
        v_add_u32 v3, 1, v3
        L_sync_l:
        s_nop 0
        v_readfirstlane_b32 s{sT0}, v3
        s_add_u32 s{sT3}, s{sT3}, 1
        s_cmp_ge_u32 s{sT0}, 8
        s_cbranch_scc1 L_sync_ok
        s_cmp_gt_u32 s{sT3}, 0x200000
        s_cbranch_scc1 L_sync_ok
        s_sleep {self.slp}
        global_load_dword v3, v2, s[98:99] sc1
        s_waitcnt vmcnt(0)
        s_branch L_sync_l
        L_sync_ok:
        s_mov_b64 exec, -1
        L_sync_done:""")
        e(f"""
        s_lshl_b32 s{sT4}, s7, 2
        s_add_u32 s{sT4}, s{sT4}, s{sWave}
        s_lshl_b32 s{sPo}, s{sT4}, 13
        """)
        e("s_barrier")
        st(12)
        for i in range(5):
            for p in range(8):
                if p % 4 == 0: e(f"s_add_u32 s{sT1}, s{sPo}, {i * 32 * 8192 + (p // 4) * 4096}")
                b = 64 + 32 * i + 4 * p
                e.vm_op(f"buffer_load_dwordx4 v[{b}:{b+3}], v{vLn}, {srd(sP)}, s{sT1} offen offset:{1024*(p%4)} sc1", ("pl", i, p))
        for i in range(5):
            acc = 32 + 8 * (i & 1); dst = 48 + 4 * (i & 1)
            e(f"""s_add_u32 s{sT0}, s{sT4}, {32*i}
            s_mul_i32 s{sT1}, s{sT0}, 2341
            s_lshr_b32 s{sT1}, s{sT1}, 16
            s_mul_i32 s{sT3}, s{sT1}, {57344 - 28*32}
            s_lshl_b32 s{sT0}, s{sT0}, 5
            s_add_u32 s{sT3}, s{sT3}, s{sT0}
            s_add_u32 s{sT3}, s{sT3}, s{sOb}""")
            if i == 4: e(f"s_cmp_lt_u32 s{sT4}, 12\ns_cselect_b32 s{sOut+2}, s{sOut+2}, 0")
            for p in range(8):
                b = 64 + 32 * i + 4 * p
                if p % 2 == 0: e.wait(vm=("pl", i, p + 1))
                for d in range(4):
                    if p == 0:
                        e(f"v_lshlrev_b32 v{acc+2*d}, 16, v{b+d}\nv_and_b32 v{acc+2*d+1}, 0xffff0000, v{b+d}")
                    else:
                        e(f"v_dot2_f32_bf16 v{acc+2*d}, v{b+d}, s{sColo}, v{acc+2*d}\nv_dot2_f32_bf16 v{acc+2*d+1}, v{b+d}, s{sCohi}, v{acc+2*d+1}")
            e("s_nop 2")
            for d in range(4): e(f"v_cvt_pk_bf16_f32 v{dst+d}, v{acc+2*d}, v{acc+2*d+1}")
            e.vm_op(f"buffer_store_dwordx4 v[{dst}:{dst+3}], v7, {srd(sOut)}, s{sT3} offen", ("st",))

    def prologue(self, e, code_bytes):
        e(f"""
        s_cmp_ge_u32 s2, 256
        s_cbranch_scc1 L_end
        """)
        self.stamp(e)
        e(f"""
        {"s_lshr_b32 s3, s2, 5" if "badmap" in self.mode else "s_and_b32 s3, s2, 7"}
        {"s_and_b32 s4, s2, 31" if "badmap" in self.mode else "s_lshr_b32 s4, s2, 3"}
        s_lshr_b32 s5, s3, 2
        s_mul_i32 s6, s5, 40
        s_add_u32 s56, s0, s6
        s_addc_u32 s57, s1, 0
        s_load_dwordx2 s[{sX}:{sX+1}], s[56:57], 0
        s_load_dwordx2 s[{sK}:{sK+1}], s[56:57], 8
        s_load_dwordx2 s[{sV}:{sV+1}], s[56:57], 16
        s_load_dwordx2 s[{sW}:{sW+1}], s[56:57], 24
        s_load_dwordx2 s[{sWoP if self.fused else sO}:{(sWoP if self.fused else sO)+1}], s[56:57], 32
        s_load_dwordx2 s[{sWs}:{sWs+1}], s[0:1], 96
        s_load_dwordx2 s[98:99], s[0:1], 88
        v_lshrrev_b32 v32, 6, v0
        v_and_b32 v33, 63, v0
        v_lshlrev_b32 v40, 4, v0
        v_readfirstlane_b32 s{sWave}, v32
        """)
        if self.prefetch_code:
            e(f"""
            s_getpc_b64 s[92:93]
            s_mov_b32 s94, {code_bytes}
            s_mov_b32 s95, 0x20000
            s_and_b32 s7, s4, 31
            s_lshl_b32 s7, s7, 12
            """)
            e.vm_op(f"buffer_load_dwordx4 v[44:47], v40, s[92:95], s7 offen", ("code",))
        e(f"""
        {self.map_code()}
        s_lshl_b32 s{sW4096}, s{sWave}, 12
        s_lshl_b32 s{sXE}, s{sWave}, 10
        s_add_u32 s{sXE}, s{sXE}, {XBASE}
        s_lshl_b32 s{sWoff}, s7, 9
        {"s_mov_b32 s%d, 0" % sWoff if "samew" in self.mode else ""}
        s_mov_b32 s{sRd}, 0
        s_mov_b32 s{sWr}, 0
        s_bfe_u32 s{sKap}, s2, 0x20004
        s_lshl_b32 s{sKap}, s{sKap}, 7
        {"" if self.kap else "s_mov_b32 s%d, 0" % sKap}
        s_and_b32 s{sRhoV}, s2, 15
        {"" if self.rot else "s_mov_b32 s%d, 0" % sRhoV}
        s_add_u32 s{sRhoK}, s{sRhoV}, s{sWave}
        s_lshl_b32 s{sRhoV}, s{sRhoV}, 14
        s_lshl_b32 s{sRhoK}, s{sRhoK}, 14
        s_add_u32 s{sRhoK}, s{sRhoK}, s{sKap}
        v_lshrrev_b32 v34, 5, v33          ; hf
        v_and_b32 v35, 31, v33             ; l%32
        v_lshrrev_b32 v41, 3, v33          ; l/8
        v_and_b32 v39, 7, v33              ; l%8
        """)
        for q in range(2):
            e(f"""
            v_add_u32 v36, {8*q}, v41
            v_lshl_add_u32 v36, v32, 5, v36
            v_bfe_u32 v37, v36, 1, 3
            v_xor_b32 v37, v37, v39
            v_lshlrev_b32 v37, 4, v37
            v_subrev_u32 v37, {1024*q}, v37
            v_mul_u32_u24 v38, 896, v36
            v_add_u32 v{vDX+q}, v38, v37
            v_and_b32 v36, 31, v36
            v_lshl_add_u32 v38, v36, 9, v37
            v_accvgpr_write_b32 a{aDK+q}, v38
            """)
        e(f"""
        v_lshl_add_u32 v36, v32, 3, v41
        v_bfe_u32 v37, v36, 1, 3
        v_xor_b32 v37, v37, v39
        v_lshlrev_b32 v37, 4, v37
        v_add_u32 v36, 128, v36
        v_mul_u32_u24 v38, 896, v36
        v_add_u32 v38, v38, v37
        v_accvgpr_write_b32 a{aDE}, v38
        """)
        for q in range(2):
            e(f"""
            v_add_u32 v36, {2*q}, v34
            v_lshlrev_b32 v37, 2, v36
            v_xor_b32 v37, v37, v35
            v_lshlrev_b32 v37, 4, v37
            v_subrev_u32 v37, {1024*q}, v37
            v_lshl_add_u32 v36, v32, 3, v36
            v_lshl_add_u32 v38, v36, 13, v37
            v_xor_b32 v{vDW+q}, s{sKap}, v38
            v_lshl_add_u32 v38, v36, 9, v37
            v_accvgpr_write_b32 a{aDV+q}, v38
            """)
        e(f"""
        v_lshlrev_b32 v48, 4, v33
        s_mul_i32 s{sT1}, s6, 143360
        s_mov_b32 s{sX+2}, 143360
        s_mov_b32 s{sX+3}, 0x20000
        s_mov_b32 s{sW+2}, 3670016
        s_mov_b32 s{sW+3}, 0x20000
        s_mov_b32 s{sO+2}, 3670016
        s_mov_b32 s{sO+3}, 0x20000
        s_waitcnt lgkmcnt(0)
        s_add_u32 s{sX}, s{sX}, s{sT1}
        s_addc_u32 s{sX+1}, s{sX+1}, 0
        """)
        NM = len(self.M)
        carried = [it for gi in range(NM) for it in self.fill[gi] if getattr(it, "tau", 99) < 21 and it.gap < NM]
        early = [it for it in carried if it.tau < 6]
        late = [it for it in carried if it.tau >= 6]
        assert all(it.gap >= NM - self.LA for it in late)
        if early and early[-1].tau < 6 and not late:
            lt = early[-1].tau
            if sum(1 for it in early if it.tau == lt) < (5 if self.tiles[lt][0] == "X" else 4):
                late = [it for it in early if it.tau == lt]; early = [it for it in early if it.tau != lt]
        for it in early:
            if it.tau < 2: it(e)
        WST = 6 * 16384
        if not self.fused:
            WST = 6 * 16384
            e(f"""
            s_and_b32 s58, s3, 3
            s_lshl_b32 s58, s58, 5
            s_add_u32 s58, s58, s4                        ; u_t
            s_mul_i32 s{sT0}, s58, 28672
            s_mul_i32 s{sT1}, s{sWave}, 7168
            s_add_u32 s{sT0}, s{sT0}, s{sT1}
            s_add_u32 m0, s{sT1}, {WST}
            """)
            for q in range(7):
                if q == 4:
                    e(f"s_add_u32 s{sT0}, s{sT0}, 4096\ns_add_u32 m0, m0, 4096")
                e.vm_op(f"buffer_load_dwordx4 v48, {srd(sO)}, s{sT0} offen offset:{1024*(q%4)} nt lds", ("wo",))
        for it in early:
            if it.tau >= 2: it(e)
        e(f"""
        v_lshlrev_b32 v36, 3, v40
        v_and_b32 v36, 0x3fff, v36                    ; (tid&127)*128
        v_cmp_gt_u32 vcc, 14336, v36
        v_lshrrev_b32 v37, 11, v40
        v_mul_u32_u24 v37, {8*229376}, v37
        s_mul_i32 s{sT3}, s{sPW}, 14336
        s_mul_i32 s{sT4}, s7, 229376
        s_add_u32 s{sT3}, s{sT3}, s{sT4}
        v_add3_u32 v36, v36, v37, s{sT3}
        v_mov_b32 v37, 0x7ffffff0
        v_cndmask_b32 v36, v37, v36, vcc
        v_accvgpr_write_b32 a{aPK}, v36               ; Wo prefetch pattern
        v_accvgpr_write_b32 a{aPL}, v37
        v_lshrrev_b32 v36, 6, v40
        v_lshlrev_b32 v36, {13 + 5 - self.hb}, v36
        v_and_b32 v37, 48, v40
        v_lshl_add_u32 v36, v37, 3, v36
        s_lshl_b32 s{sPW}, s{sPW}, 13
        v_add_u32 v36, s{sPW}, v36
        v_accvgpr_write_b32 a{aPW}, v36
        s_lshl_b32 s{sKVoff}, s6, 4
        s_add_u32 s{sKVoff}, s{sKVoff}, s7
        s_lshl_b32 s{sKVoff}, s{sKVoff}, 18
        {"s_mov_b32 s%d, 0" % sKVoff if "samekv" in self.mode else ""}
        s_mov_b32 s{sK+2}, 0x4000000
        s_mov_b32 s{sK+3}, 0x20000
        s_mov_b32 s{sV+2}, 0x4000000
        s_mov_b32 s{sV+3}, 0x20000
        """)
        if self.pfx:
            assert self.hb == 3
            e(f"v_lshlrev_b32 v36, 3, v40\nv_cmp_gt_u32 vcc, {140*128}, v36\nv_mov_b32 v37, 0x7ffffff0\nv_cndmask_b32 v36, v37, v36, vcc\ns_mul_i32 s{sT3}, s7, {140*128}")
            e.vm_op(f"buffer_load_dword a{aDummy}, v36, {srd(sX)}, s{sT3} offen{self.xpol}", ("pf",))
        for i, sl in sorted(self.pfw.items(), key=lambda t: t[1]):
            self.pf_item("W", i, None)(e)
        if self.pf0: self.pf_item("W", 0, None)(e)
        for tau in range(NT):
            k = self.kv_index(tau)
            if k in self.park and self.park[k][1] < 0:
                for it in self.dma_items(tau, "load"): it(e)
        e(f"""
        s_sub_u32 s{sWX}, s{sW4096}, {XBASE}
        s_lshl_b32 s{s2W}, s{sWave}, 1
        s_lshl_b32 s{sW128}, s{sWave}, 7
        s_lshl_b32 s{sW2048}, s{sWave}, 11
        s_lshl_b32 s{sW4}, s{sWave}, 2
        s_mov_b32 s{sC}, 0x{f32bits(math.log2(math.e)/16.0):08x}
        s_mov_b32 s{sIter}, 0
        s_mov_b32 s{sFlag}, 0
        s_mul_i32 s{sObo}, s7, {8*10240}
        s_sub_u32 s{sObo}, s{sObo}, {8*8*10240}
        s_add_u32 s{sObx}, s{sObo}, 8192
        s_add_u32 s{sObo}, s{sObo}, s{sW2048}
        v_bfe_u32 v36, v35, 1, 3
        v_xor_b32 v36, v36, v34
        v_lshlrev_b32 v36, 4, v36
        v_lshl_add_u32 v{vKP}, v35, 7, v36
        v_add_u32 v{vKPX}, {XBASE}, v{vKP}
        v_and_b32 v36, 15, v33                        ; i
        v_lshrrev_b32 v37, 2, v36                     ; rho = i/4
        v_and_b32 v38, 3, v36                         ; cc
        v_bfe_u32 v39, v33, 4, 1                      ; g%2
        v_lshlrev_b32 v42, 6, v37
        v_lshl_add_u32 v42, v39, 5, v42               ; rho*64 + (g%2)*32
        v_lshl_add_u32 v43, v34, 2, v37
        v_lshl_add_u32 v43, v43, 9, v42
        v_lshl_add_u32 v43, v38, 3, v43
        v_xor_b32 v43, s{sW128}, v43
        v_accvgpr_write_b32 a{aTV}, v43
        v_lshl_add_u32 v43, v34, 3, v37
        v_lshl_add_u32 v43, v43, 9, v42
        v_and_b32 v36, 1, v38
        v_lshrrev_b32 v38, 1, v38
        v_lshl_add_u32 v38, v36, 1, v38
        v_lshl_add_u32 v43, v38, 3, v43
        v_accvgpr_write_b32 a{aTW}, v43
        v_lshlrev_b32 v36, 10, v39                    ; (row/16)*1024
        v_lshl_add_u32 v36, v34, 8, v36
        v_and_b32 v37, 15, v33
        v_lshl_add_u32 v{vOo}, v37, 4, v36
        v_add_u32 v{vL16}, {XBASE}, v48
        """)
        if not self.fused:
            e(f"""
            v_lshlrev_b32 v36, 4, v34
            v_lshl_add_u32 v36, v39, 2, v36
            v_bfe_u32 v37, v33, 2, 2
            v_add_u32 v36, v36, v37
            v_mul_u32_u24 v36, 896, v36
            v_and_b32 v37, 3, v33
            v_lshl_add_u32 v36, v37, 3, v36
            s_mul_i32 s{sT1}, s{sWave}, 224
            s_add_u32 s{sT1}, s{sT1}, {WST}
            v_add_u32 v36, s{sT1}, v36
            s_mul_i32 s{sT0}, s5, {WT_BLK}
            s_mul_i32 s{sT1}, s58, 28672
            s_add_u32 s{sT0}, s{sT0}, s{sT1}
            s_mul_i32 s{sT1}, s{sWave}, 7168
            s_add_u32 s{sT0}, s{sT0}, s{sT1}
            s_add_u32 s{sT0}, s{sT0}, {WT_OFF}
            s_mov_b32 s{sWs+2}, {WT_OFF + 2*WT_BLK}
            s_mov_b32 s{sWs+3}, 0x20000
            """)
        NM = len(self.M)
        done = set()
        for i in range(self.start[45], NM):
            for sl, t in self.upd[i]:
                if sl == 0: e(t)
        if self.warm: e(warm_call("A", sWave))
        if not self.fused:
            e.wait(vm=("wo",))
            e("s_barrier")
            for c in range(7):
                e.lds_op(f"ds_read_b64_tr_b16 v[{96+4*c}:{97+4*c}], v36 offset:{32*c}", ("wt", c))
                e.lds_op(f"ds_read_b64_tr_b16 v[{98+4*c}:{99+4*c}], v36 offset:{32*c+8*896}", ("wt", c))
            for c in range(7):
                e.wait(lds=("wt", c))
                if c == 4: e(f"s_add_u32 s{sT0}, s{sT0}, 4096")
                e.vm_op(f"buffer_store_dwordx4 v[{96+4*c}:{99+4*c}], v48, {srd(sWs)}, s{sT0} offen offset:{1024*(c%4)}{self.opol}", ("wst",))
        e(f"""
        s_lshl_b32 s{sT0}, s5, 4
        s_add_u32 s{sT0}, s{sT0}, s6
        s_lshl_b32 s{sSig}, s{sT0}, 2
        s_mov_b32 s{sDbg}, s98
        s_mov_b32 s{sDbg+1}, s99
        s_mov_b32 s{sDbg+2}, 256
        s_mov_b32 s{sDbg+3}, 0x20000
        {f"s_mul_i32 s{sT0}, s2, {OP_WG}" if self.fused else f"s_mul_i32 s{sT0}, s{sT0}, {O_GB}"}
        s_add_u32 s{sT0}, s{sT0}, {O_OFF}
        s_add_u32 s{sO}, s{sWs}, s{sT0}
        s_addc_u32 s{sO+1}, s{sWs+1}, 0
        s_mov_b32 s{sO+2}, 0
        {f"s_mul_i32 s{sObo}, s{sWave}, 20480" if self.fused else ""}
        {f"v_mov_b32 v{vOo}, v48" if self.fused else ""}
        v_mov_b32 v{vLo}, 0
        v_mov_b32 v{vLx}, 0
        """)
        if self.fused:
            e(f"""s_lshl_b32 s{sT1}, s{sSig}, 6
            s_add_u32 s{sT1}, s{sT1}, {CT_OFF}
            s_add_u32 s98, s{sWs}, s{sT1}
            s_addc_u32 s99, s{sWs+1}, 0
            s_add_u32 s{sT1}, s7, s{sWave}
            s_cmp_lg_u32 s{sT1}, 0
            s_cbranch_scc1 L_nozero
            s_mov_b64 exec, 1
            global_store_dword v{vLo}, v{vLo}, s[98:99] sc1
            s_mov_b64 exec, -1
            L_nozero:""")
        self.stamp(e)
        for i in range(self.LA):
            self.lookahead(e, i)
        for it in late: it(e)

if __name__ == "__main__":
    from asmlib import *
    import sys
    def out(name, **kw):
        k = K1(stamps=True, **kw)
        e = k.gen()
        print(name, "instructions", e.ninst, "auto nops", e.nops, len(k.pass1_nops))
        for x in k.pass1_nops[:12]: print("   ", x)
        write_file(f"work/{name}.s", [(NAME + "_kernel", 256, 256, LDS1)], [(NAME + "_kernel", e.text(), 512, 256, 102)])
        return k
    k = out("k1")
    print([round(sum(max(32, c) for c in k.cost[k.start[n]:k.start[n]+20])) for n in range(NS)])
    base = "samekv samew nost cyc "
    out("a0", mode=base, kvpol="")
    out("a1", mode=base, kvpol="", LA=5, WSTEP=1)
    out("a2", mode=base + "nodma", kvpol="")
    out("a3", mode=base + "nodma nobar", kvpol="")
    out("a5", mode=base + "nofill", kvpol="")
    out("k1c", mode="cyc")
```

```python
from asmlib import *
from gen3 import K3, LDS, NS, G
def build3(path, kw={}, stamps=False, verbose=False):
    k = K3(stamps=stamps, **kw); e = k.gen(code_bytes=90112)
    print(path, "inst", e.ninst, "nops", e.nops, "sim", len(k.sim_nops))
    if verbose:
        for x in k.sim_nops + e.noplog[-6:]: print("  ", x)
        for v in range(2): print([round(sum(max(16, c) for c in k.sc.cost[v][n*G:(n+1)*G])) for n in range(NS if v == 0 else 14)])
        print({k.tiles[t]: round(g/G, 1) for t, g in k.first_gap.items()}); print(k.pos)
    write_file(path, [(NAME + "_kernel", 256, 256, LDS)], [(NAME + "_kernel", page_stubs(e.text(), "A", "L_end"), 512, 256, 102)])
r2 = ["v80", "a0", "a16", "a32", "a48", "a64"]
def park2(fs): return {k: (r2[k], f) for k, f in enumerate(fs)}
C1 = dict(park0=park2([0.9, 2.6, 4.2, 5.8, 7.6, 9.62]), park1=park2([0.9, 2.6, 4.2, 5.8, 7.6, 9.62]))
if __name__ == "__main__":
    W = "work/"
    build3(W + "b3_a.s", dict(C1, mode="slot"), stamps=True, verbose=True)
    build3(W + "b3_rel.s", C1)
```

```python
import math, struct
from emit import Emit
from asmlib import warm_call

def f32bits(x): return struct.unpack("<I", struct.pack("<f", x))[0]

PP_OFF = 0x100000
PP_GB = 140 * 8 * 1024
CT_OFF = PP_OFF + 32 * PP_GB
RB = 32768
LDS = RB + 8 * 16384
NFB = 8
TTHR = 10.0
NS, NT, G = 46, 53, 40
NM = NS * G
QEND = 14 * G

sX, sW, sK, sV = 8, 12, 16, 20
sWave, sW4096, sWoff, sKVoff, sT0, sT1, sC, sFlag, sIter = 28, 29, 32, 33, 34, 35, 36, 37, 38
sXE, sWB0, sWB1, sW128, sW2048, sW4, sT3, sRet, sSh, sT4 = 39, 40, 41, 44, 45, 46, 47, 48, 50, 51
sWs, sWoP, sHalf, sKVk, sPW = 52, 54, 24, 26, 27
sStamp = 60
sCode = 42
sDbg, sCt, sSig = 92, 98, 100
vDKV, vDW, vDX, vDE, vKP, vA, vL16, vXA = 0, 2, 4, 6, 7, 8, 16, 17
vMO, vMX, vLO, vLX, vT0, vT1, vT4 = 18, 20, 22, 24, 26, 27, 28
X, Y, P0, P1, SXA, SXB = 32, 96, 160, 192, 224, 240
XO, XE, OX = 32, 48, 64
aDK, aDV, aTW, aTV, aDE, aPO, aPW, aDummy, aDo, aDx, aSave = 224, 226, 228, 229, 230, 231, 232, 233, 234, 235, 236
def PK(k): return 192 + 8*k if k < 4 else 128 + 8*(k-4) if k < 8 else 240 + 8*(k-8)

def q4(f, i): return "%s[%d:%d]" % (f, i, i + 3)
def srd(s): return "s[%d:%d]" % (s, s + 3)

class Item:
    def __init__(self, f, cost, kind="v", sc=None, pv=None): self.f = f; self.cost = cost; self.kind = kind; self.sc = sc or []; self.pv = pv
    def __call__(self, e): self.f(e)
    def full(self, e):
        if self.pv: e(self.pv)
        for t in self.sc: e(t)
        self.f(e)

def cost_of(text):
    c = 0
    for l in text.split("\n"):
        l = l.strip()
        if not l or l.endswith(":"): continue
        c += 8 if l.startswith(("v_exp", "v_rcp")) else 4
    return c

class Sched:
    def __init__(self, n, split=0, wrap=False):
        self.n = n; self.split = split; self.wrap = wrap
        self.hard = [[[] for _ in range(n)] for v in range(2)]
        self.fill = [[[] for _ in range(n)] for v in range(2)]
        self.cost = [[8.0] * n for v in range(2)]
        self.head = [[[] for _ in range(n)] for v in range(2)]
        self.ws = 4
    def _vs(self, g, var): return [0] if g >= self.split else ([0, 1] if var is None else [var])
    def put(self, g, it, var=None, hard=False):
        if self.wrap: g %= self.n
        g = min(g, self.n - 1)
        for v in self._vs(g, var):
            (self.hard if hard else self.fill)[v][g].append(it); self.cost[v][g] += it.cost
    def putm(self, g, it, var=None):
        out = []
        h = g
        for t in reversed(it.sc):
            while True:
                hh = h % self.n if self.wrap else max(h, 0)
                vs = self._vs(hh, var)
                if ((hh + 1) % self.ws and not any(self.head[v][hh] for v in vs)) or h <= g - 3: break
                h -= 1
            x = Item(lambda e, t=t: e(t), 0, "s")
            for v in vs:
                if self.head[v][hh] or (hh + 1) % self.ws == 0: self.cost[v][hh] += 4
                self.head[v][hh].insert(0, x)
            out.insert(0, (h, -1, x))
        if it.pv:
            x = Item(lambda e: e(it.pv), cost_of(it.pv)); self.put(g - 1, x, var, True); out.append((g - 1, 1, x))
        self.put(g, it, var, True); out.append((g, 1, it))
        return out
    def spread(self, items, lo, hi, var=None):
        if var is None and lo < self.split:
            assert hi <= self.split
            for v in range(2): self.spread(items, lo, hi, v)
            return
        v = 0 if lo >= self.split else var
        tot = sum(it.cost for it in items)
        base = [self.cost[v][g] for g in range(lo, hi)]
        a, b = min(base), max(base) + tot
        for _ in range(40):
            mid = (a + b) / 2
            if sum(max(0, mid - x) for x in base) >= tot: b = mid
            else: a = mid
        room = [max(0, b - x) for x in base]
        cum = 0; k = 0; acc = 0
        for gi in range(hi - lo):
            cum += room[gi]
            while k < len(items) and (acc + items[k].cost / 2 <= cum or gi == hi - lo - 1):
                acc += items[k].cost; self.put(lo + gi, items[k], var); items[k].gap = lo + gi; k += 1

class K3:
    def __init__(self, stamps=False, mode="", LA=12, WS=4, dmacost=10, park0=None, park1=None, psp=4, epi_end=10,
                 pace=(6, 14, 1.14), skips=(12, 20, 28), pfq=10.1, slp=1, outpol="", retouch=True):
        self.retouch = retouch; self.kvpol = '' if 'samekv' in mode else ' nt'
        self.stamps = stamps; self.mode = mode; self.LA = LA; self.WS = WS; self.dmacost = dmacost
        self.park = [park0 or {}, park1 or {}]; self.psp = psp; self.epi_end = epi_end; self.pace = pace
        self.pfq = pfq; self.slp = slp; self.outpol = outpol
        assert self.park[0].keys() == self.park[1].keys()
        self.clk = 's_memtime' if 'cyc' in mode else 's_memrealtime'
        T = []
        for i in range(7): T += [("X", i), ("W", 2*i), ("W", 2*i+1)]
        T += [("K", j) for j in range(16)] + [("V", j) for j in range(16)]
        self.tiles = T
        self.cons = [{"X": 2*j, "W": j, "K": 14 + j, "V": 30 + j}[k] for k, j in T]
        rel = [self.cons[i] + (1 if T[i][0] == "X" else 2) for i in range(NT)]
        p = 0; self.pos = []
        for i in range(NT):
            if i - 21 in skips: p += 1
            self.pos.append(p % 8); p += 1
        assert p % 8 == 0
        self.avail = []
        for i in range(NT):
            k = 1
            while self.pos[(i - k) % NT] != self.pos[i]: k += 1
            self.avail.append(rel[(i - k) % NT] - (NS if i - k < 0 else 0))
        self.tpos = {T[i]: self.pos[i] for i in range(NT)}

    @staticmethod
    def slot_kind(n):
        n %= NS
        return ("W", n) if n < 14 else ("K", n - 14) if n < 30 else ("V", n - 30)
    def I(self, text): return Item(lambda e: e(text), cost_of(text))
    def L(self, text, tag, cost=4): return Item(lambda e: e.lds_op(text, tag), cost, "m")
    def kvi(self, tau):
        k, j = self.tiles[tau]
        return {"K": j, "V": 16 + j}.get(k)

    def dma_items(self, tau, part=None, var=0):
        kind, j = self.tiles[tau]; p = self.pos[tau]
        tag = ("tile", kind, j)
        if kind == "W": base, o, d2, vb, s, pol = sWoff, j * 262144, 30720, vDW, sW, ""
        elif kind == "K": base, o, d2, vb, s, pol = sKVk, (j // 4) * 65536 + (j % 4) * 128, 6144, vDKV, sK, self.kvpol
        elif kind == "V": base, o, d2, vb, s, pol = sKVoff, j * 16384, 2048, vDKV, sV, self.kvpol
        else: base, o, d2, vb, s, pol = None, j * 128, 12288, vDX, sX, ""
        if kind == "K" and "kcont" in self.mode: base, o, d2 = sKVoff, j * 16384, 2048
        if part is not None:
            R = self.park[var][self.kvi(tau)][0]
            reg = lambda q: q4(R[0], int(R[1:]) + 4*q)
        if part == "drain":
            def mkd(q):
                def f(e):
                    if q == 0: e.wait(vm=tag)
                    e.lds_op(f"ds_write_b128 v{vT4+3}, {reg(q)} offset:{(p & 3) * 16384 + 1024*q}", ("pub",))
                return Item(f, 15, "m", pv=(f"v_add_u32 v{vT4+3}, s{sWB1 if p >> 2 else sWB0}, v{vL16}" if q == 0 else None))
            return [mkd(q) for q in range(4)]
        so = sT0 if part is None else sT4
        def mk(q):
            sc = []; pv = None
            if q == 0:
                aD_ = aDV if "kcont" in self.mode else aDK
                if (kind, j) == ("K", 0): pv = f"v_accvgpr_read_b32 v{vDKV}, a{aD_}\nv_accvgpr_read_b32 v{vDKV+1}, a{aD_+1}"
                if (kind, j) == ("V", 0): pv = f"v_accvgpr_read_b32 v{vDKV}, a{aDV}\nv_accvgpr_read_b32 v{vDKV+1}, a{aDV+1}"
                if part is None: sc.append(f"s_add_u32 m0, s{sW4096}, {RB + 16384 * p}")
                sc.append(f"s_movk_i32 s{so}, {o}" if base is None else f"s_add_u32 s{so}, s{base}, {o}")
            if q == 2: sc.append(f"s_add_u32 s{so}, s{so}, {d2}")
            if q == 3 and (kind, j) == ("V", 15):
                sc += [f"s_add_u32 s{sKVoff}, s{sKVoff}, {8*262144}", f"s_add_u32 s{sKVk}, s{sKVk}, {8*262144}"]
            if q == 4:
                v = vDE
                if "slot" in self.mode: v = vT4 + 2; pv = f"v_accvgpr_read_b32 v{v}, a{aDE}"
                sc = [f"s_add_u32 m0, s{sXE}, {4096*j}", f"s_movk_i32 s{sT0}, {o}"]
                t = f"buffer_load_dwordx4 v{v}, {srd(s)}, s{sT0} offen lds"
            elif part is None: t = f"buffer_load_dwordx4 v{vb + (q & 1)}, {srd(s)}, s{so} offen offset:{1024*q}{pol} lds"
            else: t = f"buffer_load_dwordx4 {reg(q)}, v{vb + (q & 1)}, {srd(s)}, s{so} offen offset:{1024*q}{pol}"
            return Item(lambda e: e.vm_op(t, tag), self.dmacost, "m", sc, pv)
        return [mk(q) for q in range(5 if kind == "X" else 4)]

    def slot_mfmas(self, n):
        kind, j = self.slot_kind(n)
        po = (self.tpos[(kind, j)] & 3) * 16384
        L = []
        def pair(accf, acc, frag, Bf, B0, first, tags=(None, None)):
            for nu in range(2):
                L.append(dict(acc=q4(accf, acc + 8*nu), frag=(frag if nu == 0 else None), B=q4(Bf, B0 + 4*nu), first=first, lds=tags[nu]))
        if kind == "W":
            kp = j & 1; i = j // 2
            def own(mu): pair("v", Y + 16*(mu >> 1) + 4*(mu & 1), ("tr", mu & 7, po + (mu >> 3) * 256, 2048), "v", XO + 8*kp, j == 0, (("xo", i, 2*kp), ("xo", i, 2*kp+1)))
            def ext(m): pair("v", SXA + 16*(m >> 1) + 4*(m & 1), ("trx", m, po, 2048), "v", XE + 8*kp, j == 0, (("xe", i, 2*kp), ("xe", i, 2*kp+1)))
            if j < 13:
                for mu in range(8): own(mu)
                for m in range(4): ext(m)
                for mu in range(8, 16): own(mu)
            else:
                for m in range(4): ext(m)
                for mu in range(16): own(mu)
        elif kind == "K":
            g, c = j // 4, j % 4
            SB = X if g % 2 == 0 else Y; SX = SXA if g % 2 == 0 else SXB
            for mu in range(8):
                for kp in range(2):
                    pair("v", SB + 16*(mu >> 1) + 4*(mu & 1), ("b128", kp, po + mu * 2048), "a", 8*(2*c + kp), c == 0 and kp == 0)
            for e_ in range(2):
                for kp in range(2):
                    k = 2*c + kp
                    pair("v", SX + 4*e_, ("b128", 2 + kp, po + e_ * 2048), "a", 64 + 8*k, c == 0 and kp == 0,
                         (("qx", 2*k), ("qx", 2*k+1)) if g == 0 else (None, None))
        else:
            g, T = j // 4, j % 4
            PB = [P0, P1, X, Y][g]
            for mu in range(16):
                pair("a", 16*(mu >> 1) + 4*(mu & 1), ("tr", mu & 7, po + (mu >> 3) * 256, 8192), "v", PB + 8*T, j == 0)
                if (mu & 7) < 2:
                    pair("v", OX + 16*(mu >> 3) + 4*(mu & 1), None, "v", SXA + 8*(j & 1), j == 0, (("px", j, 0), ("px", j, 1)))
        assert len(L) == G
        return L

    def addr_updates(self, n):
        kind, j = self.slot_kind(n); pk, pj = self.slot_kind(n - 1)
        win = self.tpos[(kind, j)] >> 2; base = RB + 65536 * win
        if kind == pk:
            if win == self.tpos[(pk, pj)] >> 2: return []
            return [(r, f"v_xor_b32 v{vA+r}, 0x10000, v{vA+r}", None) for r in range(4 if kind == "K" else 8)]
        if kind == "K":
            return [(0, f"v_add_u32 v{vA}, {base}, v{vKP}", None), (1, f"v_xor_b32 v{vA+1}, 64, v{vA}", 0),
                    (2, f"v_add_u32 v{vA+2}, s{sW4096}, v{vA}", 0), (3, f"v_add_u32 v{vA+3}, s{sW4096}, v{vA+1}", 1)]
        U = [(0, f"v_accvgpr_read_b32 v{vA}, a{aTV if kind == 'V' else aTW}\nv_add_u32 v{vA}, {base}, v{vA}", None)]
        return U + [(r, f"v_xor_b32 v{vA+r}, {32*r}, v{vA}", 0) for r in range(1, 8)]

    def fold(self, a, b, op):
        I = self.I
        return [I(f"v_permlane32_swap_b32 v{a}, v{b}\n{op} v{a}, v{a}, v{b}"), I(f"v_mov_b32 v{b}, v{a}"),
                I(f"v_permlane16_swap_b32 v{a}, v{b}\n{op} v{a}, v{a}, v{b}")]
    def maxtree(self, SB, nblk, a, b):
        F = []
        for nu, t in ((0, a), (1, b)):
            src = [SB + 16*k + 8*nu + i for k in range(nblk) for i in range(8)]
            ops = [f"v_max3_f32 v{t}, v{src[0]}, v{src[1]}, v{src[2]}"]
            for i in range(3, len(src) - 1, 2): ops.append(f"v_max3_f32 v{t}, v{t}, v{src[i]}, v{src[i+1]}")
            ops.append(f"v_max_f32 v{t}, v{t}, v{src[-1]}")
            F.append(ops)
        return [self.I(x) for p in zip(*F) for x in p] + self.fold(a, b, "v_max_f32")
    def max_update(self, g, vM, aD, nm):
        I = self.I
        if g == 0:
            return [I(f"v_mul_f32 v{vM}, s{sC}, v{vT0}\nv_ceil_f32 v{vM}, v{vM}"), I(f"v_mov_b32 v{vM+1}, v{vM}"),
                    I(f"v_accvgpr_write_b32 a{aD}, 0"), I(f"v_permlane32_swap_b32 v{vM}, v{vM+1}")]
        lab = f"L_rare_{nm}{g}"
        return [I(f"v_cndmask_b32 v{vT1}, v{vM+1}, v{vM}, s[{sHalf}:{sHalf+1}]\nv_fma_f32 v{vT1}, v{vT0}, s{sC}, -v{vT1}\n"
                  f"v_cmp_lt_f32 vcc, 0x{f32bits(TTHR):08x}, v{vT1}\ns_cbranch_vccnz {lab}\n{lab}_back:")]
    def rare_block(self, e, g, vM, vL, aD, nm):
        lab = f"L_rare_{nm}{g}"
        e(f"""{lab}:
        v_cndmask_b32 v{vT1}, v{vM+1}, v{vM}, s[{sHalf}:{sHalf+1}]
        v_mul_f32 v{vM}, s{sC}, v{vT0}
        v_ceil_f32 v{vM}, v{vM}
        v_max_f32 v{vM}, v{vM}, v{vT1}
        v_sub_f32 v{vT0}, v{vM}, v{vT1}
        v_mov_b32 v{vM+1}, v{vM}
        v_min_f32 v{vT0}, 0x437f0000, v{vT0}
        v_cvt_u32_f32 v{vT0}, v{vT0}
        v_permlane32_swap_b32 v{vM}, v{vM+1}
        v_accvgpr_read_b32 v{vT1}, a{aD}
        v_lshl_or_b32 v{vT1}, v{vT0}, {8*(g-1)}, v{vT1}
        v_accvgpr_write_b32 a{aD}, v{vT1}
        v_sub_u32 v{vT0}, 0, v{vT0}
        v_mov_b32 v{vT1}, v{vT0}
        s_nop 1
        v_permlane32_swap_b32 v{vT0}, v{vT1}
        v_ldexp_f32 v{vL}, v{vL}, v{vT0}
        v_ldexp_f32 v{vL+1}, v{vL+1}, v{vT1}
        s_bitset1_b32 s{sFlag}, {g}
        s_nop 1
        s_branch {lab}_back""")
    def exp_block(self, SB, n, PD, vM, vL, first):
        I = self.I; F = []
        nu = lambda p: (p >> 2) & 1
        def tail(p):
            a, b = SB + 2*p, SB + 2*p + 1; l = vL + nu(p)
            if first and p in (0, 4): r = [I(f"v_add_f32 v{l}, v{a}, v{b}")]
            else: r = [I(f"v_add_f32 v{l}, v{l}, v{a}"), I(f"v_add_f32 v{l}, v{l}, v{b}")]
            return r + [I(f"v_cvt_pk_bf16_f32 v{PD+p}, v{a}, v{b}")]
        for p in range(n // 2):
            a, b = SB + 2*p, SB + 2*p + 1; m = vM + nu(p)
            F += [I(f"v_fma_f32 v{a}, v{a}, s{sC}, -v{m}"), I(f"v_fma_f32 v{b}, v{b}, s{sC}, -v{m}"), I(f"v_exp_f32 v{a}, v{a}")]
            if p > 0: F += tail(p - 1)[:1]
            F.append(I(f"v_exp_f32 v{b}, v{b}"))
            if p > 0: F += tail(p - 1)[1:]
        return F + tail(n // 2 - 1)

    def qfrag(self, b):
        I = self.I
        return [I(f"v_cvt_pk_bf16_f32 v{b+i}, v{b+2*i}, v{b+2*i+1}") for i in range(4)]
    def qswap(self, b):
        return [self.I(f"v_permlane16_swap_b32 v{b}, v{b+2}"), self.I(f"v_permlane16_swap_b32 v{b+1}, v{b+3}")]
    def q_convert(self, k):
        F = []
        for nu in range(2): F += self.qfrag(Y + 16*k + 8*nu)
        for nu in range(2):
            b = Y + 16*k + 8*nu
            F += self.qswap(b) + [self.I(f"v_accvgpr_write_b32 a{8*k+4*nu+i}, v{b+i}") for i in range(4)]
        return F
    def norm_tile(self, k, tmp, dstf, dst):
        I = self.I; F = []
        vl = vLO if k < 8 else vLX
        if k >= 8: tmp = OX + 16 * (k - 8)
        else: F += [I(f"v_accvgpr_read_b32 v{tmp+i}, a{16*k+i}") for i in range(16)]; F[-1].epi = k
        F += [I(f"v_mul_f32 v{tmp+i}, v{tmp+i}, v{vl + (i >> 3)}") for i in range(16)]
        if dstf == "v": F += [I(f"v_cvt_pk_bf16_f32 v{dst+i}, v{tmp+2*i}, v{tmp+2*i+1}") for i in range(8)]
        else:
            F += [I(f"v_cvt_pk_bf16_f32 v{tmp+i}, v{tmp+2*i}, v{tmp+2*i+1}") for i in range(8)]
            F += [I(f"v_accvgpr_write_b32 a{dst+i}, v{tmp+i}") for i in range(8)]
        if k >= 8: F[-1].epi = k
        return F

    def number(self, M, pfx):
        fid = -1
        for m in M:
            if m["frag"] is not None: fid += 1
            m["fid"] = (pfx, fid); m["fb"] = 160 + 4 * (fid % NFB)
        return fid + 1
    def read_items(self, m, vbase):
        fr = m["frag"]; b = m["fb"]; t = m["fid"]
        if fr[0] == "b128": return [self.L(f"ds_read_b128 a[{b}:{b+3}], v{vbase+fr[1]} offset:{fr[2]}", t)]
        v = vbase + fr[1]; pv = None
        if fr[0] == "trx":
            v = vT0 + (fr[1] & 1); pv = f"v_xor_b32 v{v}, s{sW128}, v{vbase+fr[1]}"
        r0 = self.L(f"ds_read_b64_tr_b16 a[{b}:{b+1}], v{v} offset:{fr[2]}", t); r0.pv = pv
        return [r0, self.L(f"ds_read_b64_tr_b16 a[{b+2}:{b+3}], v{v} offset:{fr[2]+fr[3]}", t)]
    def barrier_item(self, tag, n=None):
        def f(e):
            pubs = [t for t in e.lds[e.lds_done:] if t == ("pub",)]
            e.wait(vm=tag, lds=(("pub",) if pubs else None))
            if "slot" in self.mode and n is not None:
                e(f"v_writelane_b32 v{vDE}, s{86 + 2*((n+1)&1)}, {(n + NS - 1) % NS}")
            e("s_barrier")
            if "slot" in self.mode and n is not None: e(f"s_memtime s[{86 + 2*(n&1)}:{87 + 2*(n&1)}]")
        return Item(f, 24, "m")
    def need(self, M, i):
        n = len(M); m = M[i % n]
        l = [m["fid"]]
        if m.get("lds"): l.append(m["lds"])
        if i % self.WS == 0: l.append(M[min(i % n + self.WS - 1, n - 1)]["fid"])
        return l
    def emit_range(self, e, M, sc, var, lo, hi, pre=None, cyc=True):
        n = len(M); carry = []
        for i in range(lo, hi):
            m = M[i]; v = var if i < sc.split else 0
            if pre and i in pre:
                for it in pre[i]: it(e)
            e.wait(lds=[m["fid"]] + ([m["lds"]] if m.get("lds") else []))
            e(f"v_mfma_f32_16x16x32_bf16 {m['acc']}, a[{m['fb']}:{m['fb']+3}], {m['B']}, {'0' if m['first'] else m['acc']}")
            if i + 1 < n or cyc:
                issued = set(e.lds[-64:])
                l = [t for t in self.need(M, i + 1) if t in issued]
                if l: e.wait(lds=l)
                else: e.waits.append((None, None))
            for it in sc.head[v][i]: it(e)
            seq = carry + sc.fill[v][i]; carry = []
            k = 0
            while k < len(seq) and seq[k].kind != "v": k += 1
            for it in sc.hard[v][i]:
                if it.kind != "v": it(e)
            for it in seq[:k]: it(e)
            for it in sc.hard[v][i]:
                if it.kind == "v": it(e)
            rest = seq[k:]
            for j, it in enumerate(rest):
                if it.kind == "m" and i + 1 < hi: carry = rest[j:]; break
                it(e)

    def build(self):
        LA = self.LA; I = self.I; L = self.L
        M = [m for n in range(NS) for m in self.slot_mfmas(n)]
        assert self.number(M, "f") % NFB == 0
        sc = Sched(NM, QEND, wrap=True)
        S = lambda n: n * G
        sc.ws = self.WS
        self.carry = []
        def hard(g, it, c=False):
            sc.put(g, it, hard=True)
            if c: self.carry.append((g, 0, it))
        xr = {}
        for n in range(NS):
            hard(S(n) - LA, self.barrier_item(("tile",) + self.slot_kind(n), n), n == 0)
            kind, j = self.slot_kind(n)
            if kind == "W" and j % 2 == 0:
                i = j // 2; p = self.tpos[("X", i)]; o = (p & 3) * 16384
                hard(S(n) - LA - 2, I(f"v_add_u32 v{vXA}, s{sWB1 if p >> 2 else sWB0}, v{vKP}"), n == 0)
                for nu in range(2): hard(S(n) - LA, L(f"ds_read_b128 {q4('v', XO+4*nu)}, v{vXA} offset:{o + 2048*nu}", ("xo", i, nu)), n == 0)
                seq = [L(f"ds_read_b128 {q4('v', XE+4*nu)}, v{vKP} offset:{4096*i + 2048*nu}", ("xe", i, nu)) for nu in range(2)]
                seq += [I(f"v_xor_b32 v{vXA}, 64, v{vXA}")] + [L(f"ds_read_b128 {q4('v', XO+8+4*nu)}, v{vXA} offset:{o + 2048*nu}", ("xo", i, 2+nu)) for nu in range(2)]
                seq += [I(f"v_xor_b32 v{vXA}, 64, v{vKP}")] + [L(f"ds_read_b128 {q4('v', XE+8+4*nu)}, v{vXA} offset:{4096*i + 2048*nu}", ("xe", i, 2+nu)) for nu in range(2)]
                xr[n] = seq
        trx = []
        lastuse = [dict() for _ in range(NS)]; firstuse = [dict() for _ in range(NS)]
        for i, m in enumerate(M):
            if m["frag"] is None: continue
            R = self.read_items(m, vA)
            for k, it in enumerate(R): hard(i - LA + k, it, i - LA + k < 0)
            r = m["frag"][1]; x = 1 if R[0].pv else 0
            if x: trx.append((i - LA - 1, I(R[0].pv)))
            lastuse[i // G][r] = i - LA + (len(R) - 1 if not x else -1)
            firstuse[i // G].setdefault(r, i - LA)
        for n in range(NS):
            pos = {}; used = {}
            prev = lastuse[(n - 1) % NS]; off = -NM if n == 0 else 0
            for r, text, dep in self.addr_updates(n):
                p = max(prev.get(r, S(n - 1) - off) + off, pos[dep] if dep is not None else -10**9)
                while used.get(p, 0) >= 1 and p + 1 < firstuse[n][r]: p += 1
                assert p < firstuse[n][r], (n, r, p)
                used[p] = used.get(p, 0) + 1; pos[r] = p
                hard(p, I(text), n == 0 and p < 0)
        for g, it in trx: hard(g, it)
        for n, seq in xr.items():
            for k, it in enumerate(seq): sc.put(S(n) + 1 + 3 * k, it)
        order = list(range(21, NT)) + list(range(21))
        want = []
        for tau in order:
            g = (self.avail[tau] + (NS if tau < 21 else 0)) * G - LA + 2
            k = self.kvi(tau)
            if k is not None and k >= self.pace[0]: g = max(g, int(round((self.pace[1] + (k - self.pace[0]) * self.pace[2]) * G)))
            if want: g = max(g, want[-1])
            want.append(g)
        self.first_gap = {}; cur = -1000
        for n_, tau in enumerate(order):
            parked = self.kvi(tau) in self.park[0]
            g = max(want[n_], cur)
            later = [w for w in want[n_+1:] + [want[0] + NM] if w > g]
            backlog = sum(1 for w in want[n_:] if w <= g)
            nit = 5 if self.tiles[tau][0] == "X" else 4
            room = (later[0] - g) if backlog <= 1 else max(later[0] - g, 36) / backlog
            sp = max(4, min(8, int(room // nit)))
            self.first_gap[tau] = g
            deadline = (self.cons[tau] + (NS if tau < 21 else 0)) * G - LA
            assert g + sp * nit + (20 if parked else 50) < deadline, (tau, g, deadline)
            for v in ([0, 1] if parked else [None]):
                for k, it in enumerate(self.dma_items(tau, "drain" if parked else None, v or 0)):
                    gg = g + sp * k
                    if parked: assert gg < QEND
                    for g_, o_, x_ in sc.putm(gg, it, v):
                        x_.dma = True
                        if tau < 21 and g_ < NM: self.carry.append((g_ - NM, o_, x_))
            cur = g + sp * nit
        assert cur <= want[0] + NM
        self.pro_park = []
        for v in range(2):
            for tau in range(21, NT):
                k = self.kvi(tau)
                if k in self.park[v]:
                    g0 = int(round(self.park[v][k][1] * G))
                    assert g0 + 3 * self.psp + 60 < self.first_gap[tau], (k, g0)
                    its = self.dma_items(tau, "load", v)
                    if g0 < 0:
                        assert v == 0; self.pro_park += its
                    else:
                        for q, it in enumerate(its): sc.putm(g0 + self.psp * q, it, v)
        for c in range(4):
            for s in range(4):
                f = 4*c + s
                sc.put(S(14 + c) + 4 + 4*s, L(f"ds_read_b128 {q4('a', 64+4*f)}, v{vL16} offset:{f*1024}", ("qx", f)))
        for j in range(16):
            for nu in range(2):
                sc.put(S(30 + j) - 16 + 5*nu, L(f"ds_read_b128 {q4('v', SXA+8*(j&1)+4*nu)}, v{vL16} offset:{(2*j+nu)*1024}", ("px", j, nu)))
        g = int(self.pfq * G); assert g > self.first_gap[20] - NM + 32
        pf0 = Item(lambda e: e.vm_op(f"buffer_load_dword a{aDummy}, v{vT4}, {srd(sW)}, s{sWoff} offen", ("pf",)), 16, "m",
                   [f"s_add_u32 s{sWoff}, s{sWoff}, 4096"], f"v_accvgpr_read_b32 v{vT4}, a{aPW}")
        def pf1f(e):
            e.vm_op(f"buffer_load_dword a{aDummy}, v{vT4}, {srd(sW)}, 0 offen", ("pf",))
            e(f"s_mov_b32 s{sW+2}, 0\ns_mov_b32 s{sX+2}, 0")
        pf1 = Item(pf1f, 24, "m", [f"s_mov_b32 s{sW}, s{sWoP}", f"s_mov_b32 s{sW+1}, s{sWoP+1}"], f"v_accvgpr_read_b32 v{vT4}, a{aPO}")
        if self.retouch:
            sc.put(g - 2, Item(lambda e: e.vm_op(f"buffer_load_dword a{aDummy}, v{vL16}, s[56:59], s{sCode} offen", ("pf",)), 16, "m"))
        sc.putm(g, pf0, 0); sc.putm(g, pf1, 1)
        def arm(e):
            e(f"""s_add_u32 s{sT1}, s7, s{sWave}
            s_cmp_lg_u32 s{sT1}, 0
            s_cbranch_scc1 L_noarm
            s_waitcnt vmcnt(0)
            v_mov_b32 v{vT4}, s{sSig}
            v_mov_b32 v{vT4+1}, 1
            s_mov_b64 exec, 1
            buffer_atomic_add v{vT4+1}, v{vT4}, {srd(sDbg)}, 0 offen sc1
            s_mov_b64 exec, -1
            L_noarm:""")
        sc.put(S(12) + 30, Item(arm, 12), 0)
        epi = [it for k in [9, 8] + list(range(8)) for it in self.norm_tile(k, OX, "a", PK(k))]
        sc.spread(epi, 0, int(self.epi_end * G), 1)
        done = {it.epi: it.gap for it in epi if hasattr(it, "epi")}
        for k, (R, f) in self.park[1].items():
            assert f * G > done[9 if R[0] == "v" else int(R[1:]) // 16], (k, R, f, done)
        qx = [I(f"v_add_u32 v{vT4}, s{sW4096}, v{vL16}")]
        for f in range(4): qx += self.qfrag(SXA + 8*f)
        for f in range(4): qx += self.qswap(SXA + 8*f) + [L(f"ds_write_b128 v{vT4}, {q4('v', SXA+8*f)} offset:{f*1024}", ("pub",), 16)]
        sc.spread(qx, S(13) + 10, S(14) - LA - 2)
        sc.spread(self.q_convert(0), S(13) + 16, S(13) + 30)
        sc.spread(self.q_convert(1), S(13) + 30, S(14))
        for c in range(3): sc.spread(self.q_convert(2 + 2*c) + self.q_convert(3 + 2*c), S(14 + c), S(15 + c) - 2)
        sc.put(S(14), I(f"s_mov_b32 s{sFlag}, 0"))
        for g in range(4):
            SX = SXA if g % 2 == 0 else SXB; q0 = S(18 + 4*g)
            x1 = self.maxtree(SX, 1, vT4, vT4 + 1) + [I(f"v_add_u32 v{vT4+2}, s{sW4}, v{vL16}")]
            x1 += [L(f"ds_write_b32 v{vT4+2}, v{vT4} offset:{(4*g+r)*2048}", ("pub",), 8) for r in range(4)]
            f2 = [I(f"v_add_u32 v{vT0}, s{sW2048}, v{vL16}"), L(f"ds_read_b128 {q4('v', vT4)}, v{vT0} offset:{4*g*2048}", ("st", g))]
            def comb(e, g=g):
                e.wait(lds=("st", g))
                e(f"v_max3_f32 v{vT0}, v{vT4}, v{vT4+1}, v{vT4+2}\nv_max_f32 v{vT0}, v{vT0}, v{vT4+3}")
            g2 = [Item(comb, 8)] + self.max_update(g, vMX, aDx, "x") + self.exp_block(SX, 16, SX, vMX, vLX, g == 0)
            g2 += [I(f"v_add_u32 v{vT4}, s{sW2048}, v{vL16}")]
            g2 += [L(f"ds_write_b128 v{vT4}, {q4('v', SX+4*nu)} offset:{4*g*2048+nu*1024}", ("pub",), 16) for nu in range(2)]
            sc.spread(x1, q0 + 6, q0 + G - LA - 3); sc.spread(f2, q0 + 44, q0 + 48); sc.spread(g2, q0 + 56, q0 + 130)
        for g in range(4):
            SB = X if g % 2 == 0 else Y; q0 = S(18 + 4*g); q1 = q0 + 4*G if g < 3 else S(42) - 4
            om = self.maxtree(SB, 4, vT0, vT1) + self.max_update(g, vMO, aDo, "o")
            nm = 20 if g < 3 else 30
            sc.spread(om, q0, q0 + nm)
            sc.spread(self.exp_block(SB, 64, [P0, P1, X, Y][g], vMO, vLO, g == 0), q0 + nm, q1 - 2)
        pre = {}
        for g in range(1, 4):
            pre[S(30 + 4*g)] = [I(f"s_bitcmp1_b32 s{sFlag}, {g}\ns_cbranch_scc0 L_nores{g}\ns_mov_b32 s{sSh}, {8*(g-1)}\n"
                                  f"s_call_b64 s[{sRet}:{sRet+1}], L_rescale\nL_nores{g}:")]
        if self.stamps:
            pre.setdefault(S(14), []).append(I(f"{self.clk} s[{sStamp+20}:{sStamp+21}]"))
            pre.setdefault(S(30), []).append(I(f"{self.clk} s[{sStamp+22}:{sStamp+23}]"))
        lx = self.fold(vLX, vLX + 1, "v_add_f32") + [I(f"v_add_u32 v{vT0}, s{sW4}, v{vL16}"), L(f"ds_write_b32 v{vT0}, v{vLX} offset:16384", ("pub",), 8)]
        sc.spread(lx, S(40), S(40) + 20)
        def lx2(e):
            e.wait(lds=("lx",))
            e(f"v_add_f32 v{vT4}, v{vT4}, v{vT4+1}\nv_add_f32 v{vT4+2}, v{vT4+2}, v{vT4+3}\nv_add_f32 v{vLX}, v{vT4}, v{vT4+2}\nv_rcp_f32 v{vLX}, v{vLX}")
        expand = lambda r: [I(f"v_mov_b32 v{r+1}, v{r}"), I("s_nop 0"), I(f"v_permlane32_swap_b32 v{r}, v{r+1}")]
        sc.put(S(41) + 4, L(f"ds_read_b128 {q4('v', vT4)}, v{vL16} offset:16384", ("lx",)))
        sc.spread([Item(lx2, 20)] + expand(vLX), S(41) + 18, S(41) + 30)
        sc.spread(self.fold(vLO, vLO + 1, "v_add_f32") + [I(f"v_rcp_f32 v{vLO}, v{vLO}")] + expand(vLO), S(42), S(42) + 24)
        self.M, self.sc, self.pre = M, sc, pre

    def gen(self, code_bytes):
        self.build()
        M, sc, pre = self.M, self.sc, self.pre
        def run(ov, sim):
            e = Emit(); e.wait_override = ov
            self.prologue(e, code_bytes)
            self.emit_range(e, M, sc, 0, 0, QEND, pre)
            e("L_kv:")
            w0 = len(e.waits)
            self.emit_range(e, M, sc, 0, QEND, NM, pre)
            w1 = len(e.waits)
            if self.stamps: e(f"{self.clk} s[{sStamp+24}:{sStamp+25}]")
            e(f"s_cmp_lg_u32 s{sIter}, 0\ns_cbranch_scc1 L_tail\ns_mov_b32 s{sIter}, 1")
            if self.stamps:
                e("s_waitcnt lgkmcnt(0)")
                for k in range(6): e(f"s_mov_b32 s{sStamp+4+k}, s{sStamp+20+k}")
            if "slot" in self.mode: e(f"v_accvgpr_write_b32 a{aSave+3}, v{vDE}")
            self.emit_range(e, M, sc, 1, 0, QEND, pre)
            e("s_branch L_kv")
            w2 = len(e.waits)
            if sim: self.emit_range(e, M, sc, 0, QEND, NM, pre)
            return e, w0, w1, w2
        e, w0, w1, w2 = run(None, True)
        self.sim_nops = list(e.noplog)
        mn = lambda a, b: b if a is None else a if b is None else min(a, b)
        wa = e.waits
        ov = wa[:w0] + [(mn(a[0], b[0]), mn(a[1], b[1])) for a, b in zip(wa[w0:w1], wa[w2:])] + wa[w1:w2]
        e, w0, w1, w2 = run(ov, False)
        e.wait_override = None
        e("L_tail:")
        e("s_nop 7")
        self.tail(e)
        if self.stamps: self.dump_stamps(e)
        e("L_end:\ns_endpgm")
        for g in range(1, 4):
            self.rare_block(e, g, vMO, vLO, aDo, "o"); self.rare_block(e, g, vMX, vLX, aDx, "x")
        t = P0
        e("L_rescale:\ns_nop 15")
        for k, aD in enumerate((aDo, aDx)):
            a = t + 2*k
            e(f"v_accvgpr_read_b32 v{a}, a{aD}\nv_lshrrev_b32 v{a}, s{sSh}, v{a}\nv_and_b32 v{a}, 255, v{a}\nv_sub_u32 v{a}, 0, v{a}\nv_mov_b32 v{a+1}, v{a}")
            e(f"v_permlane32_swap_b32 v{a}, v{a+1}")
        for i in range(32): e(f"v_ldexp_f32 v{OX+i}, v{OX+i}, v{t + 2 + ((i >> 3) & 1)}")
        for i in range(0, 128, 8):
            for q in range(8): e(f"v_accvgpr_read_b32 v{t+8+q}, a{i+q}")
            for q in range(8): e(f"v_ldexp_f32 v{t+8+q}, v{t+8+q}, v{t + ((i >> 3) & 1)}")
            for q in range(8): e(f"v_accvgpr_write_b32 a{i+q}, v{t+8+q}")
        e(f"s_nop 3\ns_setpc_b64 s[{sRet}:{sRet+1}]")
        return e

    def dump_stamps(self, e):
        e(f"s_waitcnt vmcnt(0)\n{self.clk} s[{sStamp+16}:{sStamp+17}]\ns_waitcnt lgkmcnt(0)")
        e(f"s_mov_b32 s{sWs+2}, 0x100000\ns_mov_b32 s{sWs+3}, 0x20000")
        if "slot" in self.mode:
            e(f"s_lshl_b32 s{sT0}, s2, 2\ns_add_u32 s{sT0}, s{sT0}, s{sWave}\ns_lshl_b32 s{sT0}, s{sT0}, 9\ns_add_u32 s{sT0}, s{sT0}, 0x10000")
            e(f"v_lshrrev_b32 v40, 2, v{self.vLn}")
            e(f"buffer_store_dword a{aSave+3}, v40, {srd(sWs)}, s{sT0} offen")
            e(f"buffer_store_dword a{aSave+2}, v40, {srd(sWs)}, s{sT0} offen offset:256")
        e(f"s_mul_i32 s{sT0}, s2, 96\ns_cmp_lg_u32 s{sWave}, 0\ns_cbranch_scc1 L_end\nv_mov_b32 v40, s{sT0}\ns_mov_b64 exec, 1")
        for k, sr in enumerate([0, 1, 2, 3, 4, 10, 11, 12, 5, 6, 7, 8]):
            e(f"v_mov_b32 v42, s{sStamp+2*sr}\nv_mov_b32 v43, s{sStamp+2*sr+1}")
            e(f"buffer_store_dwordx2 v[42:43], v40, {srd(sWs)}, 0 offen offset:{8*k}\ns_nop 1")

    def tail(self, e):
        LA = self.LA; I = self.I; L = self.L
        sWo, sP, sOut = sW, sX, sK
        sWb, sPo, sPx, sOb, sColo, sCohi = sWoff, 30, 31, sKVoff, sXE, sKVk
        vD0, vO, vLn, vXw, vXr, vOut, vArm, vSig = 0, 112, vL16, 2, 3, 7, 4, 5
        self.vLn = vLn
        OB1 = 32; ACC = [128, 192]
        st = lambda k: e(f"{self.clk} s[{sStamp+2*k}:{sStamp+2*k+1}]") if self.stamps else None
        if "slot" in self.mode: e(f"v_accvgpr_write_b32 a{aSave+2}, v{vDE}")
        e(f"""
        s_load_dwordx2 s[{sOut}:{sOut+1}], s[0:1], 80
        s_mov_b32 s{sWo+2}, 3670016
        s_mul_i32 s{sWb}, s7, {256*896}
        s_mul_i32 s{sT0}, s{sWave}, {32*896}
        s_add_u32 s{sWb}, s{sWb}, s{sT0}
        v_lshrrev_b32 v2, 7, v{vLn}
        v_mul_u32_u24 v2, 896, v2
        v_and_b32 v3, 0x70, v{vLn}
        v_lshrrev_b32 v4, 3, v{vLn}
        v_and_b32 v4, 0x60, v4
        v_xor_b32 v3, v3, v4
        v_add_u32 v{vD0}, v2, v3
        v_add_u32 v{vD0+1}, {8*896-1024}, v{vD0}
        v_mov_b32 v{vSig}, s{sSig}
        """)
        e.wait_all(vm=True, lds=True)
        e("s_barrier")
        tiles = [(cb, hd, half) for cb in range(7) for hd, half in ((1, 0), (1, 1), (0, 0), (0, 1))]
        def dma(i):
            cb, hd, half = tiles[i]
            def mk(q):
                sc_ = [f"s_add_u32 m0, s{sW4096}, {RB + (i % 8) * 16384}", f"s_add_u32 s{sT0}, s{sWb}, {(hd * 2048 + 128 * half) * 896 + cb * 128}"] if q == 0 else [f"s_add_u32 s{sT0}, s{sT0}, 12288"] if q == 2 else []
                return Item(lambda e: e.vm_op(f"buffer_load_dwordx4 v{vD0 + (q & 1)}, {srd(sWo)}, s{sT0} offen offset:{1024*q} lds", ("ot", i)), self.dmacost, "m", sc_)
            return [mk(q) for q in range(4)]
        pre = [it for i in range(6) for it in dma(i)]
        conv = [it for kk, k in enumerate([8, 9, 0, 1, 2, 3, 4, 5, 6, 7]) for it in self.norm_tile(k, ACC[1] + 16 * (kk & 1), "v", OB1 + 8*k)]
        nfirst = 48 + 160
        setup = f"""
        v_bfe_u32 v8, v{vLn}, 6, 4
        v_lshlrev_b32 v9, 7, v8
        v_bfe_u32 v8, v{vLn}, 7, 2
        v_lshl_add_u32 v9, v8, 5, v9
        v_bfe_u32 v8, v{vLn}, 4, 2
        v_lshl_add_u32 v9, v8, 3, v9
        v_add_u32 v{vO}, s{sWB0}, v9
        v_bfe_u32 v8, v{vLn}, 4, 4
        v_mul_u32_u24 v8, 1792, v8
        v_bfe_u32 v9, v{vLn}, 8, 1
        v_lshl_add_u32 v8, v9, 5, v8
        v_bfe_u32 v9, v{vLn}, 9, 1
        v_lshl_add_u32 v{vOut}, v9, 4, v8
        s_lshl_b32 s{sT3}, s{sWave}, 13
        v_add_u32 v{vXw}, s{sT3}, v{vLn}
        v_add_u32 v{vXr}, s{sW2048}, v{vLn}
        s_lshr_b32 s{sT3}, s{sSig}, 2
        s_mul_i32 s{sT3}, s{sT3}, {PP_GB}
        s_add_u32 s{sT3}, s{sT3}, {PP_OFF}
        s_add_u32 s{sP}, s{sWs}, s{sT3}
        s_addc_u32 s{sP+1}, s{sWs+1}, 0
        s_mov_b32 s{sP+2}, {0 if "nops" in self.mode else PP_GB}
        s_lshl_b32 s{sPo}, s{sWave}, 5
        s_add_u32 s{sPo}, s{sPo}, s7
        s_lshl_b32 s{sPo}, s{sPo}, 10
        s_and_b32 s{sPx}, s{sWave}, 1
        s_lshl_b32 s{sPx}, s{sPx}, 1
        s_lshr_b32 s{sT3}, s{sWave}, 1
        s_add_u32 s{sPx}, s{sPx}, s{sT3}
        s_lshl_b32 s{sPx}, s{sPx}, 3
        s_add_u32 s{sPx}, s{sPx}, s7
        s_add_u32 s{sPx}, s{sPx}, 128
        s_lshl_b32 s{sPx}, s{sPx}, 10
        s_mul_i32 s{sOb}, s6, {160*1792}
        s_mul_i32 s{sT3}, s5, 896
        s_add_u32 s{sOb}, s{sOb}, s{sT3}
        s_mov_b32 s{sOut+2}, {16*160*896*2}
        s_mov_b32 s{sColo}, 0x3f80
        s_mov_b32 s{sCohi}, 0x3f800000
        """
        for i, it in enumerate(conv[:nfirst]):
            it(e)
            if i % 6 == 0 and pre: pre.pop(0).full(e)
        for it in pre: it.full(e)
        e.vm_op(f"buffer_load_dword v{vArm}, v{vSig}, {srd(sDbg)}, 0 offen sc1", ("arm",))
        e(setup)
        for r in range(1, 16): e(f"v_xor_b32 v{vO+r}, {(r >> 2) * 4096 + (r & 3) * 32}, v{vO}")
        st(5)
        M = []
        for n, (cb, hd, half) in enumerate(tiles):
            A0 = ACC[cb & 1]; po = (n & 3) * 16384
            for q in range(4):
                k = 4 * half + q
                for mu in range(4):
                    first = (n % 4 == 0 and q == 0)
                    for nu in range(2):
                        B = q4("v", OB1 + 8*k + 4*nu) if hd else q4("a", PK(k) + 4*nu)
                        M.append(dict(acc=q4("v", A0 + 16*(mu >> 1) + 8*nu + 4*(mu & 1)), frag=(("tr", 4*q + mu, po, 2048) if nu == 0 else None), B=B, first=first))
                    if q == 0:
                        for nu in range(2):
                            B = q4("v", OB1 + 64 + 8*half + 4*nu) if hd else q4("a", PK(8 + half) + 4*nu)
                            M.append(dict(acc=q4("v", A0 + 32 + 16*(mu >> 1) + 8*nu + 4*(mu & 1)), frag=None, B=B, first=first))
        self.number(M, "o")
        N2 = len(M); sc = Sched(N2)
        sc.ws = self.WS
        head = []
        def hard(g, it): head.append(it) if g < 0 else sc.put(g, it, hard=True)
        for n in range(28): hard(n * G - LA, self.barrier_item(("ot", n), n if "tslot" in self.mode else None))
        for i, m in enumerate(M):
            if m["frag"] is None: continue
            for k, it in enumerate(self.read_items(m, vO)): hard(i - LA + k, it)
            if (i // G) % 4 == 3 and i // G < 27: hard(i - LA + 1, I(f"v_xor_b32 v{vO+m['frag'][1]}, 0x10000, v{vO+m['frag'][1]}"))
        for n in range(22):
            for k, it in enumerate(dma(n + 6)): sc.putm(max(3, n * G - LA + 4) + 7 * k, it)
        sc.spread(conv[nfirst:], 0, G - 2)
        def block_out(cb):
            A0 = ACC[cb & 1]; own = []
            for pr in range(2):
                for nu in range(2):
                    b = A0 + 16*pr + 8*nu
                    def f(e, b=b, pr=pr, nu=nu):
                        e(f"s_add_u32 s{sT1}, s{sPo}, {(cb*20 + nu*2 + pr) * 8192}")
                        e.vm_op(f"buffer_store_dwordx4 {q4('v', b)}, v{vLn}, {srd(sP)}, s{sT1} offen sc1", ("ps",))
                    own += self.qfrag(b) + [Item(f, 20, 'm')]
            xb = A0 + 32
            wr = [L(f"ds_write_b128 v{vXw}, {q4('v', xb+4*j)} offset:{1024*j}", ("pub",), 16) for j in range(8)]
            rd = [L(f"ds_read_b128 {q4('v', xb+8*w+4*h)}, v{vXr} offset:{8192*w+1024*h}", ("xr", cb)) for w in range(4) for h in range(2)]
            ad = [Item(lambda e: e.wait(lds=("xr", cb)), 4)]
            for i in range(8): ad += [I(f"v_add_f32 v{xb+i}, v{xb+i}, v{xb+8+i}"), I(f"v_add_f32 v{xb+16+i}, v{xb+16+i}, v{xb+24+i}")]
            ad += [I(f"v_add_f32 v{xb+i}, v{xb+i}, v{xb+16+i}") for i in range(8)] + self.qfrag(xb)
            def f(e):
                e(f"s_add_u32 s{sT1}, s{sPx}, {cb * 20 * 8192}")
                e.vm_op(f"buffer_store_dwordx4 {q4('v', xb)}, v{vLn}, {srd(sP)}, s{sT1} offen sc1", ("ps",))
            return own, wr, rd, ad + [Item(f, 20, 'm')]
        for cb in range(6):
            own, wr, rd, ad = block_out(cb); g = 4 * G * (cb + 1)
            if "noblk" in self.mode: continue
            sc.spread(wr, g, g + G - LA - 3); sc.spread(rd, g + G, g + G + 20); sc.spread(own, g + 6, g + 76); sc.spread(ad, g + 80, g + 140)
        own6, wr6, rd6, ad6 = block_out(6)
        sc.spread(wr6, N2 - 20, N2 - 2)
        for it in head: it(e)
        self.emit_range(e, M, sc, 0, 0, N2, cyc=False)
        st(6)
        if "tslot" in self.mode: e(f"v_accvgpr_write_b32 a{aSave+2}, v{vDE}")
        e.wait_all(vm=False)
        e("s_barrier")
        for it in rd6 + own6 + ad6: it(e)
        e.wait_all(vm=True, lds=False)
        e("s_barrier")
        e(f"""v_mov_b32 v3, 1
        v_mov_b32 v2, 0
        s_cmp_lg_u32 s{sWave}, 0
        s_cbranch_scc1 L_sync_done
        s_mov_b64 exec, 1
        s_mov_b32 s{sT3}, 0
        L_arm_l:
        v_readfirstlane_b32 s{sT0}, v{vArm}
        s_add_u32 s{sT3}, s{sT3}, 1
        s_cmp_lg_u32 s{sT0}, 0
        s_cbranch_scc1 L_arm_ok
        s_cmp_gt_u32 s{sT3}, 0x200000
        s_cbranch_scc1 L_arm_ok
        s_sleep 8
        buffer_load_dword v{vArm}, v{vSig}, {srd(sDbg)}, 0 offen sc1
        s_waitcnt vmcnt(0)
        s_branch L_arm_l
        L_arm_ok:
        global_atomic_add v3, v2, v3, s[{sCt}:{sCt+1}] sc0 sc1
        s_waitcnt vmcnt(0)
        v_add_u32 v3, 1, v3
        L_sync_l:
        s_nop 0
        v_readfirstlane_b32 s{sT0}, v3
        s_add_u32 s{sT3}, s{sT3}, 1
        s_cmp_ge_u32 s{sT0}, 8
        s_cbranch_scc1 L_sync_ok
        s_cmp_gt_u32 s{sT3}, 0x200000
        s_cbranch_scc1 L_sync_ok
        s_sleep {self.slp}
        global_load_dword v3, v2, s[{sCt}:{sCt+1}] sc1
        s_waitcnt vmcnt(0)
        s_branch L_sync_l
        L_sync_ok:
        s_mov_b64 exec, -1
        L_sync_done:
        s_lshl_b32 s{sT4}, s7, 2
        s_add_u32 s{sT4}, s{sT4}, s{sWave}
        s_lshl_b32 s{sPo}, s{sT4}, 13
        s_barrier""")
        st(7)
        for i in range(5):
            for p in range(8):
                if p % 4 == 0: e(f"s_add_u32 s{sT1}, s{sPo}, {i * 32 * 8192 + (p // 4) * 4096}")
                e.vm_op(f"buffer_load_dwordx4 {q4('v', 64 + 32*i + 4*p)}, v{vLn}, {srd(sP)}, s{sT1} offen offset:{1024*(p%4)} sc1", ("pl", i, p))
        for i in range(5):
            acc = 32 + 8 * (i & 1); dst = 48 + 4 * (i & 1)
            e(f"""s_add_u32 s{sT0}, s{sT4}, {32*i}
            s_mul_i32 s{sT1}, s{sT0}, 3277
            s_lshr_b32 s{sT1}, s{sT1}, 16
            s_mul_i32 s{sT3}, s{sT1}, 20
            s_sub_u32 s{sT0}, s{sT0}, s{sT3}
            s_lshl_b32 s{sT1}, s{sT1}, 7
            s_and_b32 s{sT3}, s{sT0}, 1
            s_lshl_b32 s{sT3}, s{sT3}, 6
            s_add_u32 s{sT1}, s{sT1}, s{sT3}
            s_lshr_b32 s{sT0}, s{sT0}, 1
            s_mul_i32 s{sT0}, s{sT0}, {16*1792}
            s_add_u32 s{sT3}, s{sT1}, s{sT0}
            s_add_u32 s{sT3}, s{sT3}, s{sOb}""")
            if i == 4: e(f"s_cmp_lt_u32 s{sT4}, 12\ns_cselect_b32 s{sOut+2}, s{sOut+2}, 0")
            for p in range(8):
                b = 64 + 32 * i + 4 * p
                if p % 2 == 0: e.wait(vm=("pl", i, p + 1))
                for d in range(4):
                    if p == 0: e(f"v_lshlrev_b32 v{acc+2*d}, 16, v{b+d}\nv_and_b32 v{acc+2*d+1}, 0xffff0000, v{b+d}")
                    else: e(f"v_dot2_f32_bf16 v{acc+2*d}, v{b+d}, s{sColo}, v{acc+2*d}\nv_dot2_f32_bf16 v{acc+2*d+1}, v{b+d}, s{sCohi}, v{acc+2*d+1}")
            e("s_nop 2")
            for d in range(4): e(f"v_cvt_pk_bf16_f32 v{dst+d}, v{acc+2*d}, v{acc+2*d+1}")
            for it in self.qswap(dst): it(e)
            e.vm_op(f"buffer_store_dwordx4 {q4('v', dst)}, v{vOut}, {srd(sOut)}, s{sT3} offen{self.outpol}", ("st",))

    def prologue(self, e, code_bytes):
        e("s_cmp_ge_u32 s2, 256\ns_cbranch_scc1 L_end")
        if self.stamps: e(f"{self.clk} s[{sStamp}:{sStamp+1}]")
        e(f"""
        s_and_b32 s3, s2, 7
        s_lshr_b32 s4, s2, 3
        s_lshr_b32 s5, s3, 2
        s_mul_i32 s6, s5, 40
        s_add_u32 s30, s0, s6
        s_addc_u32 s31, s1, 0
        s_load_dwordx2 s[{sX}:{sX+1}], s[30:31], 0
        s_load_dwordx2 s[{sW}:{sW+1}], s[30:31], 24
        s_load_dwordx2 s[{sK}:{sK+1}], s[30:31], 8
        s_load_dwordx2 s[{sV}:{sV+1}], s[30:31], 16
        s_load_dwordx2 s[{sWoP}:{sWoP+1}], s[30:31], 32
        s_load_dwordx2 s[{sWs}:{sWs+1}], s[0:1], 96
        s_load_dwordx2 s[{sCt}:{sCt+1}], s[0:1], 88
        v_lshrrev_b32 v96, 6, v0
        v_and_b32 v97, 63, v0
        v_lshlrev_b32 v104, 4, v0
        v_readfirstlane_b32 s{sWave}, v96
        s_getpc_b64 s[56:57]
        s_mov_b32 s58, {code_bytes}
        s_mov_b32 s59, 0x20000
        s_lshl_b32 s{sCode}, s4, 12
        """)
        e.vm_op(f"buffer_load_dwordx4 a[0:3], v104, s[56:59], s{sCode} offen", ("code",))
        e(f"""
        s_and_b32 s7, s3, 3
        s_lshl_b32 s7, s7, 1
        s_and_b32 s6, s4, 1
        s_add_u32 s7, s7, s6
        s_lshr_b32 s6, s4, 1
        s_lshl_b32 s{sW4096}, s{sWave}, 12
        s_lshl_b32 s{sXE}, s{sWave}, 10
        s_lshl_b32 s{sWoff}, s7, 9
        v_lshrrev_b32 v98, 5, v97          ; hf
        v_and_b32 v99, 31, v97
        v_lshrrev_b32 v105, 3, v97         ; l/8
        v_and_b32 v103, 7, v97
        v_bfe_u32 v106, v97, 4, 1          ; kg0
        v_lshl_add_u32 v107, v106, 1, v98
        """)
        for q in range(2):
            e(f"""
            v_xor_b32 v101, v107, v103
            {"v_xor_b32 v101, 4, v101" if q else ""}
            v_lshlrev_b32 v101, 4, v101
            v_subrev_u32 v101, {1024*q}, v101
            v_add_u32 v100, {8*q}, v105
            v_lshl_add_u32 v102, v100, 9, v101
            v_accvgpr_write_b32 a{aDK+q}, v102
            v_lshl_add_u32 v100, v96, 5, v100
            v_mul_u32_u24 v102, 896, v100
            v_add_u32 v{vDX+q}, v102, v101
            """)
        e(f"""
        v_and_b32 v100, 1, v96
        v_lshlrev_b32 v108, 2, v100        ; 4*w0
        v_xor_b32 v101, v107, v103
        v_xor_b32 v101, v101, v108
        v_lshlrev_b32 v101, 4, v101
        v_lshl_add_u32 v100, v96, 3, v105
        v_add_u32 v100, 128, v100
        v_mul_u32_u24 v102, 896, v100
        v_add_u32 v{vDE}, v102, v101
        v_accvgpr_write_b32 a{aDE}, v{vDE}
        v_lshrrev_b32 v109, 1, v96         ; w1
        """)
        for q in range(2):
            e(f"""
            v_add3_u32 v100, v108, v98, {2*q}
            v_lshlrev_b32 v101, 1, v100
            v_xor_b32 v101, v101, v99
            v_lshlrev_b32 v101, 4, v101
            v_subrev_u32 v101, {1024*q}, v101
            v_lshl_add_u32 v102, v109, 4, v100
            v_lshl_add_u32 v102, v102, 9, v101
            v_accvgpr_write_b32 a{aDV+q}, v102
            v_lshl_add_u32 v102, v108, 2, v98
            v_lshl_add_u32 v102, v109, 3, v102
            v_add_u32 v102, {2*q}, v102
            v_lshl_add_u32 v{vDW+q}, v102, 13, v101
            """)
        e(f"""
        s_mul_i32 s{sT1}, s6, 143360
        s_mov_b32 s{sX+2}, 143360
        s_mov_b32 s{sX+3}, 0x20000
        s_mov_b32 s{sW+2}, 3670016
        s_mov_b32 s{sW+3}, 0x20000
        s_waitcnt lgkmcnt(0)
        s_add_u32 s{sX}, s{sX}, s{sT1}
        s_addc_u32 s{sX+1}, s{sX+1}, 0
        """)
        carry = sorted(self.carry, key=lambda t: (t[0], t[1]))
        dmas = [it for g, o, it in carry if g < -self.LA - 4 and getattr(it, "dma", False)]
        rest = [(g, it) for g, o, it in carry if not any(it is d for d in dmas)]
        for it in dmas: it(e)
        e(f"""
        s_lshl_b32 s{sKVoff}, s6, 4
        s_add_u32 s{sKVoff}, s{sKVoff}, s7
        s_lshl_b32 s{sKVoff}, s{sKVoff}, 18
        {f"s_mov_b32 s{sKVoff}, 0" if "samekv" in self.mode else ""}
        s_lshl_b32 s{sKVk}, s{sWave}, 14
        s_add_u32 s{sKVk}, s{sKVk}, s{sKVoff}
        s_mov_b32 s{sK+2}, 0x4000000
        s_mov_b32 s{sK+3}, 0x20000
        s_mov_b32 s{sV+2}, 0x4000000
        s_mov_b32 s{sV+3}, 0x20000
        """)
        for it in self.pro_park: it.full(e)
        e(f"""
        s_add_u32 s{sCode}, s{sCode}, s{sXE}
        s_add_u32 s{sWB0}, s{sW4096}, {RB}
        s_add_u32 s{sWB1}, s{sW4096}, {RB + 65536}
        s_lshl_b32 s{sW128}, s{sWave}, 7
        s_lshl_b32 s{sW2048}, s{sWave}, 11
        s_lshl_b32 s{sW4}, s{sWave}, 2
        s_mov_b32 s{sC}, 0x{f32bits(math.log2(math.e)/16.0):08x}
        s_mov_b32 s{sIter}, 0
        s_mov_b32 s{sHalf}, -1
        s_mov_b32 s{sHalf+1}, 0
        v_lshlrev_b32 v{vL16}, 4, v97
        v_and_b32 v100, 15, v97                       ; n / i
        v_bfe_u32 v101, v100, 1, 1
        v_bfe_u32 v102, v100, 2, 1
        v_lshl_add_u32 v101, v101, 1, v102
        v_bfe_u32 v102, v100, 3, 1
        v_lshl_add_u32 v101, v102, 2, v101            ; f'(n)
        v_xor_b32 v101, v101, v107
        v_lshlrev_b32 v101, 4, v101
        v_lshl_add_u32 v{vKP}, v100, 7, v101
        v_lshrrev_b32 v101, 2, v100                   ; rho
        v_and_b32 v102, 3, v100                       ; cc
        v_lshl_add_u32 v110, v106, 2, v101
        v_lshlrev_b32 v110, 5, v110
        v_lshl_add_u32 v110, v102, 3, v110
        v_lshl_add_u32 v111, v106, 3, v101
        v_lshl_add_u32 v102, v98, 2, v111
        v_lshl_add_u32 v102, v102, 9, v110
        s_lshl_b32 s{sT1}, s{sWave}, 6
        v_xor_b32 v102, s{sT1}, v102
        v_accvgpr_write_b32 a{aTV}, v102
        v_lshl_add_u32 v102, v98, 4, v111
        v_lshl_add_u32 v102, v102, 9, v110
        v_accvgpr_write_b32 a{aTW}, v102
        v_lshlrev_b32 v100, 3, v104
        v_and_b32 v100, 0x3fff, v100
        v_cmp_gt_u32 vcc, 14336, v100
        v_lshrrev_b32 v101, 11, v104
        v_mul_u32_u24 v101, {8*229376}, v101
        s_mul_i32 s{sT3}, s6, 14336
        s_mul_i32 s{sT1}, s7, 229376
        s_add_u32 s{sT3}, s{sT3}, s{sT1}
        v_add3_u32 v100, v100, v101, s{sT3}
        v_mov_b32 v101, 0x7ffffff0
        v_cndmask_b32 v100, v101, v100, vcc
        v_accvgpr_write_b32 a{aPO}, v100
        v_lshrrev_b32 v100, 6, v104
        v_lshlrev_b32 v100, 17, v100
        v_and_b32 v101, 48, v104
        v_lshl_add_u32 v100, v101, 3, v100
        s_lshl_b32 s{sT1}, s6, 13
        v_add_u32 v100, s{sT1}, v100
        v_accvgpr_write_b32 a{aPW}, v100
        s_lshl_b32 s{sSig}, s5, 4
        s_add_u32 s{sSig}, s{sSig}, s6
        s_lshl_b32 s{sSig}, s{sSig}, 2
        s_mov_b32 s{sDbg}, s{sCt}
        s_mov_b32 s{sDbg+1}, s{sCt+1}
        s_mov_b32 s{sDbg+2}, 128
        s_mov_b32 s{sDbg+3}, 0x20000
        s_lshl_b32 s{sT1}, s{sSig}, 6
        s_add_u32 s{sT1}, s{sT1}, {CT_OFF}
        s_add_u32 s{sCt}, s{sWs}, s{sT1}
        s_addc_u32 s{sCt+1}, s{sWs+1}, 0
        v_mov_b32 v100, 0
        s_add_u32 s{sT1}, s7, s{sWave}
        s_cmp_lg_u32 s{sT1}, 0
        s_cbranch_scc1 L_nozero
        s_mov_b64 exec, 1
        global_store_dword v100, v100, s[{sCt}:{sCt+1}] sc1
        s_mov_b64 exec, -1
        L_nozero:
        """)
        e(warm_call("A", sWave))
        if self.stamps: e(f"{self.clk} s[{sStamp+2}:{sStamp+3}]")
        for g, it in rest: it(e)
```

```python
from build3 import *
W = "work/"
build3(W + "g3_a.s", dict(C1, mode="slot tslot"), stamps=True)
build3(W + "g3_nops.s", dict(C1, mode="slot tslot nops"), stamps=True)
build3(W + "g3_noblk.s", dict(C1, mode="slot tslot noblk"), stamps=True)
```

```python
import math, struct
from emit import Emit
from asmlib import warm_call

def f32bits(x): return struct.unpack("<I", struct.pack("<f", x))[0]

PP_OFF = 0x100000
PP_GB = 140 * 8 * 1024
CT_OFF = PP_OFF + 32 * PP_GB
RB = 32768
LDS = RB + 8 * 16384
NFB = 8
TTHR = 10.0
NS, NT, G = 46, 53, 40
NM = NS * G
QEND = 14 * G

sX, sW, sK, sV = 8, 12, 16, 20
sWave, sW4096, sWoff, sKVoff, sT0, sT1, sC, sFlag, sIter = 28, 29, 32, 33, 34, 35, 36, 37, 38
sXE, sWB0, sWB1, sW128, sW2048, sW4, sT3, sRet, sSh, sT4 = 39, 40, 41, 44, 45, 46, 47, 48, 50, 51
sWs, sWoP, sHalf, sKVk, sPW = 52, 54, 24, 26, 27
sStamp = 60
sCode = 42
sDbg, sCt, sSig = 92, 98, 100
vDKV, vDW, vDX, vDE, vKP, vA, vL16, vXA = 0, 2, 4, 6, 7, 8, 16, 17
vMO, vMX, vLO, vLX, vT0, vT1, vT4 = 18, 20, 22, 24, 26, 27, 28
X, Y, P0, P1, SXA, SXB = 32, 96, 160, 192, 224, 240
XO, XE, OX = 32, 48, 64
aDK, aDV, aTW, aTV, aDE, aPO, aPW, aDummy, aDo, aDx, aSave = 224, 226, 228, 229, 230, 231, 232, 233, 234, 235, 236
def PK(k): return 192 + 8*k if k < 4 else 128 + 8*(k-4) if k < 8 else 240 + 8*(k-8)

def q4(f, i): return "%s[%d:%d]" % (f, i, i + 3)
def srd(s): return "s[%d:%d]" % (s, s + 3)

class Item:
    def __init__(self, f, cost, kind="v", sc=None, pv=None): self.f = f; self.cost = cost; self.kind = kind; self.sc = sc or []; self.pv = pv
    def __call__(self, e): self.f(e)
    def full(self, e):
        if self.pv: e(self.pv)
        for t in self.sc: e(t)
        self.f(e)

def cost_of(text):
    c = 0
    for l in text.split("\n"):
        l = l.strip()
        if not l or l.endswith(":"): continue
        c += 8 if l.startswith(("v_exp", "v_rcp")) else 4
    return c

class Sched:
    def __init__(self, n, split=0, wrap=False):
        self.n = n; self.split = split; self.wrap = wrap
        self.hard = [[[] for _ in range(n)] for v in range(2)]
        self.fill = [[[] for _ in range(n)] for v in range(2)]
        self.cost = [[8.0] * n for v in range(2)]
        self.head = [[[] for _ in range(n)] for v in range(2)]
        self.ws = 4
    def _vs(self, g, var): return [0] if g >= self.split else ([0, 1] if var is None else [var])
    def put(self, g, it, var=None, hard=False):
        if self.wrap: g %= self.n
        g = min(g, self.n - 1)
        for v in self._vs(g, var):
            (self.hard if hard else self.fill)[v][g].append(it); self.cost[v][g] += it.cost
    def putm(self, g, it, var=None):
        out = []
        h = g
        for t in reversed(it.sc):
            while True:
                hh = h % self.n if self.wrap else max(h, 0)
                vs = self._vs(hh, var)
                if ((hh + 1) % self.ws and not any(self.head[v][hh] for v in vs)) or h <= g - 3: break
                h -= 1
            x = Item(lambda e, t=t: e(t), 0, "s")
            for v in vs:
                if self.head[v][hh] or (hh + 1) % self.ws == 0: self.cost[v][hh] += 4
                self.head[v][hh].insert(0, x)
            out.insert(0, (h, -1, x))
        if it.pv:
            x = Item(lambda e: e(it.pv), cost_of(it.pv)); self.put(g - 1, x, var, True); out.append((g - 1, 1, x))
        self.put(g, it, var, True); out.append((g, 1, it))
        return out
    def spread(self, items, lo, hi, var=None):
        if var is None and lo < self.split:
            assert hi <= self.split
            for v in range(2): self.spread(items, lo, hi, v)
            return
        v = 0 if lo >= self.split else var
        tot = sum(it.cost for it in items)
        base = [self.cost[v][g] for g in range(lo, hi)]
        a, b = min(base), max(base) + tot
        for _ in range(40):
            mid = (a + b) / 2
            if sum(max(0, mid - x) for x in base) >= tot: b = mid
            else: a = mid
        room = [max(0, b - x) for x in base]
        cum = 0; k = 0; acc = 0
        for gi in range(hi - lo):
            cum += room[gi]
            while k < len(items) and (acc + items[k].cost / 2 <= cum or gi == hi - lo - 1):
                acc += items[k].cost; self.put(lo + gi, items[k], var); items[k].gap = lo + gi; k += 1

class K3:
    def __init__(self, stamps=False, mode="", LA=12, WS=4, dmacost=10, park0=None, park1=None, psp=4, epi_end=10,
                 pace=(6, 14, 1.14), skips=(12, 20, 28), pfq=10.1, slp=1, outpol="", retouch=True, pfs=None, nfirst=9, wpol=' nt', xpol='', sigs=(11, 19, 23), gates=((15, 24), (22.5, 14), (26, 8)), stw=40):
        self.sigs = sigs; self.gates = gates; self.stw = stw
        self.wpol = wpol; self.xpol = xpol
        self.pfs = pfs; self.nfirst = nfirst
        self.retouch = retouch; self.kvpol = '' if 'samekv' in mode else ' nt'
        self.stamps = stamps; self.mode = mode; self.LA = LA; self.WS = WS; self.dmacost = dmacost
        self.park = [park0 or {}, park1 or {}]; self.psp = psp; self.epi_end = epi_end; self.pace = pace
        self.pfq = pfq; self.slp = slp; self.outpol = outpol
        assert self.park[0].keys() == self.park[1].keys()
        self.clk = 's_memtime' if 'cyc' in mode else 's_memrealtime'
        T = []
        for i in range(7): T += [("X", i), ("W", 2*i), ("W", 2*i+1)]
        T += [("K", j) for j in range(16)] + [("V", j) for j in range(16)]
        self.tiles = T
        self.cons = [{"X": 2*j, "W": j, "K": 14 + j, "V": 30 + j}[k] for k, j in T]
        rel = [self.cons[i] + (1 if T[i][0] == "X" else 2) for i in range(NT)]
        p = 0; self.pos = []
        for i in range(NT):
            if i - 21 in skips: p += 1
            self.pos.append(p % 8); p += 1
        assert p % 8 == 0
        self.avail = []
        for i in range(NT):
            k = 1
            while self.pos[(i - k) % NT] != self.pos[i]: k += 1
            self.avail.append(rel[(i - k) % NT] - (NS if i - k < 0 else 0))
        self.tpos = {T[i]: self.pos[i] for i in range(NT)}

    @staticmethod
    def slot_kind(n):
        n %= NS
        return ("W", n) if n < 14 else ("K", n - 14) if n < 30 else ("V", n - 30)
    def I(self, text): return Item(lambda e: e(text), cost_of(text))
    def L(self, text, tag, cost=4): return Item(lambda e: e.lds_op(text, tag), cost, "m")
    def kvi(self, tau):
        k, j = self.tiles[tau]
        return {"K": j, "V": 16 + j}.get(k)

    def dma_items(self, tau, part=None, var=0):
        kind, j = self.tiles[tau]; p = self.pos[tau]
        tag = ("tile", kind, j)
        if kind == "W": base, o, d2, vb, s, pol = sWoff, j * 262144, 30720, vDW, sW, self.wpol
        elif kind == "K": base, o, d2, vb, s, pol = sKVk, (j // 4) * 65536 + (j % 4) * 128, 6144, vDKV, sK, self.kvpol
        elif kind == "V": base, o, d2, vb, s, pol = sKVoff, j * 16384, 2048, vDKV, sV, self.kvpol
        else: base, o, d2, vb, s, pol = None, j * 128, 12288, vDX, sX, self.xpol
        if kind == "K" and "kcont" in self.mode: base, o, d2 = sKVoff, j * 16384, 2048
        if part is not None:
            R = self.park[var][self.kvi(tau)][0]
            reg = lambda q: q4(R[0], int(R[1:]) + 4*q)
        if part == "drain":
            def mkd(q):
                def f(e):
                    if q == 0: e.wait(vm=tag)
                    e.lds_op(f"ds_write_b128 v{vT4+3}, {reg(q)} offset:{(p & 3) * 16384 + 1024*q}", ("pub",))
                return Item(f, 15, "m", pv=(f"v_add_u32 v{vT4+3}, s{sWB1 if p >> 2 else sWB0}, v{vL16}" if q == 0 else None))
            return [mkd(q) for q in range(4)]
        so = sT0 if part is None else sT4
        def mk(q):
            sc = []; pv = None
            if q == 0:
                aD_ = aDV if "kcont" in self.mode else aDK
                if (kind, j) == ("K", 0): pv = f"v_accvgpr_read_b32 v{vDKV}, a{aD_}\nv_accvgpr_read_b32 v{vDKV+1}, a{aD_+1}"
                if (kind, j) == ("V", 0): pv = f"v_accvgpr_read_b32 v{vDKV}, a{aDV}\nv_accvgpr_read_b32 v{vDKV+1}, a{aDV+1}"
                if part is None: sc.append(f"s_add_u32 m0, s{sW4096}, {RB + 16384 * p}")
                sc.append(f"s_movk_i32 s{so}, {o}" if base is None else f"s_add_u32 s{so}, s{base}, {o}")
            if q == 2: sc.append(f"s_add_u32 s{so}, s{so}, {d2}")
            if q == 3 and (kind, j) == ("V", 15):
                sc += [f"s_add_u32 s{sKVoff}, s{sKVoff}, {8*262144}", f"s_add_u32 s{sKVk}, s{sKVk}, {8*262144}"]
            if q == 4:
                v = vDE
                if "slot" in self.mode: v = vT4 + 2; pv = f"v_accvgpr_read_b32 v{v}, a{aDE}"
                sc = [f"s_add_u32 m0, s{sXE}, {4096*j}", f"s_movk_i32 s{sT0}, {o}"]
                t = f"buffer_load_dwordx4 v{v}, {srd(s)}, s{sT0} offen{pol} lds"
            elif part is None: t = f"buffer_load_dwordx4 v{vb + (q & 1)}, {srd(s)}, s{so} offen offset:{1024*q}{pol} lds"
            else: t = f"buffer_load_dwordx4 {reg(q)}, v{vb + (q & 1)}, {srd(s)}, s{so} offen offset:{1024*q}{pol}"
            return Item(lambda e: e.vm_op(t, tag), self.dmacost, "m", sc, pv)
        return [mk(q) for q in range(5 if kind == "X" else 4)]

    def slot_mfmas(self, n):
        kind, j = self.slot_kind(n)
        po = (self.tpos[(kind, j)] & 3) * 16384
        L = []
        def pair(accf, acc, frag, Bf, B0, first, tags=(None, None)):
            for nu in range(2):
                L.append(dict(acc=q4(accf, acc + 8*nu), frag=(frag if nu == 0 else None), B=q4(Bf, B0 + 4*nu), first=first, lds=tags[nu]))
        if kind == "W":
            kp = j & 1; i = j // 2
            def own(mu): pair("v", Y + 16*(mu >> 1) + 4*(mu & 1), ("tr", mu & 7, po + (mu >> 3) * 256, 2048), "v", XO + 8*kp, j == 0, (("xo", i, 2*kp), ("xo", i, 2*kp+1)))
            def ext(m): pair("v", SXA + 16*(m >> 1) + 4*(m & 1), ("trx", m, po, 2048), "v", XE + 8*kp, j == 0, (("xe", i, 2*kp), ("xe", i, 2*kp+1)))
            if j < 13:
                for mu in range(8): own(mu)
                for m in range(4): ext(m)
                for mu in range(8, 16): own(mu)
            else:
                for m in range(4): ext(m)
                for mu in range(16): own(mu)
        elif kind == "K":
            g, c = j // 4, j % 4
            SB = X if g % 2 == 0 else Y; SX = SXA if g % 2 == 0 else SXB
            for mu in range(8):
                for kp in range(2):
                    pair("v", SB + 16*(mu >> 1) + 4*(mu & 1), ("b128", kp, po + mu * 2048), "a", 8*(2*c + kp), c == 0 and kp == 0)
            for e_ in range(2):
                for kp in range(2):
                    k = 2*c + kp
                    pair("v", SX + 4*e_, ("b128", 2 + kp, po + e_ * 2048), "a", 64 + 8*k, c == 0 and kp == 0,
                         (("qx", 2*k), ("qx", 2*k+1)) if g == 0 else (None, None))
        else:
            g, T = j // 4, j % 4
            PB = [P0, P1, X, Y][g]
            for mu in range(16):
                pair("a", 16*(mu >> 1) + 4*(mu & 1), ("tr", mu & 7, po + (mu >> 3) * 256, 8192), "v", PB + 8*T, j == 0)
                if (mu & 7) < 2:
                    pair("v", OX + 16*(mu >> 3) + 4*(mu & 1), None, "v", SXA + 8*(j & 1), j == 0, (("px", j, 0), ("px", j, 1)))
        assert len(L) == G
        return L

    def addr_updates(self, n):
        kind, j = self.slot_kind(n); pk, pj = self.slot_kind(n - 1)
        win = self.tpos[(kind, j)] >> 2; base = RB + 65536 * win
        if kind == pk:
            if win == self.tpos[(pk, pj)] >> 2: return []
            return [(r, f"v_xor_b32 v{vA+r}, 0x10000, v{vA+r}", None) for r in range(4 if kind == "K" else 8)]
        if kind == "K":
            return [(0, f"v_add_u32 v{vA}, {base}, v{vKP}", None), (1, f"v_xor_b32 v{vA+1}, 64, v{vA}", 0),
                    (2, f"v_add_u32 v{vA+2}, s{sW4096}, v{vA}", 0), (3, f"v_add_u32 v{vA+3}, s{sW4096}, v{vA+1}", 1)]
        U = [(0, f"v_accvgpr_read_b32 v{vA}, a{aTV if kind == 'V' else aTW}\nv_add_u32 v{vA}, {base}, v{vA}", None)]
        return U + [(r, f"v_xor_b32 v{vA+r}, {32*r}, v{vA}", 0) for r in range(1, 8)]

    def fold(self, a, b, op):
        I = self.I
        return [I(f"v_permlane32_swap_b32 v{a}, v{b}\n{op} v{a}, v{a}, v{b}"), I(f"v_mov_b32 v{b}, v{a}"),
                I(f"v_permlane16_swap_b32 v{a}, v{b}\n{op} v{a}, v{a}, v{b}")]
    def maxtree(self, SB, nblk, a, b):
        F = []
        for nu, t in ((0, a), (1, b)):
            src = [SB + 16*k + 8*nu + i for k in range(nblk) for i in range(8)]
            ops = [f"v_max3_f32 v{t}, v{src[0]}, v{src[1]}, v{src[2]}"]
            for i in range(3, len(src) - 1, 2): ops.append(f"v_max3_f32 v{t}, v{t}, v{src[i]}, v{src[i+1]}")
            ops.append(f"v_max_f32 v{t}, v{t}, v{src[-1]}")
            F.append(ops)
        return [self.I(x) for p in zip(*F) for x in p] + self.fold(a, b, "v_max_f32")
    def max_update(self, g, vM, aD, nm):
        I = self.I
        if g == 0:
            return [I(f"v_mul_f32 v{vM}, s{sC}, v{vT0}\nv_ceil_f32 v{vM}, v{vM}"), I(f"v_mov_b32 v{vM+1}, v{vM}"),
                    I(f"v_accvgpr_write_b32 a{aD}, 0"), I(f"v_permlane32_swap_b32 v{vM}, v{vM+1}")]
        lab = f"L_rare_{nm}{g}"
        return [I(f"v_cndmask_b32 v{vT1}, v{vM+1}, v{vM}, s[{sHalf}:{sHalf+1}]\nv_fma_f32 v{vT1}, v{vT0}, s{sC}, -v{vT1}\n"
                  f"v_cmp_lt_f32 vcc, 0x{f32bits(TTHR):08x}, v{vT1}\ns_cbranch_vccnz {lab}\n{lab}_back:")]
    def rare_block(self, e, g, vM, vL, aD, nm):
        lab = f"L_rare_{nm}{g}"
        e(f"""{lab}:
        v_cndmask_b32 v{vT1}, v{vM+1}, v{vM}, s[{sHalf}:{sHalf+1}]
        v_mul_f32 v{vM}, s{sC}, v{vT0}
        v_ceil_f32 v{vM}, v{vM}
        v_max_f32 v{vM}, v{vM}, v{vT1}
        v_sub_f32 v{vT0}, v{vM}, v{vT1}
        v_mov_b32 v{vM+1}, v{vM}
        v_min_f32 v{vT0}, 0x437f0000, v{vT0}
        v_cvt_u32_f32 v{vT0}, v{vT0}
        v_permlane32_swap_b32 v{vM}, v{vM+1}
        v_accvgpr_read_b32 v{vT1}, a{aD}
        v_lshl_or_b32 v{vT1}, v{vT0}, {8*(g-1)}, v{vT1}
        v_accvgpr_write_b32 a{aD}, v{vT1}
        v_sub_u32 v{vT0}, 0, v{vT0}
        v_mov_b32 v{vT1}, v{vT0}
        s_nop 1
        v_permlane32_swap_b32 v{vT0}, v{vT1}
        v_ldexp_f32 v{vL}, v{vL}, v{vT0}
        v_ldexp_f32 v{vL+1}, v{vL+1}, v{vT1}
        s_bitset1_b32 s{sFlag}, {g}
        s_nop 1
        s_branch {lab}_back""")
    def exp_block(self, SB, n, PD, vM, vL, first):
        I = self.I; F = []
        nu = lambda p: (p >> 2) & 1
        def tail(p):
            a, b = SB + 2*p, SB + 2*p + 1; l = vL + nu(p)
            if first and p in (0, 4): r = [I(f"v_add_f32 v{l}, v{a}, v{b}")]
            else: r = [I(f"v_add_f32 v{l}, v{l}, v{a}"), I(f"v_add_f32 v{l}, v{l}, v{b}")]
            return r + [I(f"v_cvt_pk_bf16_f32 v{PD+p}, v{a}, v{b}")]
        for p in range(n // 2):
            a, b = SB + 2*p, SB + 2*p + 1; m = vM + nu(p)
            F += [I(f"v_fma_f32 v{a}, v{a}, s{sC}, -v{m}"), I(f"v_fma_f32 v{b}, v{b}, s{sC}, -v{m}"), I(f"v_exp_f32 v{a}, v{a}")]
            if p > 0: F += tail(p - 1)[:1]
            F.append(I(f"v_exp_f32 v{b}, v{b}"))
            if p > 0: F += tail(p - 1)[1:]
        return F + tail(n // 2 - 1)

    def qfrag(self, b):
        I = self.I
        return [I(f"v_cvt_pk_bf16_f32 v{b+i}, v{b+2*i}, v{b+2*i+1}") for i in range(4)]
    def qswap(self, b):
        return [self.I(f"v_permlane16_swap_b32 v{b}, v{b+2}"), self.I(f"v_permlane16_swap_b32 v{b+1}, v{b+3}")]
    def q_convert(self, k):
        F = []
        for nu in range(2): F += self.qfrag(Y + 16*k + 8*nu)
        for nu in range(2):
            b = Y + 16*k + 8*nu
            F += self.qswap(b) + [self.I(f"v_accvgpr_write_b32 a{8*k+4*nu+i}, v{b+i}") for i in range(4)]
        return F
    def norm_tile(self, k, tmp, dstf, dst):
        I = self.I; F = []
        vl = vLO if k < 8 else vLX
        if k >= 8: tmp = OX + 16 * (k - 8)
        else: F += [I(f"v_accvgpr_read_b32 v{tmp+i}, a{16*k+i}") for i in range(16)]; F[-1].epi = k
        F += [I(f"v_mul_f32 v{tmp+i}, v{tmp+i}, v{vl + (i >> 3)}") for i in range(16)]
        if dstf == "v": F += [I(f"v_cvt_pk_bf16_f32 v{dst+i}, v{tmp+2*i}, v{tmp+2*i+1}") for i in range(8)]
        else:
            F += [I(f"v_cvt_pk_bf16_f32 v{tmp+i}, v{tmp+2*i}, v{tmp+2*i+1}") for i in range(8)]
            F += [I(f"v_accvgpr_write_b32 a{dst+i}, v{tmp+i}") for i in range(8)]
        if k >= 8: F[-1].epi = k
        return F

    def number(self, M, pfx):
        fid = -1
        for m in M:
            if m["frag"] is not None: fid += 1
            m["fid"] = (pfx, fid); m["fb"] = 160 + 4 * (fid % NFB)
        return fid + 1
    def read_items(self, m, vbase):
        fr = m["frag"]; b = m["fb"]; t = m["fid"]
        if fr[0] == "b128": return [self.L(f"ds_read_b128 a[{b}:{b+3}], v{vbase+fr[1]} offset:{fr[2]}", t)]
        v = vbase + fr[1]; pv = None
        if fr[0] == "trx":
            v = vT0 + (fr[1] & 1); pv = f"v_xor_b32 v{v}, s{sW128}, v{vbase+fr[1]}"
        r0 = self.L(f"ds_read_b64_tr_b16 a[{b}:{b+1}], v{v} offset:{fr[2]}", t); r0.pv = pv
        return [r0, self.L(f"ds_read_b64_tr_b16 a[{b+2}:{b+3}], v{v} offset:{fr[2]+fr[3]}", t)]
    def barrier_item(self, tag, n=None):
        def f(e):
            pubs = [t for t in e.lds[e.lds_done:] if t == ("pub",)]
            e.wait(vm=tag, lds=(("pub",) if pubs else None))
            if "slot" in self.mode and n is not None:
                e(f"v_writelane_b32 v{vDE}, s{86 + 2*((n+1)&1)}, {(n + NS - 1) % NS}")
            e("s_barrier")
            if "slot" in self.mode and n is not None: e(f"s_memtime s[{86 + 2*(n&1)}:{87 + 2*(n&1)}]")
        return Item(f, 24, "m")
    def need(self, M, i):
        n = len(M); m = M[i % n]
        l = [m["fid"]]
        if m.get("lds"): l.append(m["lds"])
        if i % self.WS == 0: l.append(M[min(i % n + self.WS - 1, n - 1)]["fid"])
        return l
    def emit_range(self, e, M, sc, var, lo, hi, pre=None, cyc=True):
        n = len(M); carry = []
        for i in range(lo, hi):
            m = M[i]; v = var if i < sc.split else 0
            if pre and i in pre:
                for it in pre[i]: it(e)
            e.wait(lds=[m["fid"]] + ([m["lds"]] if m.get("lds") else []))
            e(f"v_mfma_f32_16x16x32_bf16 {m['acc']}, a[{m['fb']}:{m['fb']+3}], {m['B']}, {'0' if m['first'] else m['acc']}")
            if i + 1 < n or cyc:
                issued = set(e.lds[-64:])
                l = [t for t in self.need(M, i + 1) if t in issued]
                if l: e.wait(lds=l)
                else: e.waits.append((None, None))
            for it in sc.head[v][i]: it(e)
            seq = carry + sc.fill[v][i]; carry = []
            k = 0
            while k < len(seq) and seq[k].kind != "v": k += 1
            for it in sc.hard[v][i]:
                if it.kind != "v": it(e)
            for it in seq[:k]: it(e)
            for it in sc.hard[v][i]:
                if it.kind == "v": it(e)
            rest = seq[k:]
            for j, it in enumerate(rest):
                if it.kind == "m" and i + 1 < hi: carry = rest[j:]; break
                it(e)

    def build(self):
        LA = self.LA; I = self.I; L = self.L
        M = [m for n in range(NS) for m in self.slot_mfmas(n)]
        assert self.number(M, "f") % NFB == 0
        sc = Sched(NM, QEND, wrap=True)
        S = lambda n: n * G
        sc.ws = self.WS
        self.carry = []
        def hard(g, it, c=False):
            sc.put(g, it, hard=True)
            if c: self.carry.append((g, 0, it))
        xr = {}
        for n in range(NS):
            hard(S(n) - LA, self.barrier_item(("tile",) + self.slot_kind(n), n), n == 0)
            kind, j = self.slot_kind(n)
            if kind == "W" and j % 2 == 0:
                i = j // 2; p = self.tpos[("X", i)]; o = (p & 3) * 16384
                hard(S(n) - LA - 2, I(f"v_add_u32 v{vXA}, s{sWB1 if p >> 2 else sWB0}, v{vKP}"), n == 0)
                for nu in range(2): hard(S(n) - LA, L(f"ds_read_b128 {q4('v', XO+4*nu)}, v{vXA} offset:{o + 2048*nu}", ("xo", i, nu)), n == 0)
                seq = [L(f"ds_read_b128 {q4('v', XE+4*nu)}, v{vKP} offset:{4096*i + 2048*nu}", ("xe", i, nu)) for nu in range(2)]
                seq += [I(f"v_xor_b32 v{vXA}, 64, v{vXA}")] + [L(f"ds_read_b128 {q4('v', XO+8+4*nu)}, v{vXA} offset:{o + 2048*nu}", ("xo", i, 2+nu)) for nu in range(2)]
                seq += [I(f"v_xor_b32 v{vXA}, 64, v{vKP}")] + [L(f"ds_read_b128 {q4('v', XE+8+4*nu)}, v{vXA} offset:{4096*i + 2048*nu}", ("xe", i, 2+nu)) for nu in range(2)]
                xr[n] = seq
        trx = []
        lastuse = [dict() for _ in range(NS)]; firstuse = [dict() for _ in range(NS)]
        for i, m in enumerate(M):
            if m["frag"] is None: continue
            R = self.read_items(m, vA)
            for k, it in enumerate(R): hard(i - LA + k, it, i - LA + k < 0)
            r = m["frag"][1]; x = 1 if R[0].pv else 0
            if x: trx.append((i - LA - 1, I(R[0].pv)))
            lastuse[i // G][r] = i - LA + (len(R) - 1 if not x else -1)
            firstuse[i // G].setdefault(r, i - LA)
        for n in range(NS):
            pos = {}; used = {}
            prev = lastuse[(n - 1) % NS]; off = -NM if n == 0 else 0
            for r, text, dep in self.addr_updates(n):
                p = max(prev.get(r, S(n - 1) - off) + off, pos[dep] if dep is not None else -10**9)
                while used.get(p, 0) >= 1 and p + 1 < firstuse[n][r]: p += 1
                assert p < firstuse[n][r], (n, r, p)
                used[p] = used.get(p, 0) + 1; pos[r] = p
                hard(p, I(text), n == 0 and p < 0)
        for g, it in trx: hard(g, it)
        for n, seq in xr.items():
            for k, it in enumerate(seq): sc.put(S(n) + 1 + 3 * k, it)
        order = list(range(21, NT)) + list(range(21))
        want = []
        for tau in order:
            g = (self.avail[tau] + (NS if tau < 21 else 0)) * G - LA + 2
            k = self.kvi(tau)
            if k is not None and k >= self.pace[0]: g = max(g, int(round((self.pace[1] + (k - self.pace[0]) * self.pace[2]) * G)))
            if want: g = max(g, want[-1])
            want.append(g)
        self.first_gap = {}; cur = -1000
        for n_, tau in enumerate(order):
            parked = self.kvi(tau) in self.park[0]
            g = max(want[n_], cur)
            later = [w for w in want[n_+1:] + [want[0] + NM] if w > g]
            backlog = sum(1 for w in want[n_:] if w <= g)
            nit = 5 if self.tiles[tau][0] == "X" else 4
            room = (later[0] - g) if backlog <= 1 else max(later[0] - g, 36) / backlog
            sp = max(4, min(8, int(room // nit)))
            self.first_gap[tau] = g
            deadline = (self.cons[tau] + (NS if tau < 21 else 0)) * G - LA
            assert g + sp * nit + (20 if parked else 50) < deadline, (tau, g, deadline)
            for v in ([0, 1] if parked else [None]):
                for k, it in enumerate(self.dma_items(tau, "drain" if parked else None, v or 0)):
                    gg = g + sp * k
                    if parked: assert gg < QEND
                    for g_, o_, x_ in sc.putm(gg, it, v):
                        x_.dma = True
                        if tau < 21 and g_ < NM: self.carry.append((g_ - NM, o_, x_))
            cur = g + sp * nit
        assert cur <= want[0] + NM
        self.pro_park = []
        for v in range(2):
            for tau in range(21, NT):
                k = self.kvi(tau)
                if k in self.park[v]:
                    g0 = int(round(self.park[v][k][1] * G))
                    assert g0 + 3 * self.psp + 60 < self.first_gap[tau], (k, g0)
                    its = self.dma_items(tau, "load", v)
                    if g0 < 0:
                        assert v == 0; self.pro_park += its
                    else:
                        for q, it in enumerate(its): sc.putm(g0 + self.psp * q, it, v)
        for c in range(4):
            for s in range(4):
                f = 4*c + s
                sc.put(S(14 + c) + 4 + 4*s, L(f"ds_read_b128 {q4('a', 64+4*f)}, v{vL16} offset:{f*1024}", ("qx", f)))
        for j in range(16):
            for nu in range(2):
                sc.put(S(30 + j) - 16 + 5*nu, L(f"ds_read_b128 {q4('v', SXA+8*(j&1)+4*nu)}, v{vL16} offset:{(2*j+nu)*1024}", ("px", j, nu)))
        g = int(self.pfq * G); assert g > self.first_gap[20] - NM + 32
        pf0 = Item(lambda e: e.vm_op(f"buffer_load_dword a{aDummy}, v{vT4}, {srd(sW)}, s{sWoff} offen", ("pf",)), 16, "m",
                   [f"s_add_u32 s{sWoff}, s{sWoff}, 4096"], f"v_accvgpr_read_b32 v{vT4}, a{aPW}")
        def pf1f(e):
            e.vm_op(f"buffer_load_dword a{aDummy}, v{vT4}, {srd(sW)}, 0 offen", ("pf",))
            e(f"s_mov_b32 s{sW+2}, 0\ns_mov_b32 s{sX+2}, 0")
        pf1 = Item(pf1f, 24, "m", [f"s_mov_b32 s{sW}, s{sWoP}", f"s_mov_b32 s{sW+1}, s{sWoP+1}"], f"v_accvgpr_read_b32 v{vT4}, a{aPO}")
        if self.retouch:
            sc.put(g - 2, Item(lambda e: e.vm_op(f"buffer_load_dword a{aDummy}, v{vL16}, s[56:59], s{sCode} offen", ("pf",)), 16, "m"))
        sc.putm(g, pf0, 0); sc.putm(g, pf1, 1)
        def arm(e):
            e(f"""s_add_u32 s{sT1}, s7, s{sWave}
            s_cmp_lg_u32 s{sT1}, 0
            s_cbranch_scc1 L_noarm
            s_waitcnt vmcnt(0)
            v_mov_b32 v{vT4}, s{sSig}
            v_mov_b32 v{vT4+1}, 1
            s_mov_b64 exec, 1
            buffer_atomic_add v{vT4+1}, v{vT4}, {srd(sDbg)}, 0 offen sc1
            s_mov_b64 exec, -1
            L_noarm:""")
        sc.put(S(12) + 30, Item(arm, 12), 0)
        epi = [it for k in [9, 8] + list(range(8)) for it in self.norm_tile(k, OX, "a", PK(k))]
        sc.spread(epi, 0, int(self.epi_end * G), 1)
        done = {it.epi: it.gap for it in epi if hasattr(it, "epi")}
        for k, (R, f) in self.park[1].items():
            assert f * G > done[9 if R[0] == "v" else int(R[1:]) // 16], (k, R, f, done)
        qx = [I(f"v_add_u32 v{vT4}, s{sW4096}, v{vL16}")]
        for f in range(4): qx += self.qfrag(SXA + 8*f)
        for f in range(4): qx += self.qswap(SXA + 8*f) + [L(f"ds_write_b128 v{vT4}, {q4('v', SXA+8*f)} offset:{f*1024}", ("pub",), 16)]
        sc.spread(qx, S(13) + 10, S(14) - LA - 2)
        sc.spread(self.q_convert(0), S(13) + 16, S(13) + 30)
        sc.spread(self.q_convert(1), S(13) + 30, S(14))
        for c in range(3): sc.spread(self.q_convert(2 + 2*c) + self.q_convert(3 + 2*c), S(14 + c), S(15 + c) - 2)
        sc.put(S(14), I(f"s_mov_b32 s{sFlag}, 0"))
        for g in range(4):
            SX = SXA if g % 2 == 0 else SXB; q0 = S(18 + 4*g)
            x1 = self.maxtree(SX, 1, vT4, vT4 + 1) + [I(f"v_add_u32 v{vT4+2}, s{sW4}, v{vL16}")]
            x1 += [L(f"ds_write_b32 v{vT4+2}, v{vT4} offset:{(4*g+r)*2048}", ("pub",), 8) for r in range(4)]
            f2 = [I(f"v_add_u32 v{vT0}, s{sW2048}, v{vL16}"), L(f"ds_read_b128 {q4('v', vT4)}, v{vT0} offset:{4*g*2048}", ("st", g))]
            def comb(e, g=g):
                e.wait(lds=("st", g))
                e(f"v_max3_f32 v{vT0}, v{vT4}, v{vT4+1}, v{vT4+2}\nv_max_f32 v{vT0}, v{vT0}, v{vT4+3}")
            g2 = [Item(comb, 8)] + self.max_update(g, vMX, aDx, "x") + self.exp_block(SX, 16, SX, vMX, vLX, g == 0)
            g2 += [I(f"v_add_u32 v{vT4}, s{sW2048}, v{vL16}")]
            g2 += [L(f"ds_write_b128 v{vT4}, {q4('v', SX+4*nu)} offset:{4*g*2048+nu*1024}", ("pub",), 16) for nu in range(2)]
            sc.spread(x1, q0 + 6, q0 + G - LA - 3); sc.spread(f2, q0 + 44, q0 + 48); sc.spread(g2, q0 + 56, q0 + 130)
        for g in range(4):
            SB = X if g % 2 == 0 else Y; q0 = S(18 + 4*g); q1 = q0 + 4*G if g < 3 else S(42) - 4
            om = self.maxtree(SB, 4, vT0, vT1) + self.max_update(g, vMO, aDo, "o")
            nm = 20 if g < 3 else 30
            sc.spread(om, q0, q0 + nm)
            sc.spread(self.exp_block(SB, 64, [P0, P1, X, Y][g], vMO, vLO, g == 0), q0 + nm, q1 - 2)
        pre = {}
        for g in range(1, 4):
            pre[S(30 + 4*g)] = [I(f"s_bitcmp1_b32 s{sFlag}, {g}\ns_cbranch_scc0 L_nores{g}\ns_mov_b32 s{sSh}, {8*(g-1)}\n"
                                  f"s_call_b64 s[{sRet}:{sRet+1}], L_rescale\nL_nores{g}:")]
        if self.stamps:
            pre.setdefault(S(14), []).append(I(f"{self.clk} s[{sStamp+20}:{sStamp+21}]"))
            pre.setdefault(S(30), []).append(I(f"{self.clk} s[{sStamp+22}:{sStamp+23}]"))
        lx = self.fold(vLX, vLX + 1, "v_add_f32") + [I(f"v_add_u32 v{vT0}, s{sW4}, v{vL16}"), L(f"ds_write_b32 v{vT0}, v{vLX} offset:16384", ("pub",), 8)]
        sc.spread(lx, S(40), S(40) + 20)
        def lx2(e):
            e.wait(lds=("lx",))
            e(f"v_add_f32 v{vT4}, v{vT4}, v{vT4+1}\nv_add_f32 v{vT4+2}, v{vT4+2}, v{vT4+3}\nv_add_f32 v{vLX}, v{vT4}, v{vT4+2}\nv_rcp_f32 v{vLX}, v{vLX}")
        expand = lambda r: [I(f"v_mov_b32 v{r+1}, v{r}"), I("s_nop 0"), I(f"v_permlane32_swap_b32 v{r}, v{r+1}")]
        sc.put(S(41) + 4, L(f"ds_read_b128 {q4('v', vT4)}, v{vL16} offset:16384", ("lx",)))
        sc.spread([Item(lx2, 20)] + expand(vLX), S(41) + 18, S(41) + 30)
        sc.spread(self.fold(vLO, vLO + 1, "v_add_f32") + [I(f"v_rcp_f32 v{vLO}, v{vLO}")] + expand(vLO), S(42), S(42) + 24)
        self.M, self.sc, self.pre = M, sc, pre

    def gen(self, code_bytes):
        self.build()
        M, sc, pre = self.M, self.sc, self.pre
        def run(ov, sim):
            e = Emit(); e.wait_override = ov
            self.prologue(e, code_bytes)
            self.emit_range(e, M, sc, 0, 0, QEND, pre)
            e("L_kv:")
            w0 = len(e.waits)
            self.emit_range(e, M, sc, 0, QEND, NM, pre)
            w1 = len(e.waits)
            if self.stamps: e(f"{self.clk} s[{sStamp+24}:{sStamp+25}]")
            e(f"s_cmp_lg_u32 s{sIter}, 0\ns_cbranch_scc1 L_tail\ns_mov_b32 s{sIter}, 1")
            if self.stamps:
                e("s_waitcnt lgkmcnt(0)")
                for k in range(6): e(f"s_mov_b32 s{sStamp+4+k}, s{sStamp+20+k}")
            if "slot" in self.mode: e(f"v_accvgpr_write_b32 a{aSave+3}, v{vDE}")
            self.emit_range(e, M, sc, 1, 0, QEND, pre)
            e("s_branch L_kv")
            w2 = len(e.waits)
            if sim: self.emit_range(e, M, sc, 0, QEND, NM, pre)
            return e, w0, w1, w2
        e, w0, w1, w2 = run(None, True)
        self.sim_nops = list(e.noplog)
        mn = lambda a, b: b if a is None else a if b is None else min(a, b)
        wa = e.waits
        ov = wa[:w0] + [(mn(a[0], b[0]), mn(a[1], b[1])) for a, b in zip(wa[w0:w1], wa[w2:])] + wa[w1:w2]
        e, w0, w1, w2 = run(ov, False)
        e.wait_override = None
        e("L_tail:")
        e("s_nop 7")
        self.tail(e)
        if self.stamps: self.dump_stamps(e)
        e("L_end:\ns_endpgm")
        self.tail_slow()
        for g in range(1, 4):
            self.rare_block(e, g, vMO, vLO, aDo, "o"); self.rare_block(e, g, vMX, vLX, aDx, "x")
        t = P0
        e("L_rescale:\ns_nop 15")
        for k, aD in enumerate((aDo, aDx)):
            a = t + 2*k
            e(f"v_accvgpr_read_b32 v{a}, a{aD}\nv_lshrrev_b32 v{a}, s{sSh}, v{a}\nv_and_b32 v{a}, 255, v{a}\nv_sub_u32 v{a}, 0, v{a}\nv_mov_b32 v{a+1}, v{a}")
            e(f"v_permlane32_swap_b32 v{a}, v{a+1}")
        for i in range(32): e(f"v_ldexp_f32 v{OX+i}, v{OX+i}, v{t + 2 + ((i >> 3) & 1)}")
        for i in range(0, 128, 8):
            for q in range(8): e(f"v_accvgpr_read_b32 v{t+8+q}, a{i+q}")
            for q in range(8): e(f"v_ldexp_f32 v{t+8+q}, v{t+8+q}, v{t + ((i >> 3) & 1)}")
            for q in range(8): e(f"v_accvgpr_write_b32 a{i+q}, v{t+8+q}")
        e(f"s_nop 3\ns_setpc_b64 s[{sRet}:{sRet+1}]")
        return e

    def dump_stamps(self, e):
        e(f"s_waitcnt vmcnt(0)\n{self.clk} s[{sStamp+16}:{sStamp+17}]\ns_waitcnt lgkmcnt(0)")
        e(f"s_mov_b32 s{sWs+2}, 0x100000\ns_mov_b32 s{sWs+3}, 0x20000")
        if "slot" in self.mode:
            e(f"s_lshl_b32 s{sT0}, s2, 2\ns_add_u32 s{sT0}, s{sT0}, s{sWave}\ns_lshl_b32 s{sT0}, s{sT0}, 9\ns_add_u32 s{sT0}, s{sT0}, 0x10000")
            e(f"v_lshrrev_b32 v40, 2, v{self.vLn}")
            e(f"buffer_store_dword a{aSave+3}, v40, {srd(sWs)}, s{sT0} offen")
            e(f"buffer_store_dword a{aSave+2}, v40, {srd(sWs)}, s{sT0} offen offset:256")
        e(f"s_mul_i32 s{sT0}, s2, 96\ns_cmp_lg_u32 s{sWave}, 0\ns_cbranch_scc1 L_end\nv_mov_b32 v40, s{sT0}\ns_mov_b64 exec, 1")
        for k, sr in enumerate([0, 1, 2, 3, 4, 10, 11, 12, 5, 6, 7, 8]):
            e(f"v_mov_b32 v42, s{sStamp+2*sr}\nv_mov_b32 v43, s{sStamp+2*sr+1}")
            e(f"buffer_store_dwordx2 v[42:43], v40, {srd(sWs)}, 0 offen offset:{8*k}\ns_nop 1")

    def tail(self, e):
        LA = self.LA; I = self.I; L = self.L
        sWo, sP, sOut = sW, sX, sK
        sWb, sPo, sPx, sOb, sColo, sCohi = sWoff, 30, 31, sKVoff, sXE, sKVk
        vD0, vO, vLn, vXw, vOut, vOutX, vArm, vSig, vXr = 0, 112, vL16, 2, 7, 3, 4, 5, 8
        self.vLn = vLn
        OB1 = 32; ACC = [128, 168]
        TMP = 208
        st = lambda k: e(f"{self.clk} s[{sStamp+2*k}:{sStamp+2*k+1}]") if self.stamps else None
        if "slot" in self.mode: e(f"v_accvgpr_write_b32 a{aSave+2}, v{vDE}")
        e(f"""
        s_load_dwordx2 s[{sOut}:{sOut+1}], s[0:1], 80
        s_mov_b32 s{sWo+2}, 3670016
        s_mul_i32 s{sWb}, s7, {256*896}
        s_mul_i32 s{sT0}, s{sWave}, {32*896}
        s_add_u32 s{sWb}, s{sWb}, s{sT0}
        v_lshrrev_b32 v2, 7, v{vLn}
        v_mul_u32_u24 v2, 896, v2
        v_and_b32 v3, 0x70, v{vLn}
        v_lshrrev_b32 v4, 3, v{vLn}
        v_and_b32 v4, 0x60, v4
        v_xor_b32 v3, v3, v4
        v_add_u32 v{vD0}, v2, v3
        v_add_u32 v{vD0+1}, {8*896-1024}, v{vD0}
        v_mov_b32 v{vSig}, s{sSig}
        v_add_u32 v{vXw}, s{sW2048}, v{vLn}
        """)
        e.wait_all(vm=True, lds=True)
        e("s_barrier")
        tiles = [(cb, hd, half) for cb in range(7) for hd, half in ((1, 0), (1, 1), (0, 0), (0, 1))]
        def dma(i):
            cb, hd, half = tiles[i]
            def mk(q):
                sc_ = [f"s_add_u32 m0, s{sW4096}, {RB + (i % 8) * 16384}", f"s_add_u32 s{sT0}, s{sWb}, {(hd * 2048 + 128 * half) * 896 + cb * 128}"] if q == 0 else [f"s_add_u32 s{sT0}, s{sT0}, 12288"] if q == 2 else []
                return Item(lambda e: e.vm_op(f"buffer_load_dwordx4 v{vD0 + (q & 1)}, {srd(sWo)}, s{sT0} offen offset:{1024*q} lds", ("ot", i)), self.dmacost, "m", sc_)
            return [mk(q) for q in range(4)]
        pre = [it for i in range(6) for it in dma(i)]
        pub0 = [L(f"ds_write_b128 v{vXw}, {q4('a', PK(8+x)+4*nu)} offset:{x*8192+nu*1024}", ("pub",)) for x in range(2) for nu in range(2)]
        pub1 = [L(f"ds_write_b128 v{vXw}, {q4('v', OB1+64+8*x+4*nu)} offset:{16384+x*8192+nu*1024}", ("pub",)) for x in range(2) for nu in range(2)]
        nt = lambda k, kk: self.norm_tile(k, TMP + 16 * (kk & 1), "v", OB1 + 8*k)
        first = pub0 + nt(8, 0) + nt(9, 0) + pub1 + [it for k in range(4) for it in nt(k, k)]
        conv2 = [it for k in range(4, 8) for it in nt(k, k)]
        setup = f"""
        v_bfe_u32 v8, v{vLn}, 6, 4
        v_lshlrev_b32 v9, 7, v8
        v_bfe_u32 v8, v{vLn}, 7, 2
        v_xor_b32 v8, s{sWave}, v8
        v_lshl_add_u32 v9, v8, 5, v9
        v_bfe_u32 v8, v{vLn}, 4, 2
        v_lshl_add_u32 v9, v8, 3, v9
        v_add_u32 v{vO}, s{sWB0}, v9
        v_bfe_u32 v8, v{vLn}, 4, 4
        v_mul_u32_u24 v8, 1792, v8
        v_bfe_u32 v9, v{vLn}, 9, 1
        v_lshl_add_u32 v8, v9, 4, v8
        v_bfe_u32 v9, v{vLn}, 8, 1
        v_lshl_add_u32 v{vOut}, v9, 5, v8
        v_mul_u32_u24 v9, {16*1792}, v9
        v_add_u32 v{vOutX}, v8, v9
        s_lshr_b32 s{sT3}, s{sSig}, 2
        s_mul_i32 s{sT3}, s{sT3}, {PP_GB}
        s_add_u32 s{sT3}, s{sT3}, {PP_OFF}
        s_add_u32 s{sP}, s{sWs}, s{sT3}
        s_addc_u32 s{sP+1}, s{sWs+1}, 0
        s_mov_b32 s{sP+2}, {0 if "nops" in self.mode else PP_GB}
        s_lshl_b32 s{sPo}, s{sWave}, 5
        s_add_u32 s{sPo}, s{sPo}, s7
        s_lshl_b32 s{sPo}, s{sPo}, 10
        s_lshl_b32 s{sPx}, s{sWave}, 3
        s_add_u32 s{sPx}, s{sPx}, s7
        s_add_u32 s{sPx}, s{sPx}, 128
        s_lshl_b32 s{sPx}, s{sPx}, 10
        s_mul_i32 s{sOb}, s6, {160*1792}
        s_mul_i32 s{sT3}, s5, 896
        s_add_u32 s{sOb}, s{sOb}, s{sT3}
        s_mov_b32 s{sOut+2}, {16*160*896*2}
        s_mov_b32 s{sColo}, 0x3f80
        s_mov_b32 s{sCohi}, 0x3f800000
        """
        for i, it in enumerate(first):
            it(e)
            if i % 6 == 0 and pre: pre.pop(0).full(e)
        for it in pre: it.full(e)
        e.vm_op(f"buffer_load_dword v{vArm}, v{vSig}, {srd(sDbg)}, 0 offen sc1", ("arm",))
        e(setup)
        for r in range(1, 16): e(f"v_xor_b32 v{vO+r}, {(r >> 2) * 4096 + (r & 3) * 32}, v{vO}")
        for q in range(4): e(f"v_xor_b32 v{vXr+q}, {q * 2048}, v{vXw}")
        st(5)
        XB = lambda hd, k, nu: (0 if hd else 64) + 8*k + 4*nu
        M = []
        for n, (cb, hd, half) in enumerate(tiles):
            A0 = ACC[cb & 1]; po = (n & 3) * 16384
            for q in range(4):
                k = 4 * half + q
                for mu in (3, 2, 1, 0):
                    first_ = (n % 4 == 0 and q == 0)
                    for nu in range(2):
                        B = q4("v", OB1 + 8*k + 4*nu) if hd else q4("a", PK(k) + 4*nu)
                        M.append(dict(acc=q4("v", A0 + 16*(mu >> 1) + 8*nu + 4*(mu & 1)), frag=(("tr", 4*q + mu, po, 2048) if nu == 0 else None), B=B, first=first_))
                    if mu == 0:
                        for nu in range(2):
                            M.append(dict(acc=q4("v", A0 + 32 + 4*nu), frag=None, B=q4("a", XB(hd, k, nu)), first=first_, lds=(("xb", hd, k, nu) if cb == 0 else None)))
        self.number(M, "o")
        N2 = len(M); sc = Sched(N2)
        sc.ws = self.WS
        head = []
        def hard(g, it): head.append(it) if g < 0 else sc.put(g, it, hard=True)
        for n in range(28): hard(n * G - LA, self.barrier_item(("ot", n), n if "tslot" in self.mode else None))
        for i, m in enumerate(M):
            if m["frag"] is None:
                if m.get("lds"):
                    _, hd, k, nu = m["lds"]
                    hard(i - LA, L(f"ds_read_b128 {q4('a', XB(hd, k, nu))}, v{vXr + (k & 3)} offset:{(16384 if hd else 0) + (k >> 2) * 8192 + nu * 1024}", m["lds"]))
                continue
            for k, it in enumerate(self.read_items(m, vO)): hard(i - LA + k, it)
            if (i // G) % 4 == 3 and i // G < 27: hard(i - LA + 1, I(f"v_xor_b32 v{vO+m['frag'][1]}, 0x10000, v{vO+m['frag'][1]}"))
        for n in range(22):
            for k, it in enumerate(dma(n + 6)): sc.putm(max(3, n * G - LA + 4) + 7 * k, it)
        for k in range(4): sc.spread(conv2[40*k:40*k+40], [0, 14, 30, 46][k], [14, 30, 46, 62][k])
        def block_out(cb):
            A0 = ACC[cb & 1]; out = []
            for j in range(5):
                b = A0 + 8*j
                so = f"s_add_u32 s{sT1}, s{sPo}, {(cb*20 + (j & 1)*2 + (j >> 1)) * 8192}" if j < 4 else f"s_add_u32 s{sT1}, s{sPx}, {cb * 20 * 8192}"
                def f(e, b=b, so=so):
                    e(so)
                    e.vm_op(f"buffer_store_dwordx4 {q4('v', b)}, v{vLn}, {srd(sP)}, s{sT1} offen sc1", ("ps", cb))
                out += self.qfrag(b) + [Item(f, 20, 'm')]
            return out
        for cb in range(6): sc.spread(block_out(cb), 4 * G * (cb + 1) + 6, 4 * G * (cb + 1) + 6 + self.stw)
        vZ, vOne, vPoll, vRet = 12, 13, 28, 14
        sG, sGw, sPr, sOk = sV, sT4, sRet, sFlag
        RB_ = lambda i, p: [208 + 4*p, (96 + 4*p if p < 4 else 240 + 4*(p-4)), 32 + 4*p, 64 + 4*p, 168 + 4*p][i]
        def armchk(e):
            e.wait(vm=("arm",))
            e(f"v_readfirstlane_b32 s{sT3}, v{vArm}\ns_cmp_eq_u32 s{sT3}, 0\ns_cbranch_scc1 L_armspin\nL_armback:")
        sc.put(8 * G, Item(armchk, 16))
        sc.put(8 * G + 4, I(f"""v_mov_b32 v{vZ}, 0
            v_mov_b32 v{vOne}, 1
            s_lshl_b32 s{sGw}, s7, 2
            s_add_u32 s{sGw}, s{sGw}, s{sWave}
            s_lshl_b32 s{sPr}, s{sGw}, 13
            s_mov_b32 s{sG}, s{sP}
            s_mov_b32 s{sG+1}, s{sP+1}"""))
        for (cb, word), n in zip(((1, 1), (3, 2), (4, 3)), self.sigs):
            sc.hard[0][n * G - LA].insert(0, Item(lambda e, cb=cb: e.wait(vm=("ps", cb)), 0, "s"))
            sc.put(n * G - LA + 1, Item(lambda e, word=word: e(f"""s_cmp_lg_u32 s{sWave}, 0
                s_cbranch_scc1 L_nosig{word}
                s_mov_b64 exec, 1
                global_atomic_add v{vZ}, v{vOne}, s[{sCt}:{sCt+1}] offset:{4*word} sc1
                s_mov_b64 exec, -1
                L_nosig{word}:"""), 12))
        poll = lambda t: Item(lambda e: e.vm_op(f"global_load_dwordx4 {q4('v', vPoll)}, v{vZ}, s[{sCt}:{sCt+1}] sc1", t), 12, "m")
        def gate(word, bit, tag):
            def f(e):
                e.wait(vm=tag)
                e(f"""v_readfirstlane_b32 s{sT3}, v{vPoll+word}
                s_cmp_ge_u32 s{sT3}, 8
                s_cselect_b32 s{sG+2}, {PP_GB}, 0
                s_cselect_b32 s{sT3}, {bit}, 0
                {f"s_mov_b32 s{sOk}, s{sT3}" if bit == 1 else f"s_or_b32 s{sOk}, s{sOk}, s{sT3}"}""")
            return Item(f, 24)
        def rload(i, d, tagged=True):
            out = []
            for p in range(8):
                sc_ = [f"s_add_u32 s{sSh}, s{sPr}, {i * 32 * 8192 + (p // 4) * 4096}"] if p % 4 == 0 else []
                t = f"buffer_load_dwordx4 {q4('v', RB_(i, p))}, v{vLn}, {srd(d)}, s{sSh} offen offset:{1024*(p%4)} sc1"
                out.append(Item(lambda e, t=t, p=p: e.vm_op(t, ("pl", i, p)), self.dmacost, "m", sc_))
            return out
        for i, (gs, sp) in enumerate(self.gates):
            g0 = int(gs * G)
            sc.put(g0 - 56, poll(("poll", i)), hard=True)
            sc.put(g0, gate(i + 1, 1 << i, ("poll", i)))
            for k, it in enumerate(rload(i, sG)): sc.putm(g0 + 6 + sp * k, it)
            assert g0 + 6 + sp * 7 < (int(self.gates[i+1][0] * G) if i < 2 else N2 - 1)
        def rcomp(i, waits=True):
            acc = 112 + 8 * (i & 1); dst = 16 + 4 + 4 * (i & 1); va = 10 + (i & 1)
            e(f"""s_add_u32 s{sT0}, s{sGw}, {32*i}
            s_mul_i32 s{sT1}, s{sT0}, 3277
            s_lshr_b32 s{sT1}, s{sT1}, 16
            s_mul_i32 s{sT3}, s{sT1}, 20
            s_sub_u32 s{sT0}, s{sT0}, s{sT3}
            s_lshl_b32 s{sT1}, s{sT1}, 7
            s_add_u32 s{sT1}, s{sT1}, s{sOb}
            s_lshr_b32 s{sT3}, s{sT0}, 1
            s_mul_i32 s{sT3}, s{sT3}, {16*1792}
            s_lshl_b32 s{sPx}, s{sT0}, 6
            s_lshl_b32 s{sSh}, s{sT0}, 3
            s_and_b32 s{sPx}, s{sPx}, 64
            s_and_b32 s{sSh}, s{sSh}, 96
            s_xor_b32 s{sSh}, s{sSh}, s{sPx}
            v_xor_b32 v{va}, s{sSh}, v{vOut}
            s_lshl_b32 s{sPx}, s{sT0}, 5
            s_add_u32 s{sPx}, s{sPx}, {128*1792 - 16*32}
            s_cmp_lt_u32 s{sT0}, 16
            s_cselect_b32 s{sT3}, s{sT3}, s{sPx}
            s_cselect_b64 vcc, -1, 0
            s_add_u32 s{sT3}, s{sT3}, s{sT1}
            v_cndmask_b32 v{va}, v{vOutX}, v{va}, vcc""")
            for p in range(8):
                b = RB_(i, p)
                if p % 2 == 0 and waits: e.wait(vm=("pl", i, p + 1))
                for d in range(4):
                    if p == 0: e(f"v_lshlrev_b32 v{acc+2*d}, 16, v{b+d}\nv_and_b32 v{acc+2*d+1}, 0xffff0000, v{b+d}")
                    else: e(f"v_dot2_f32_bf16 v{acc+2*d}, v{b+d}, s{sColo}, v{acc+2*d}\nv_dot2_f32_bf16 v{acc+2*d+1}, v{b+d}, s{sCohi}, v{acc+2*d+1}")
            e("s_nop 2")
            for d in range(4): e(f"v_cvt_pk_bf16_f32 v{dst+d}, v{acc+2*d}, v{acc+2*d+1}")
            for it in self.qswap(dst): it(e)
            e(f"buffer_store_dwordx4 {q4('v', dst)}, v{va}, {srd(sOut)}, s{sT3} offen{self.outpol}")
        for it in head: it(e)
        self.emit_range(e, M, sc, 0, 0, N2, cyc=False)
        st(6)
        if "tslot" in self.mode: e(f"v_accvgpr_write_b32 a{aSave+2}, v{vDE}")
        for it in block_out(6): it(e)
        done0 = e.vm_done
        for i in range(2):
            e(f"s_bitcmp1_b32 s{sOk}, {i}\ns_cbranch_scc0 L_skip{i}")
            rcomp(i)
            e(f"L_skip{i}:")
            e.vm_done = done0
        e.wait(vm=("ps", 6))
        e("s_barrier")
        e(f"""s_cmp_lg_u32 s{sWave}, 0
        s_cbranch_scc1 L_noarr
        s_mov_b64 exec, 1
        global_atomic_add v{vRet}, v{vZ}, v{vOne}, s[{sCt}:{sCt+1}] sc0 sc1
        s_mov_b64 exec, -1
        L_noarr:
        s_cmp_lg_u32 s{sOk}, 7
        s_cbranch_scc1 L_redo
        L_redo_back:""")
        rcomp(2)
        e(f"""s_cmp_lg_u32 s{sWave}, 0
        s_cbranch_scc1 L_sync_done
        s_mov_b64 exec, 1
        s_mov_b32 s{sT3}, 0
        s_waitcnt vmcnt(1)
        v_add_u32 v{vRet}, 1, v{vRet}
        L_sync_l:
        s_nop 0
        v_readfirstlane_b32 s{sT0}, v{vRet}
        s_add_u32 s{sT3}, s{sT3}, 1
        s_cmp_ge_u32 s{sT0}, 8
        s_cbranch_scc1 L_sync_ok
        s_cmp_gt_u32 s{sT3}, 0x200000
        s_cbranch_scc1 L_sync_ok
        s_sleep {self.slp}
        global_load_dword v{vRet}, v{vZ}, s[{sCt}:{sCt+1}] sc1
        s_waitcnt vmcnt(0)
        s_branch L_sync_l
        L_sync_ok:
        s_mov_b64 exec, -1
        L_sync_done:
        s_barrier""")
        st(7)
        for it in rload(3, sP) + rload(4, sP): it.full(e)
        rcomp(3)
        e(f"s_cmp_lt_u32 s{sGw}, 12\ns_cbranch_scc0 L_fin")
        rcomp(4)
        e("L_fin:")
        def slow():
            e(f"""L_armspin:
            s_mov_b32 s{sT1}, 0
            L_armspin_l:
            s_sleep 8
            buffer_load_dword v{vArm}, v{vSig}, {srd(sDbg)}, 0 offen sc1
            s_waitcnt vmcnt(0)
            v_readfirstlane_b32 s{sT3}, v{vArm}
            s_add_u32 s{sT1}, s{sT1}, 1
            s_cmp_lg_u32 s{sT3}, 0
            s_cbranch_scc1 L_armback
            s_cmp_lt_u32 s{sT1}, 0x200000
            s_cbranch_scc1 L_armspin_l
            s_branch L_armback
            L_redo:
            s_mov_b32 s{sT1}, 0
            L_redo_l:
            global_load_dwordx4 {q4('v', vPoll)}, v{vZ}, s[{sCt}:{sCt+1}] sc1
            s_waitcnt vmcnt(0)
            v_readfirstlane_b32 s{sT3}, v{vPoll+3}
            s_add_u32 s{sT1}, s{sT1}, 1
            s_cmp_ge_u32 s{sT3}, 8
            s_cbranch_scc1 L_redo_go
            s_sleep 4
            s_cmp_lt_u32 s{sT1}, 0x200000
            s_cbranch_scc1 L_redo_l
            L_redo_go:""")
            for i in range(3):
                e(f"s_bitcmp1_b32 s{sOk}, {i}\ns_cbranch_scc1 L_rl{i}")
                for it in rload(i, sP): it.full(e)
                e(f"L_rl{i}:")
            e("s_waitcnt vmcnt(0)")
            for i in range(2):
                e(f"s_bitcmp1_b32 s{sOk}, {i}\ns_cbranch_scc1 L_rc{i}")
                rcomp(i, False)
                e(f"L_rc{i}:")
            e("s_branch L_redo_back")
        self.tail_slow = slow

    def prologue(self, e, code_bytes):
        e("s_cmp_ge_u32 s2, 256\ns_cbranch_scc1 L_end")
        if self.stamps: e(f"{self.clk} s[{sStamp}:{sStamp+1}]")
        e(f"""
        s_and_b32 s3, s2, 7
        s_lshr_b32 s4, s2, 3
        s_lshr_b32 s5, s3, 2
        s_mul_i32 s6, s5, 40
        s_add_u32 s30, s0, s6
        s_addc_u32 s31, s1, 0
        s_load_dwordx2 s[{sX}:{sX+1}], s[30:31], 0
        s_load_dwordx2 s[{sW}:{sW+1}], s[30:31], 24
        s_load_dwordx2 s[{sK}:{sK+1}], s[30:31], 8
        s_load_dwordx2 s[{sV}:{sV+1}], s[30:31], 16
        s_load_dwordx2 s[{sWoP}:{sWoP+1}], s[30:31], 32
        s_load_dwordx2 s[{sWs}:{sWs+1}], s[0:1], 96
        s_load_dwordx2 s[{sCt}:{sCt+1}], s[0:1], 88
        v_lshrrev_b32 v96, 6, v0
        v_and_b32 v97, 63, v0
        v_lshlrev_b32 v104, 4, v0
        v_readfirstlane_b32 s{sWave}, v96
        s_getpc_b64 s[56:57]
        s_mov_b32 s58, {code_bytes}
        s_mov_b32 s59, 0x20000
        s_lshl_b32 s{sCode}, s4, 12
        """)
        e.vm_op(f"buffer_load_dwordx4 a[0:3], v104, s[56:59], s{sCode} offen", ("code",))
        e(f"""
        s_and_b32 s7, s3, 3
        s_lshl_b32 s7, s7, 1
        s_and_b32 s6, s4, 1
        s_add_u32 s7, s7, s6
        s_lshr_b32 s6, s4, 1
        s_lshl_b32 s{sW4096}, s{sWave}, 12
        s_lshl_b32 s{sXE}, s{sWave}, 10
        s_lshl_b32 s{sWoff}, s7, 9
        v_lshrrev_b32 v98, 5, v97          ; hf
        v_and_b32 v99, 31, v97
        v_lshrrev_b32 v105, 3, v97         ; l/8
        v_and_b32 v103, 7, v97
        v_bfe_u32 v106, v97, 4, 1          ; kg0
        v_lshl_add_u32 v107, v106, 1, v98
        """)
        for q in range(2):
            e(f"""
            v_xor_b32 v101, v107, v103
            {"v_xor_b32 v101, 4, v101" if q else ""}
            v_lshlrev_b32 v101, 4, v101
            v_subrev_u32 v101, {1024*q}, v101
            v_add_u32 v100, {8*q}, v105
            v_lshl_add_u32 v102, v100, 9, v101
            v_accvgpr_write_b32 a{aDK+q}, v102
            v_lshl_add_u32 v100, v96, 5, v100
            v_mul_u32_u24 v102, 896, v100
            v_add_u32 v{vDX+q}, v102, v101
            """)
        e(f"""
        v_and_b32 v100, 1, v96
        v_lshlrev_b32 v108, 2, v100        ; 4*w0
        v_xor_b32 v101, v107, v103
        v_xor_b32 v101, v101, v108
        v_lshlrev_b32 v101, 4, v101
        v_lshl_add_u32 v100, v96, 3, v105
        v_add_u32 v100, 128, v100
        v_mul_u32_u24 v102, 896, v100
        v_add_u32 v{vDE}, v102, v101
        v_accvgpr_write_b32 a{aDE}, v{vDE}
        v_lshrrev_b32 v109, 1, v96         ; w1
        """)
        for q in range(2):
            e(f"""
            v_add3_u32 v100, v108, v98, {2*q}
            v_lshlrev_b32 v101, 1, v100
            v_xor_b32 v101, v101, v99
            v_lshlrev_b32 v101, 4, v101
            v_subrev_u32 v101, {1024*q}, v101
            v_lshl_add_u32 v102, v109, 4, v100
            v_lshl_add_u32 v102, v102, 9, v101
            v_accvgpr_write_b32 a{aDV+q}, v102
            v_lshl_add_u32 v102, v108, 2, v98
            v_lshl_add_u32 v102, v109, 3, v102
            v_add_u32 v102, {2*q}, v102
            v_lshl_add_u32 v{vDW+q}, v102, 13, v101
            """)
        e(f"""
        s_mul_i32 s{sT1}, s6, 143360
        s_mov_b32 s{sX+2}, 143360
        s_mov_b32 s{sX+3}, 0x20000
        s_mov_b32 s{sW+2}, 3670016
        s_mov_b32 s{sW+3}, 0x20000
        s_waitcnt lgkmcnt(0)
        s_add_u32 s{sX}, s{sX}, s{sT1}
        s_addc_u32 s{sX+1}, s{sX+1}, 0
        """)
        carry = sorted(self.carry, key=lambda t: (t[0], t[1]))
        dmas = [it for g, o, it in carry if g < -self.LA - 4 and getattr(it, "dma", False)]
        rest = [(g, it) for g, o, it in carry if not any(it is d for d in dmas)]
        nm_ = 0; k0 = len(dmas)
        for k, it in enumerate(dmas):
            if it.kind == "m": nm_ += 1
            if nm_ == self.nfirst: k0 = k + 1; break
        for it in dmas[:k0]: it(e)
        if self.pfs:
            wp, xp = self.pfs
            e(f"""v_lshrrev_b32 v100, 6, v104
            v_lshlrev_b32 v100, 17, v100
            v_and_b32 v101, 48, v104
            v_lshl_add_u32 v100, v101, 3, v100
            s_lshl_b32 s{sT1}, s6, 13
            s_add_u32 s{sT1}, s{sT1}, s{sWoff}""")
            if wp is not None: e.vm_op(f"buffer_load_dword a{aDummy}, v100, {srd(sW)}, s{sT1} offen{wp}", ("pf",))
            e(f"""v_lshlrev_b32 v101, 3, v104
            s_and_b32 s{sT1}, s4, 1
            s_mul_i32 s{sT1}, s{sT1}, 71680
            v_cmp_gt_u32 vcc, {71680 - 65536}, v101
            v_mov_b32 v102, 0x7ffffff0""")
            if xp is not None:
                for k in range(3):
                    if k == 2: e("v_cndmask_b32 v101, v102, v101, vcc")
                    e.vm_op(f"buffer_load_dword a{aDummy}, v101, {srd(sX)}, s{sT1} offen{xp}", ("pf",))
                    e(f"s_add_u32 s{sT1}, s{sT1}, 32768")
        for it in dmas[k0:]: it(e)
        e(f"""
        s_lshl_b32 s{sKVoff}, s6, 4
        s_add_u32 s{sKVoff}, s{sKVoff}, s7
        s_lshl_b32 s{sKVoff}, s{sKVoff}, 18
        {f"s_mov_b32 s{sKVoff}, 0" if "samekv" in self.mode else ""}
        s_lshl_b32 s{sKVk}, s{sWave}, 14
        s_add_u32 s{sKVk}, s{sKVk}, s{sKVoff}
        s_mov_b32 s{sK+2}, 0x4000000
        s_mov_b32 s{sK+3}, 0x20000
        s_mov_b32 s{sV+2}, 0x4000000
        s_mov_b32 s{sV+3}, 0x20000
        """)
        for it in self.pro_park: it.full(e)
        e(f"""
        s_add_u32 s{sCode}, s{sCode}, s{sXE}
        s_add_u32 s{sWB0}, s{sW4096}, {RB}
        s_add_u32 s{sWB1}, s{sW4096}, {RB + 65536}
        s_lshl_b32 s{sW128}, s{sWave}, 7
        s_lshl_b32 s{sW2048}, s{sWave}, 11
        s_lshl_b32 s{sW4}, s{sWave}, 2
        s_mov_b32 s{sC}, 0x{f32bits(math.log2(math.e)/16.0):08x}
        s_mov_b32 s{sIter}, 0
        s_mov_b32 s{sHalf}, -1
        s_mov_b32 s{sHalf+1}, 0
        v_lshlrev_b32 v{vL16}, 4, v97
        v_and_b32 v100, 15, v97                       ; n / i
        v_bfe_u32 v101, v100, 1, 1
        v_bfe_u32 v102, v100, 2, 1
        v_lshl_add_u32 v101, v101, 1, v102
        v_bfe_u32 v102, v100, 3, 1
        v_lshl_add_u32 v101, v102, 2, v101            ; f'(n)
        v_xor_b32 v101, v101, v107
        v_lshlrev_b32 v101, 4, v101
        v_lshl_add_u32 v{vKP}, v100, 7, v101
        v_lshrrev_b32 v101, 2, v100                   ; rho
        v_and_b32 v102, 3, v100                       ; cc
        v_lshl_add_u32 v110, v106, 2, v101
        v_lshlrev_b32 v110, 5, v110
        v_lshl_add_u32 v110, v102, 3, v110
        v_lshl_add_u32 v111, v106, 3, v101
        v_lshl_add_u32 v102, v98, 2, v111
        v_lshl_add_u32 v102, v102, 9, v110
        s_lshl_b32 s{sT1}, s{sWave}, 6
        v_xor_b32 v102, s{sT1}, v102
        v_accvgpr_write_b32 a{aTV}, v102
        v_lshl_add_u32 v102, v98, 4, v111
        v_lshl_add_u32 v102, v102, 9, v110
        v_accvgpr_write_b32 a{aTW}, v102
        v_lshlrev_b32 v100, 3, v104
        v_and_b32 v100, 0x3fff, v100
        v_cmp_gt_u32 vcc, 14336, v100
        v_lshrrev_b32 v101, 11, v104
        v_mul_u32_u24 v101, {8*229376}, v101
        s_mul_i32 s{sT3}, s6, 14336
        s_mul_i32 s{sT1}, s7, 229376
        s_add_u32 s{sT3}, s{sT3}, s{sT1}
        v_add3_u32 v100, v100, v101, s{sT3}
        v_mov_b32 v101, 0x7ffffff0
        v_cndmask_b32 v100, v101, v100, vcc
        v_accvgpr_write_b32 a{aPO}, v100
        v_lshrrev_b32 v100, 6, v104
        v_lshlrev_b32 v100, 17, v100
        v_and_b32 v101, 48, v104
        v_lshl_add_u32 v100, v101, 3, v100
        s_lshl_b32 s{sT1}, s6, 13
        v_add_u32 v100, s{sT1}, v100
        v_accvgpr_write_b32 a{aPW}, v100
        s_lshl_b32 s{sSig}, s5, 4
        s_add_u32 s{sSig}, s{sSig}, s6
        s_lshl_b32 s{sSig}, s{sSig}, 2
        s_mov_b32 s{sDbg}, s{sCt}
        s_mov_b32 s{sDbg+1}, s{sCt+1}
        s_mov_b32 s{sDbg+2}, 128
        s_mov_b32 s{sDbg+3}, 0x20000
        s_lshl_b32 s{sT1}, s{sSig}, 6
        s_add_u32 s{sT1}, s{sT1}, {CT_OFF}
        s_add_u32 s{sCt}, s{sWs}, s{sT1}
        s_addc_u32 s{sCt+1}, s{sWs+1}, 0
        v_mov_b32 v100, 0
        v_mov_b32 v101, 0
        v_mov_b32 v102, 0
        v_mov_b32 v103, 0
        s_add_u32 s{sT1}, s7, s{sWave}
        s_cmp_lg_u32 s{sT1}, 0
        s_cbranch_scc1 L_nozero
        s_mov_b64 exec, 1
        global_store_dwordx4 v100, v[100:103], s[{sCt}:{sCt+1}] sc1
        s_mov_b64 exec, -1
        L_nozero:
        """)
        e(warm_call("A", sWave))
        if self.stamps: e(f"{self.clk} s[{sStamp+2}:{sStamp+3}]")
        for g, it in rest: it(e)
```

```python
from build3 import *
W = "work/"
build3(W + "l3_a.s", dict(C1, mode="slot tslot"), stamps=True)
build3(W + "l3_b.s", dict(C1, mode="slot tslot", gates=((16, 24), (23, 12), (26.5, 6))), stamps=True)
build3(W + "l3_c.s", dict(C1, mode="slot tslot", outpol=" sc1"), stamps=True)
build3(W + "l3_d.s", dict(C1, mode="slot tslot", outpol=" nt"), stamps=True)
build3(W + "l3_redo.s", dict(C1, sigs=(27, 27, 27)))
build3(W + "l3_redo2.s", dict(C1, sigs=(11, 27, 27)))
build3(W + "l3_rel.s", C1)
```

```python
from build3 import *
W = "work/"
build3(W + "m3_wdef.s", dict(C1, wpol=""))
build3(W + "m3_p100.s", dict(C1, pace=(6, 14, 1.0)))
build3(W + "m3_xnt.s", dict(C1, xpol=" nt"))
build3(W + "m3_nopark.s", dict(pace=(6, 14, 1.0)))
```

```python
from asmlib import *
from gen3 import K3, LDS, NS, G
def build3(path, kw={}, stamps=False, verbose=False):
    k = K3(stamps=stamps, **kw); e = k.gen(code_bytes=90112)
    L = e.text().split("\n"); L = L[:L.index("L_rare_o1:")]
    nb = sum(8 if l.strip().startswith(("v_mfma", "ds_", "buffer_", "global_")) else 6.0 for l in L if l.strip() and not l.strip().endswith(":"))
    k = K3(stamps=stamps, **kw); e = k.gen(code_bytes=int(nb) // 128 * 128)
    print(path, "inst", e.ninst, "nops", e.nops, "sim", len(k.sim_nops))
    if verbose:
        for x in k.sim_nops + e.noplog[-6:]: print("  ", x)
        for v in range(2): print([round(sum(max(16, c) for c in k.sc.cost[v][n*G:(n+1)*G])) for n in range(NS if v == 0 else 14)])
        print({k.tiles[t]: round(g/G, 1) for t, g in k.first_gap.items()}); print(k.pos)
    write_file(path, [(NAME + "_kernel", 256, 256, LDS)], [(NAME + "_kernel", page_stubs(e.text(), "A", "L_end", ("L_tail", "B") if k.warm2 else None), 512, 256, 102)])
r2 = ["v80", "a0", "a16", "a32", "a48", "a64"]
def park2(fs): return {k: (r2[k], f) for k, f in enumerate(fs)}
C1 = dict(park0=park2([0.9, 2.6, 4.2, 5.8, 7.6, 9.62]), park1=park2([0.9, 2.6, 4.2, 5.8, 7.6, 9.62]))
if __name__ == "__main__":
    W = "work/"
    build3(W + "b3_a.s", dict(C1, mode="slot"), stamps=True, verbose=True)
    build3(W + "b3_rel.s", C1)
```

```python
from build3 import *
B = dict(C1, maxsp=11, pace=(6, 14.1, 1.115), cap=3.5, popol=" nt", promo=0.1)
rd = ["v80", "a0", "a80", "a48", "a96", "a112"]
PD = {k: (rd[k], f) for k, f in enumerate([0.9, 2.6, 4.2, 5.8, 7.6, 9.62])}
D3 = dict(B, park0=PD, park1=PD, epi_order=(9, 8, 0, 5, 3, 6, 7, 1, 2, 4), drains=[10.0, 11.0, 12.0, 14.2, 15.2, 16.2], dsp=9, epi_end=12.5)
re_ = ["v80", "a32", "a80", "a48", "a96", "a112"]
def mk(fs, k0=4): return {k0 + k: (re_[k], f) for k, f in enumerate(fs)}
PE = mk([0.9, 2.4, 3.9, 5.4, 6.9, 8.4])
E = dict(B, park0=PE, park1=PE, epi_order=(9, 8, 2, 5, 3, 6, 7, 0, 1, 4), drains={4: 12.8, 5: 13.9, 6: 14.55, 7: 15.2, 8: 15.85, 9: 16.8}, dsp=8,
         kfirst=4, fixed={0: 9.9, 1: 10.8, 2: 11.7, 3: 12.6}, qxo=20, capfrom=10, pace=(10, 17.75, 1.15), skips=(16, 22, 28), pfq=13.7, pfo=13.7, epi_end=11)
```

```python
import math, struct
from emit import Emit
from asmlib import warm_call

def f32bits(x): return struct.unpack("<I", struct.pack("<f", x))[0]

PP_OFF = 0x100000
PP_GB = 140 * 8 * 1024
CT_OFF = PP_OFF + 32 * PP_GB
RB = 32768
LDS = RB + 8 * 16384
NFB = 8
TTHR = 10.0
NS, NT, G = 46, 53, 40
NM = NS * G
QEND = 14 * G

sX, sW, sK, sV = 8, 12, 16, 20
sWave, sW4096, sWoff, sKVoff, sT0, sT1, sC, sFlag, sIter = 28, 29, 32, 33, 34, 35, 36, 37, 38
sXE, sWB0, sWB1, sW128, sW2048, sW4, sT3, sRet, sSh, sT4 = 39, 40, 41, 44, 45, 46, 47, 48, 50, 51
sWs, sWoP, sHalf, sKVk, sPW = 52, 96, 24, 26, 27
sStamp = 60
sCode = 42
sDbg, sCt, sSig = 92, 90, 43
vDKV, vDW, vDX, vDE, vKP, vA, vL16, vXA = 0, 2, 4, 6, 7, 8, 16, 17
vMO, vMX, vLO, vLX, vT0, vT1, vT4 = 18, 20, 22, 24, 26, 27, 28
X, Y, P0, P1, SXA, SXB = 32, 96, 160, 192, 224, 240
XO, XE, OX = 32, 48, 64
aDK, aDV, aTW, aTV, aDE, aPO, aPW, aDummy, aDo, aDx, aSave = 224, 226, 228, 229, 230, 231, 232, 233, 234, 235, 236
def PK(k): return 192 + 8*k if k < 4 else 128 + 8*(k-4) if k < 8 else 240 + 8*(k-8)

def q4(f, i): return "%s[%d:%d]" % (f, i, i + 3)
def srd(s): return "s[%d:%d]" % (s, s + 3)

class Item:
    def __init__(self, f, cost, kind="v", sc=None, pv=None): self.f = f; self.cost = cost; self.kind = kind; self.sc = sc or []; self.pv = pv
    def __call__(self, e): self.f(e)
    def full(self, e):
        if self.pv: e(self.pv)
        for t in self.sc: e(t)
        self.f(e)

def cost_of(text):
    c = 0
    for l in text.split("\n"):
        l = l.strip()
        if not l or l.endswith(":"): continue
        c += 8 if l.startswith(("v_exp", "v_rcp")) else 4
    return c

class Sched:
    def __init__(self, n, split=0, wrap=False):
        self.n = n; self.split = split; self.wrap = wrap
        self.hard = [[[] for _ in range(n)] for v in range(2)]
        self.fill = [[[] for _ in range(n)] for v in range(2)]
        self.cost = [[8.0] * n for v in range(2)]
        self.head = [[[] for _ in range(n)] for v in range(2)]
        self.ws = 4
    def _vs(self, g, var): return [0] if g >= self.split else ([0, 1] if var is None else [var])
    def put(self, g, it, var=None, hard=False):
        if self.wrap: g %= self.n
        g = min(g, self.n - 1)
        for v in self._vs(g, var):
            (self.hard if hard else self.fill)[v][g].append(it); self.cost[v][g] += it.cost
    def putm(self, g, it, var=None):
        out = []
        h = g
        for t in reversed(it.sc):
            while True:
                hh = h % self.n if self.wrap else max(h, 0)
                vs = self._vs(hh, var)
                if ((hh + 1) % self.ws and not any(self.head[v][hh] for v in vs)) or h <= g - 3: break
                h -= 1
            x = Item(lambda e, t=t: e(t), 0, "s")
            for v in vs:
                if self.head[v][hh] or (hh + 1) % self.ws == 0: self.cost[v][hh] += 4
                self.head[v][hh].insert(0, x)
            out.insert(0, (h, -1, x))
        if it.pv:
            x = Item(lambda e: e(it.pv), cost_of(it.pv)); self.put(g - 1, x, var, True); out.append((g - 1, 1, x))
        self.put(g, it, var, True); out.append((g, 1, it))
        return out
    def spread(self, items, lo, hi, var=None):
        if var is None and lo < self.split:
            assert hi <= self.split
            for v in range(2): self.spread(items, lo, hi, v)
            return
        v = 0 if lo >= self.split else var
        tot = sum(it.cost for it in items)
        base = [self.cost[v][g] for g in range(lo, hi)]
        a, b = min(base), max(base) + tot
        for _ in range(40):
            mid = (a + b) / 2
            if sum(max(0, mid - x) for x in base) >= tot: b = mid
            else: a = mid
        room = [max(0, b - x) for x in base]
        cum = 0; k = 0; acc = 0
        for gi in range(hi - lo):
            cum += room[gi]
            while k < len(items) and (acc + items[k].cost / 2 <= cum or gi == hi - lo - 1):
                acc += items[k].cost; self.put(lo + gi, items[k], var); items[k].gap = lo + gi; k += 1

class K3:
    def __init__(self, stamps=False, mode="", LA=12, WS=4, dmacost=10, park0=None, park1=None, psp=4, epi_end=10,
                 pace=(6, 14, 1.14), skips=(12, 20, 28), pfq=10.1, slp=1, outpol="", retouch=True, pfs=None, nfirst=9, wpol=' nt', xpol='', sigs=(11, 19, 23), gates=((15, 24), (22.5, 14), (26, 8)), stw=40, warm2=37, pfo=10.1, popol='', wopol='', nopf='', cap=None, pace2=None, maxsp=8, cap1=None, osplit=0, capfrom=0, promo=None, drains=None, dsp=9, kfirst=0, fixed=None, qxo=4, opf=None, qcap=None, v15sp=4, epi_order=(9, 8, 0, 1, 2, 3, 4, 5, 6, 7)):
        self.kfirst = kfirst; self.fixed = fixed or {}; self.qxo = qxo; self.opf = opf; self.qcap = qcap; self.v15sp = v15sp
        self.drains = drains; self.dsp = dsp; self.epi_order = epi_order
        self.promo = promo
        self.osplit = osplit; self.capfrom = capfrom
        self.cap1 = cap1
        self.maxsp = maxsp
        self.cap = cap; self.pace2 = pace2
        self.wopol = wopol; self.nopf = nopf
        self.pfo = pfo; self.popol = popol
        self.warm2 = warm2
        self.sigs = sigs; self.gates = gates; self.stw = stw
        self.wpol = wpol; self.xpol = xpol
        self.pfs = pfs; self.nfirst = nfirst
        self.retouch = retouch; self.kvpol = '' if 'samekv' in mode else ' nt'
        self.stamps = stamps; self.mode = mode; self.LA = LA; self.WS = WS; self.dmacost = dmacost
        self.park = [park0 or {}, park1 or {}]; self.psp = psp; self.epi_end = epi_end; self.pace = pace
        self.pfq = pfq; self.slp = slp; self.outpol = outpol
        assert self.park[0].keys() == self.park[1].keys()
        self.clk = 's_memtime' if 'cyc' in mode else 's_memrealtime'
        T = []
        for i in range(7): T += [("X", i), ("W", 2*i), ("W", 2*i+1)]
        T += [("K", j) for j in range(16)] + [("V", j) for j in range(16)]
        self.tiles = T
        self.cons = [{"X": 2*j, "W": j, "K": 14 + j, "V": 30 + j}[k] for k, j in T]
        rel = [self.cons[i] + (1 if T[i][0] == "X" else 2) for i in range(NT)]
        p = 0; self.pos = []
        for i in range(NT):
            if i - 21 in skips: p += 1
            self.pos.append(p % 8); p += 1
        assert p % 8 == 0
        self.avail = []
        for i in range(NT):
            k = 1
            while self.pos[(i - k) % NT] != self.pos[i]: k += 1
            self.avail.append(rel[(i - k) % NT] - (NS if i - k < 0 else 0))
        self.tpos = {T[i]: self.pos[i] for i in range(NT)}

    @staticmethod
    def slot_kind(n):
        n %= NS
        return ("W", n) if n < 14 else ("K", n - 14) if n < 30 else ("V", n - 30)
    def I(self, text): return Item(lambda e: e(text), cost_of(text))
    def L(self, text, tag, cost=4): return Item(lambda e: e.lds_op(text, tag), cost, "m")
    def kvi(self, tau):
        k, j = self.tiles[tau]
        return {"K": j, "V": 16 + j}.get(k)

    def dma_items(self, tau, part=None, var=0):
        kind, j = self.tiles[tau]; p = self.pos[tau]
        tag = ("tile", kind, j)
        if kind == "W": base, o, d2, vb, s, pol = sWoff, j * 262144, 30720, vDW, sW, self.wpol
        elif kind == "K": base, o, d2, vb, s, pol = sKVk, (j // 4) * 65536 + (j % 4) * 128, 6144, vDKV, sK, self.kvpol
        elif kind == "V": base, o, d2, vb, s, pol = sKVoff, j * 16384, 2048, vDKV, sV, self.kvpol
        else: base, o, d2, vb, s, pol = None, j * 128, 12288, vDX, sX, self.xpol
        if kind == "K" and "kcont" in self.mode: base, o, d2 = sKVoff, j * 16384, 2048
        if part is not None:
            R = self.park[var][self.kvi(tau)][0]
            reg = lambda q: q4(R[0], int(R[1:]) + 4*q)
        if part == "drain":
            def mkd(q):
                def f(e):
                    if q == 0: e.wait(vm=tag)
                    e.lds_op(f"ds_write_b128 v{vT4+3}, {reg(q)} offset:{(p & 3) * 16384 + 1024*q}", ("pub",))
                return Item(f, 15, "m", pv=(f"v_add_u32 v{vT4+3}, s{sWB1 if p >> 2 else sWB0}, v{vL16}" if q == 0 else None))
            return [mkd(q) for q in range(4)]
        so = sT0 if part is None else sT4
        def mk(q):
            sc = []; pv = None
            if q == 0:
                aD_ = aDV if "kcont" in self.mode else aDK
                if (kind, j) == ("K", self.kfirst): pv = f"v_accvgpr_read_b32 v{vDKV}, a{aD_}\nv_accvgpr_read_b32 v{vDKV+1}, a{aD_+1}"
                if (kind, j) == ("V", 0): pv = f"v_accvgpr_read_b32 v{vDKV}, a{aDV}\nv_accvgpr_read_b32 v{vDKV+1}, a{aDV+1}"
                if part is None: sc.append(f"s_add_u32 m0, s{sW4096}, {RB + 16384 * p}")
                sc.append(f"s_movk_i32 s{so}, {o}" if base is None else f"s_add_u32 s{so}, s{base}, {o}")
            if q == 2: sc.append(f"s_add_u32 s{so}, s{so}, {d2}")
            if q == 3 and (kind, j) == ("V", 15):
                sc += [f"s_add_u32 s{sKVoff}, s{sKVoff}, {8*262144}", f"s_add_u32 s{sKVk}, s{sKVk}, {8*262144}"]
            if q == 4:
                v = vDE
                if "slot" in self.mode: v = vT4 + 2; pv = f"v_accvgpr_read_b32 v{v}, a{aDE}"
                sc = [f"s_add_u32 m0, s{sXE}, {4096*j}", f"s_movk_i32 s{sT0}, {o}"]
                t = f"buffer_load_dwordx4 v{v}, {srd(s)}, s{sT0} offen{pol} lds"
            elif part is None: t = f"buffer_load_dwordx4 v{vb + (q & 1)}, {srd(s)}, s{so} offen offset:{1024*q}{pol} lds"
            else: t = f"buffer_load_dwordx4 {reg(q)}, v{vb + (q & 1)}, {srd(s)}, s{so} offen offset:{1024*q}{pol}"
            if self.cap is not None and part is None and kind in "KV" and self.kvi(tau) >= self.capfrom:
                c = self.cap if not isinstance(self.cap, tuple) else self.cap[0 if self.kvi(tau) < 20 else 1]
                if c != int(c):
                    n_ = 4 * self.kvi(tau) + q; c = int(c)
                    c = c if n_ % (2 * c + 3) < c + 1 else c + 1
                w = f"s_waitcnt vmcnt({c})"
                if self.cap1 is not None:
                    c1 = self.cap1 if not isinstance(self.cap1, tuple) else self.cap1[0 if self.kvi(tau) < 20 else 1]
                    if c1 < c: w += f"\ns_cmp_eq_u32 s{sIter}, 0\ns_cbranch_scc1 L_cp{tau}_{q}\ns_waitcnt vmcnt({c1})\nL_cp{tau}_{q}:"
                sc = sc + [w]
            if self.qcap is not None and (part == "load" or kind in "WX"): sc = sc + [f"s_waitcnt vmcnt({self.qcap})"]
            return Item(lambda e: e.vm_op(t, tag), self.dmacost, "m", sc, pv)
        return [mk(q) for q in range(5 if kind == "X" else 4)]

    def slot_mfmas(self, n):
        kind, j = self.slot_kind(n)
        po = (self.tpos[(kind, j)] & 3) * 16384
        L = []
        def pair(accf, acc, frag, Bf, B0, first, tags=(None, None)):
            for nu in range(2):
                L.append(dict(acc=q4(accf, acc + 8*nu), frag=(frag if nu == 0 else None), B=q4(Bf, B0 + 4*nu), first=first, lds=tags[nu]))
        if kind == "W":
            kp = j & 1; i = j // 2
            def own(mu): pair("v", Y + 16*(mu >> 1) + 4*(mu & 1), ("tr", mu & 7, po + (mu >> 3) * 256, 2048), "v", XO + 8*kp, j == 0, (("xo", i, 2*kp), ("xo", i, 2*kp+1)))
            def ext(m): pair("v", SXA + 16*(m >> 1) + 4*(m & 1), ("trx", m, po, 2048), "v", XE + 8*kp, j == 0, (("xe", i, 2*kp), ("xe", i, 2*kp+1)))
            if j < 13:
                for mu in range(8): own(mu)
                for m in range(4): ext(m)
                for mu in range(8, 16): own(mu)
            else:
                for m in range(4): ext(m)
                for mu in range(16): own(mu)
        elif kind == "K":
            g, c = j // 4, j % 4
            SB = X if g % 2 == 0 else Y; SX = SXA if g % 2 == 0 else SXB
            for mu in range(8):
                for kp in range(2):
                    pair("v", SB + 16*(mu >> 1) + 4*(mu & 1), ("b128", kp, po + mu * 2048), "a", 8*(2*c + kp), c == 0 and kp == 0)
            for e_ in range(2):
                for kp in range(2):
                    k = 2*c + kp
                    pair("v", SX + 4*e_, ("b128", 2 + kp, po + e_ * 2048), "a", 64 + 8*k, c == 0 and kp == 0,
                         (("qx", 2*k), ("qx", 2*k+1)) if g == 0 else (None, None))
        else:
            g, T = j // 4, j % 4
            PB = [P0, P1, X, Y][g]
            for mu in range(16):
                pair("a", 16*(mu >> 1) + 4*(mu & 1), ("tr", mu & 7, po + (mu >> 3) * 256, 8192), "v", PB + 8*T, j == 0)
                if (mu & 7) < 2:
                    pair("v", OX + 16*(mu >> 3) + 4*(mu & 1), None, "v", SXA + 8*(j & 1), j == 0, (("px", j, 0), ("px", j, 1)))
        assert len(L) == G
        return L

    def addr_updates(self, n):
        kind, j = self.slot_kind(n); pk, pj = self.slot_kind(n - 1)
        win = self.tpos[(kind, j)] >> 2; base = RB + 65536 * win
        if kind == pk:
            if win == self.tpos[(pk, pj)] >> 2: return []
            return [(r, f"v_xor_b32 v{vA+r}, 0x10000, v{vA+r}", None) for r in range(4 if kind == "K" else 8)]
        if kind == "K":
            return [(0, f"v_add_u32 v{vA}, {base}, v{vKP}", None), (1, f"v_xor_b32 v{vA+1}, 64, v{vA}", 0),
                    (2, f"v_add_u32 v{vA+2}, s{sW4096}, v{vA}", 0), (3, f"v_add_u32 v{vA+3}, s{sW4096}, v{vA+1}", 1)]
        U = [(0, f"v_accvgpr_read_b32 v{vA}, a{aTV if kind == 'V' else aTW}\nv_add_u32 v{vA}, {base}, v{vA}", None)]
        return U + [(r, f"v_xor_b32 v{vA+r}, {32*r}, v{vA}", 0) for r in range(1, 8)]

    def fold(self, a, b, op):
        I = self.I
        return [I(f"v_permlane32_swap_b32 v{a}, v{b}\n{op} v{a}, v{a}, v{b}"), I(f"v_mov_b32 v{b}, v{a}"),
                I(f"v_permlane16_swap_b32 v{a}, v{b}\n{op} v{a}, v{a}, v{b}")]
    def maxtree(self, SB, nblk, a, b):
        F = []
        for nu, t in ((0, a), (1, b)):
            src = [SB + 16*k + 8*nu + i for k in range(nblk) for i in range(8)]
            ops = [f"v_max3_f32 v{t}, v{src[0]}, v{src[1]}, v{src[2]}"]
            for i in range(3, len(src) - 1, 2): ops.append(f"v_max3_f32 v{t}, v{t}, v{src[i]}, v{src[i+1]}")
            ops.append(f"v_max_f32 v{t}, v{t}, v{src[-1]}")
            F.append(ops)
        return [self.I(x) for p in zip(*F) for x in p] + self.fold(a, b, "v_max_f32")
    def max_update(self, g, vM, aD, nm):
        I = self.I
        if g == 0:
            return [I(f"v_mul_f32 v{vM}, s{sC}, v{vT0}\nv_ceil_f32 v{vM}, v{vM}"), I(f"v_mov_b32 v{vM+1}, v{vM}"),
                    I(f"v_accvgpr_write_b32 a{aD}, 0"), I(f"v_permlane32_swap_b32 v{vM}, v{vM+1}")]
        lab = f"L_rare_{nm}{g}"
        return [I(f"v_cndmask_b32 v{vT1}, v{vM+1}, v{vM}, s[{sHalf}:{sHalf+1}]\nv_fma_f32 v{vT1}, v{vT0}, s{sC}, -v{vT1}\n"
                  f"v_cmp_lt_f32 vcc, 0x{f32bits(TTHR):08x}, v{vT1}\ns_cbranch_vccnz {lab}\n{lab}_back:")]
    def rare_block(self, e, g, vM, vL, aD, nm):
        lab = f"L_rare_{nm}{g}"
        e(f"""{lab}:
        v_cndmask_b32 v{vT1}, v{vM+1}, v{vM}, s[{sHalf}:{sHalf+1}]
        v_mul_f32 v{vM}, s{sC}, v{vT0}
        v_ceil_f32 v{vM}, v{vM}
        v_max_f32 v{vM}, v{vM}, v{vT1}
        v_sub_f32 v{vT0}, v{vM}, v{vT1}
        v_mov_b32 v{vM+1}, v{vM}
        v_min_f32 v{vT0}, 0x437f0000, v{vT0}
        v_cvt_u32_f32 v{vT0}, v{vT0}
        v_permlane32_swap_b32 v{vM}, v{vM+1}
        v_accvgpr_read_b32 v{vT1}, a{aD}
        v_lshl_or_b32 v{vT1}, v{vT0}, {8*(g-1)}, v{vT1}
        v_accvgpr_write_b32 a{aD}, v{vT1}
        v_sub_u32 v{vT0}, 0, v{vT0}
        v_mov_b32 v{vT1}, v{vT0}
        s_nop 1
        v_permlane32_swap_b32 v{vT0}, v{vT1}
        v_ldexp_f32 v{vL}, v{vL}, v{vT0}
        v_ldexp_f32 v{vL+1}, v{vL+1}, v{vT1}
        s_bitset1_b32 s{sFlag}, {g}
        s_nop 1
        s_branch {lab}_back""")
    def exp_block(self, SB, n, PD, vM, vL, first):
        I = self.I; F = []
        nu = lambda p: (p >> 2) & 1
        def tail(p):
            a, b = SB + 2*p, SB + 2*p + 1; l = vL + nu(p)
            if first and p in (0, 4): r = [I(f"v_add_f32 v{l}, v{a}, v{b}")]
            else:
                r = [I(f"v_add_f32 v{l}, v{l}, v{a}"), I(f"v_add_f32 v{l}, v{l}, v{b}")]
                for x in r: x.isadd = True
            return r + [I(f"v_cvt_pk_bf16_f32 v{PD+p}, v{a}, v{b}")]
        for p in range(n // 2):
            a, b = SB + 2*p, SB + 2*p + 1; m = vM + nu(p)
            F += [I(f"v_fma_f32 v{a}, v{a}, s{sC}, -v{m}"), I(f"v_fma_f32 v{b}, v{b}, s{sC}, -v{m}"), I(f"v_exp_f32 v{a}, v{a}")]
            if p > 0: F += tail(p - 1)[:1]
            F.append(I(f"v_exp_f32 v{b}, v{b}"))
            if p > 0: F += tail(p - 1)[1:]
        return F + tail(n // 2 - 1)

    def qfrag(self, b):
        I = self.I
        return [I(f"v_cvt_pk_bf16_f32 v{b+i}, v{b+2*i}, v{b+2*i+1}") for i in range(4)]
    def qswap(self, b):
        return [self.I(f"v_permlane16_swap_b32 v{b}, v{b+2}"), self.I(f"v_permlane16_swap_b32 v{b+1}, v{b+3}")]
    def q_convert(self, k):
        F = []
        for nu in range(2): F += self.qfrag(Y + 16*k + 8*nu)
        for nu in range(2):
            b = Y + 16*k + 8*nu
            F += self.qswap(b) + [self.I(f"v_accvgpr_write_b32 a{8*k+4*nu+i}, v{b+i}") for i in range(4)]
        return F
    def norm_tile(self, k, tmp, dstf, dst):
        I = self.I; F = []
        vl = vLO if k < 8 else vLX
        if k >= 8: tmp = OX + 16 * (k - 8)
        else: F += [I(f"v_accvgpr_read_b32 v{tmp+i}, a{16*k+i}") for i in range(16)]; F[-1].epi = k
        F += [I(f"v_mul_f32 v{tmp+i}, v{tmp+i}, v{vl + (i >> 3)}") for i in range(16)]
        if dstf == "v": F += [I(f"v_cvt_pk_bf16_f32 v{dst+i}, v{tmp+2*i}, v{tmp+2*i+1}") for i in range(8)]
        else:
            F += [I(f"v_cvt_pk_bf16_f32 v{tmp+i}, v{tmp+2*i}, v{tmp+2*i+1}") for i in range(8)]
            F += [I(f"v_accvgpr_write_b32 a{dst+i}, v{tmp+i}") for i in range(8)]
        if k >= 8: F[-1].epi = k
        return F

    def number(self, M, pfx):
        fid = -1
        for m in M:
            if m["frag"] is not None: fid += 1
            m["fid"] = (pfx, fid); m["fb"] = 160 + 4 * (fid % NFB)
        return fid + 1
    def read_items(self, m, vbase):
        fr = m["frag"]; b = m["fb"]; t = m["fid"]
        if fr[0] == "b128": return [self.L(f"ds_read_b128 a[{b}:{b+3}], v{vbase+fr[1]} offset:{fr[2]}", t)]
        v = vbase + fr[1]; pv = None
        if fr[0] == "trx":
            v = vT0 + (fr[1] & 1); pv = f"v_xor_b32 v{v}, s{sW128}, v{vbase+fr[1]}"
        r0 = self.L(f"ds_read_b64_tr_b16 a[{b}:{b+1}], v{v} offset:{fr[2]}", t); r0.pv = pv
        return [r0, self.L(f"ds_read_b64_tr_b16 a[{b+2}:{b+3}], v{v} offset:{fr[2]+fr[3]}", t)]
    def barrier_item(self, tag, n=None):
        def f(e):
            pubs = [t for t in e.lds[e.lds_done:] if t == ("pub",)]
            e.wait(vm=tag, lds=(("pub",) if pubs else None))
            if "slot" in self.mode and n is not None:
                e(f"v_writelane_b32 v{vDE}, s{86 + 2*((n+1)&1)}, {(n + NS - 1) % NS}")
            e("s_barrier")
            if "slot" in self.mode and n is not None: e(f"s_memtime s[{86 + 2*(n&1)}:{87 + 2*(n&1)}]")
        return Item(f, 24, "m")
    def need(self, M, i):
        n = len(M); m = M[i % n]
        l = [m["fid"]]
        if m.get("lds"): l.append(m["lds"])
        if i % self.WS == 0: l.append(M[min(i % n + self.WS - 1, n - 1)]["fid"])
        return l
    def emit_range(self, e, M, sc, var, lo, hi, pre=None, cyc=True):
        n = len(M); carry = []
        for i in range(lo, hi):
            m = M[i]; v = var if i < sc.split else 0
            if pre and i in pre:
                for it in pre[i]: it(e)
            e.wait(lds=[m["fid"]] + ([m["lds"]] if m.get("lds") else []))
            e(f"v_mfma_f32_16x16x32_bf16 {m['acc']}, a[{m['fb']}:{m['fb']+3}], {m['B']}, {'0' if m['first'] else m['acc']}")
            if i + 1 < n or cyc:
                issued = set(e.lds[-64:])
                l = [t for t in self.need(M, i + 1) if t in issued]
                if l: e.wait(lds=l)
                else: e.waits.append((None, None))
            for it in sc.head[v][i]: it(e)
            seq = carry + sc.fill[v][i]; carry = []
            k = 0
            while k < len(seq) and seq[k].kind != "v": k += 1
            for it in sc.hard[v][i]:
                if it.kind != "v": it(e)
            for it in seq[:k]: it(e)
            for it in sc.hard[v][i]:
                if it.kind == "v": it(e)
            rest = seq[k:]
            for j, it in enumerate(rest):
                if it.kind == "m" and i + 1 < hi: carry = rest[j:]; break
                it(e)

    def build(self):
        LA = self.LA; I = self.I; L = self.L
        M = [m for n in range(NS) for m in self.slot_mfmas(n)]
        assert self.number(M, "f") % NFB == 0
        sc = Sched(NM, QEND, wrap=True)
        S = lambda n: n * G
        sc.ws = self.WS
        self.carry = []
        def hard(g, it, c=False):
            sc.put(g, it, hard=True)
            if c: self.carry.append((g, 0, it))
        xr = {}
        for n in range(NS):
            hard(S(n) - LA, self.barrier_item(("tile",) + self.slot_kind(n), n), n == 0)
            kind, j = self.slot_kind(n)
            if kind == "W" and j % 2 == 0:
                i = j // 2; p = self.tpos[("X", i)]; o = (p & 3) * 16384
                hard(S(n) - LA - 2, I(f"v_add_u32 v{vXA}, s{sWB1 if p >> 2 else sWB0}, v{vKP}"), n == 0)
                for nu in range(2): hard(S(n) - LA, L(f"ds_read_b128 {q4('v', XO+4*nu)}, v{vXA} offset:{o + 2048*nu}", ("xo", i, nu)), n == 0)
                seq = [L(f"ds_read_b128 {q4('v', XE+4*nu)}, v{vKP} offset:{4096*i + 2048*nu}", ("xe", i, nu)) for nu in range(2)]
                seq += [I(f"v_xor_b32 v{vXA}, 64, v{vXA}")] + [L(f"ds_read_b128 {q4('v', XO+8+4*nu)}, v{vXA} offset:{o + 2048*nu}", ("xo", i, 2+nu)) for nu in range(2)]
                seq += [I(f"v_xor_b32 v{vXA}, 64, v{vKP}")] + [L(f"ds_read_b128 {q4('v', XE+8+4*nu)}, v{vXA} offset:{4096*i + 2048*nu}", ("xe", i, 2+nu)) for nu in range(2)]
                xr[n] = seq
        trx = []
        lastuse = [dict() for _ in range(NS)]; firstuse = [dict() for _ in range(NS)]
        for i, m in enumerate(M):
            if m["frag"] is None: continue
            R = self.read_items(m, vA)
            for k, it in enumerate(R): hard(i - LA + k, it, i - LA + k < 0)
            r = m["frag"][1]; x = 1 if R[0].pv else 0
            if x: trx.append((i - LA - 1, I(R[0].pv)))
            lastuse[i // G][r] = i - LA + (len(R) - 1 if not x else -1)
            firstuse[i // G].setdefault(r, i - LA)
        for n in range(NS):
            pos = {}; used = {}
            prev = lastuse[(n - 1) % NS]; off = -NM if n == 0 else 0
            for r, text, dep in self.addr_updates(n):
                p = max(prev.get(r, S(n - 1) - off) + off, pos[dep] if dep is not None else -10**9)
                while used.get(p, 0) >= 1 and p + 1 < firstuse[n][r]: p += 1
                assert p < firstuse[n][r], (n, r, p)
                used[p] = used.get(p, 0) + 1; pos[r] = p
                hard(p, I(text), n == 0 and p < 0)
        for g, it in trx: hard(g, it)
        for n, seq in xr.items():
            for k, it in enumerate(seq): sc.put(S(n) + 1 + 3 * k, it)
        order = list(range(21, NT)) + list(range(21))
        if self.drains: order = [t for t in order if self.kvi(t) not in self.park[0]]
        want = []
        for tau in order:
            g = (self.avail[tau] + (NS if tau < 21 else 0)) * G - LA + 2
            k = self.kvi(tau)
            if k is not None and k >= self.pace[0]: g = max(g, int(round((self.pace[1] + (k - self.pace[0]) * self.pace[2]) * G)))
            if self.pace2 and k is not None and k >= self.pace2[0]: g = max(g, int(round((self.pace2[1] + (k - self.pace2[0]) * self.pace2[2]) * G)))
            if k in self.fixed: g = max(g, int(round(self.fixed[k] * G)))
            if want: g = max(g, want[-1])
            want.append(g)
        self.first_gap = {}; cur = -1000; self.drain_end = {}
        for n_, tau in enumerate(order):
            parked = self.kvi(tau) in self.park[0]
            g = max(want[n_], cur)
            later = [w for w in want[n_+1:] + [want[0] + NM] if w > g]
            backlog = sum(1 for w in want[n_:] if w <= g)
            nit = 5 if self.tiles[tau][0] == "X" else 4
            room = (later[0] - g) if backlog <= 1 else min(max(later[0] - g, 36), G) / backlog
            sp = max(4, min(self.maxsp if self.tiles[tau][0] in 'KV' and not parked else 8, int(room // nit)))
            if tau == NT - 1: sp = self.v15sp
            self.first_gap[tau] = g
            deadline = (self.cons[tau] + (NS if tau < 21 else 0)) * G - LA
            assert g + sp * nit + (20 if parked else 50) < deadline, (tau, g, deadline)
            if parked: assert self.park[0][self.kvi(tau)][0] == self.park[1][self.kvi(tau)][0]
            for k, it in enumerate(self.dma_items(tau, "drain" if parked else None, 0)):
                gg = g + sp * k
                for g_, o_, x_ in sc.putm(gg, it, None):
                    x_.dma = True
                    if tau < 21 and g_ < NM: self.carry.append((g_ - NM, o_, x_))
            if parked: self.drain_end[self.park[0][self.kvi(tau)][0]] = g + sp * (nit - 1)
            cur = g + sp * nit
        assert cur <= want[0] + NM
        if self.drains:
            need = {"a0": S(13)+16, "a16": S(14), "a32": S(15), "a48": S(16), "a64": S(14)+self.qxo, "a80": S(15)+self.qxo, "a96": S(16)+self.qxo, "a112": S(17)+self.qxo, "v80": S(14)+20}
            last = -1
            for k in sorted(self.park[0]):
                tau = 21 + k; R = self.park[0][k][0]; assert R == self.park[1][k][0]
                g = int(round(self.drains[k] * G)); sp = self.dsp
                assert g >= self.avail[tau] * G - LA + 2 and g - 1 > last and g + 3*sp + 12 < self.cons[tau] * G - LA and g + 3*sp < need[R], (k, g)
                for q, it in enumerate(self.dma_items(tau, "drain", 0)): sc.putm(g + sp * q, it, None)
                self.first_gap[tau] = g; last = g + 3 * sp
        self.pro_park = []
        for v in range(2):
            for tau in range(21, NT):
                k = self.kvi(tau)
                if k in self.park[v]:
                    g0 = int(round(self.park[v][k][1] * G))
                    assert g0 + 3 * self.psp + 60 < self.first_gap[tau], (k, g0)
                    its = self.dma_items(tau, "load", v)
                    if g0 < 0:
                        assert v == 0; self.pro_park += its
                    else:
                        for q, it in enumerate(its): sc.putm(g0 + self.psp * q, it, v)
        for c in range(4):
            for s in range(4):
                f = 4*c + s
                assert self.drain_end.get(f"a{64+16*c}", 0) < S(14 + c) + 4
                sc.put(S(14 + c) + self.qxo + (4 if self.qxo < 10 else 2)*s, L(f"ds_read_b128 {q4('a', 64+4*f)}, v{vL16} offset:{f*1024}", ("qx", f)))
        for j in range(16):
            for nu in range(2):
                sc.put(S(30 + j) - 16 + 5*nu, L(f"ds_read_b128 {q4('v', SXA+8*(j&1)+4*nu)}, v{vL16} offset:{(2*j+nu)*1024}", ("px", j, nu)))
        g = int(self.pfq * G); assert g > self.first_gap[20] - NM + 32
        pf0 = Item(lambda e: e.vm_op(f"buffer_load_dword a{aDummy}, v{vT4+1}, {srd(sW)}, s{sWoff} offen{self.popol}", ("pf",)), 16, "m",
                   [f"s_add_u32 s{sWoff}, s{sWoff}, 4096"], f"v_accvgpr_read_b32 v{vT4+1}, a{aPW}")
        touch = lambda: Item(lambda e: e.vm_op(f"buffer_load_dword a{aDummy}, v{vL16}, s[56:59], s{sCode} offen", ("pf",)), 16, "m")
        if "w" in self.nopf: pf0.f = lambda e: None
        sc.put(g - 4, touch(), 0, True); sc.putm(g, pf0, 0)
        g1 = int(self.pfo * G)
        pfo = lambda nr: Item(lambda e: e.vm_op(f"buffer_load_dword a{aDummy}, v{vT4+1}, {srd(sWoP)}, 0 offen{self.popol}", ("pf",)), 16, "m",
                              nr, f"v_accvgpr_read_b32 v{vT4+1}, a{aPO}")
        pf1 = pfo([f"s_mov_b32 s{sWoP+2}, {8*229376 if self.osplit == 1 else 0 if self.osplit == 2 else 3670016}"])
        if self.osplit == 1: sc.putm(g + 4, pfo([f"s_cmp_ge_u32 s{sWave}, 2\ns_cselect_b32 s{sWoP+2}, 3670016, 0"]), 0)
        if self.osplit == 2: sc.putm(g + 4, pfo([f"s_mov_b32 s{sWoP+2}, 3670016"]), 0)
        if "o" in self.nopf or self.opf is not None: pf1.f = lambda e: None
        sc.put(g1 - 4, touch(), 1, True); sc.putm(g1, pf1, 1)
        if self.promo:
            d = int(self.promo * G)
            sc.putm(g + d, Item(lambda e: e.vm_op(f"buffer_load_dword a{aDummy}, v{vT4+1}, {srd(sW)}, s{sWoff} offen sc1", ("pf",)), 16, "m", [], f"v_accvgpr_read_b32 v{vT4+1}, a{aPW}"), 0)
            if self.opf is None: sc.putm(g1 + d, Item(lambda e: e.vm_op(f"buffer_load_dword a{aDummy}, v{vT4+1}, {srd(sWoP)}, 0 offen sc1", ("pf",)), 16, "m", [], f"v_accvgpr_read_b32 v{vT4+1}, a{aPO}"), 1)
        def arm(e):
            e(f"""s_add_u32 s{sT1}, s7, s{sWave}
            s_cmp_lg_u32 s{sT1}, 0
            s_cbranch_scc1 L_noarm
            v_mov_b32 v{vT4}, s{sSig}
            v_mov_b32 v{vT4+1}, 1
            s_mov_b64 exec, 1
            buffer_atomic_add v{vT4+1}, v{vT4}, {srd(sDbg)}, 0 offen sc1
            s_mov_b64 exec, -1
            L_noarm:""")
        sc.put(S(12) + 30, Item(arm, 12), 0)
        epi = [it for k in self.epi_order for it in self.norm_tile(k, OX, "a", PK(k))]
        sc.spread(epi, 0, int(self.epi_end * G), 1)
        done = {it.epi: it.gap for it in epi if hasattr(it, "epi")}
        for k, (R, f) in self.park[1].items():
            assert f * G > done[9 if R[0] == "v" else int(R[1:]) // 16], (k, R, f, done)
        qx = [I(f"v_add_u32 v{vT4}, s{sW4096}, v{vL16}")]
        for f in range(4): qx += self.qfrag(SXA + 8*f)
        for f in range(4): qx += self.qswap(SXA + 8*f) + [L(f"ds_write_b128 v{vT4}, {q4('v', SXA+8*f)} offset:{f*1024}", ("pub",), 16)]
        sc.spread(qx, S(13) + 10, S(14) - LA - 2)
        sc.spread(self.q_convert(0), S(13) + 16, S(13) + 30)
        sc.spread(self.q_convert(1), S(13) + 30, S(14))
        for c in range(3): sc.spread(self.q_convert(2 + 2*c) + self.q_convert(3 + 2*c), S(14 + c), S(15 + c) - 2)
        sc.put(S(14), I(f"s_mov_b32 s{sFlag}, 0"))
        for g in range(4):
            SX = SXA if g % 2 == 0 else SXB; q0 = S(18 + 4*g)
            x1 = self.maxtree(SX, 1, vT4, vT4 + 1) + [I(f"v_add_u32 v{vT4+2}, s{sW4}, v{vL16}")]
            x1 += [L(f"ds_write_b32 v{vT4+2}, v{vT4} offset:{(4*g+r)*2048}", ("pub",), 8) for r in range(4)]
            f2 = [I(f"v_add_u32 v{vT0}, s{sW2048}, v{vL16}"), L(f"ds_read_b128 {q4('v', vT4)}, v{vT0} offset:{4*g*2048}", ("st", g))]
            def comb(e, g=g):
                e.wait(lds=("st", g))
                e(f"v_max3_f32 v{vT0}, v{vT4}, v{vT4+1}, v{vT4+2}\nv_max_f32 v{vT0}, v{vT0}, v{vT4+3}")
            g2 = [Item(comb, 8)] + self.max_update(g, vMX, aDx, "x") + self.exp_block(SX, 16, SX, vMX, vLX, g == 0)
            g2 += [I(f"v_add_u32 v{vT4}, s{sW2048}, v{vL16}")]
            g2 += [L(f"ds_write_b128 v{vT4}, {q4('v', SX+4*nu)} offset:{4*g*2048+nu*1024}", ("pub",), 16) for nu in range(2)]
            sc.spread(x1, q0 + 6, q0 + G - LA - 3); sc.spread(f2, q0 + 44, q0 + 48); sc.spread(g2, q0 + 56, q0 + 130)
        for g in range(4):
            SB = X if g % 2 == 0 else Y; q0 = S(18 + 4*g); q1 = q0 + 4*G if g < 3 else S(42) - 4
            om = self.maxtree(SB, 4, vT0, vT1) + self.max_update(g, vMO, aDo, "o")
            nm = 20 if g < 3 else 30
            sc.spread(om, q0, q0 + nm)
            eb = self.exp_block(SB, 64, [P0, P1, X, Y][g], vMO, vLO, g == 0)
            if "noadd" in self.mode: eb = [it for it in eb if not getattr(it, "isadd", False)]
            sc.spread(eb, q0 + nm, q1 - 2)
        pre = {}
        for g in range(1, 4):
            pre[S(30 + 4*g)] = [I(f"s_bitcmp1_b32 s{sFlag}, {g}\ns_cbranch_scc0 L_nores{g}\ns_mov_b32 s{sSh}, {8*(g-1)}\n"
                                  f"s_call_b64 s[{sRet}:{sRet+1}], L_rescale\nL_nores{g}:")]
        if self.stamps:
            pre.setdefault(S(14), []).append(I(f"{self.clk} s[{sStamp+20}:{sStamp+21}]"))
            pre.setdefault(S(30), []).append(I(f"{self.clk} s[{sStamp+22}:{sStamp+23}]"))
        if self.warm2:
            pre.setdefault(S(self.warm2) + 20, []).append(I(f"s_cmp_eq_u32 s{sIter}, 0\ns_cbranch_scc1 L_nowarm\n" + warm_call("B", sWave) + "L_nowarm:"))
        lx = self.fold(vLX, vLX + 1, "v_add_f32") + [I(f"v_add_u32 v{vT0}, s{sW4}, v{vL16}"), L(f"ds_write_b32 v{vT0}, v{vLX} offset:16384", ("pub",), 8)]
        sc.spread(lx, S(40), S(40) + 20)
        def lx2(e):
            e.wait(lds=("lx",))
            e(f"v_add_f32 v{vT4}, v{vT4}, v{vT4+1}\nv_add_f32 v{vT4+2}, v{vT4+2}, v{vT4+3}\nv_add_f32 v{vLX}, v{vT4}, v{vT4+2}\nv_rcp_f32 v{vLX}, v{vLX}")
        expand = lambda r: [I(f"v_mov_b32 v{r+1}, v{r}"), I("s_nop 0"), I(f"v_permlane32_swap_b32 v{r}, v{r+1}")]
        sc.put(S(41) + 4, L(f"ds_read_b128 {q4('v', vT4)}, v{vL16} offset:16384", ("lx",)))
        sc.spread([Item(lx2, 20)] + expand(vLX), S(41) + 18, S(41) + 30)
        sc.spread(self.fold(vLO, vLO + 1, "v_add_f32") + [I(f"v_rcp_f32 v{vLO}, v{vLO}")] + expand(vLO), S(42), S(42) + 24)
        self.M, self.sc, self.pre = M, sc, pre

    def gen(self, code_bytes):
        import copy
        self.build()
        M, sc, pre = self.M, self.sc, self.pre
        gs = self.gsplit = (min(g for g, o, it in self.carry) + NM - 1) // self.WS * self.WS
        keys = ("t", "mfma_w", "mfma_c", "valu_w", "trans_w", "valu_sw", "m0_w", "store_d", "lds", "vm", "lds_done", "vm_done")
        def run(ov, sim):
            e = Emit(); e.wait_override = ov
            self.prologue(e, code_bytes)
            self.emit_range(e, M, sc, 0, 0, QEND, pre)
            e("L_kv:")
            w0 = len(e.waits)
            self.emit_range(e, M, sc, 0, QEND, gs, pre)
            w1 = len(e.waits)
            e(f"s_cmp_lg_u32 s{sIter}, 0\ns_cbranch_scc1 L_tail")
            snap = {k: copy.deepcopy(getattr(e, k)) for k in keys}
            self.emit_range(e, M, sc, 0, gs, NM, pre)
            e(f"s_mov_b32 s{sIter}, 1")
            if self.stamps:
                e(f"{self.clk} s[{sStamp+24}:{sStamp+25}]\ns_waitcnt lgkmcnt(0)")
                for k in range(6): e(f"s_mov_b32 s{sStamp+4+k}, s{sStamp+20+k}")
            if "slot" in self.mode: e(f"v_accvgpr_write_b32 a{aSave+3}, v{vDE}")
            self.emit_range(e, M, sc, 1, 0, QEND, pre)
            e("s_branch L_kv")
            w2 = len(e.waits)
            if sim: self.emit_range(e, M, sc, 0, QEND, gs, pre)
            return e, w0, w1, w2, snap
        e, w0, w1, w2, snap = run(None, True)
        self.sim_nops = list(e.noplog)
        mn = lambda a, b: b if a is None else a if b is None else min(a, b)
        wa = e.waits
        ov = wa[:w0] + [(mn(a[0], b[0]), mn(a[1], b[1])) for a, b in zip(wa[w0:w1], wa[w2:])] + wa[w1:w2]
        e, w0, w1, w2, snap = run(ov, False)
        e.wait_override = None
        for k in keys: setattr(e, k, snap[k])
        e("L_tail:")
        e("s_cbranch_execz B_stub0")
        self.tail(e)
        if self.stamps: self.dump_stamps(e)
        e("L_end:\ns_endpgm")
        self.tail_slow()
        for g in range(1, 4):
            self.rare_block(e, g, vMO, vLO, aDo, "o"); self.rare_block(e, g, vMX, vLX, aDx, "x")
        t = P0
        e("L_rescale:\ns_nop 15")
        for k, aD in enumerate((aDo, aDx)):
            a = t + 2*k
            e(f"v_accvgpr_read_b32 v{a}, a{aD}\nv_lshrrev_b32 v{a}, s{sSh}, v{a}\nv_and_b32 v{a}, 255, v{a}\nv_sub_u32 v{a}, 0, v{a}\nv_mov_b32 v{a+1}, v{a}")
            e(f"v_permlane32_swap_b32 v{a}, v{a+1}")
        for i in range(32): e(f"v_ldexp_f32 v{OX+i}, v{OX+i}, v{t + 2 + ((i >> 3) & 1)}")
        for i in range(0, 128, 8):
            for q in range(8): e(f"v_accvgpr_read_b32 v{t+8+q}, a{i+q}")
            for q in range(8): e(f"v_ldexp_f32 v{t+8+q}, v{t+8+q}, v{t + ((i >> 3) & 1)}")
            for q in range(8): e(f"v_accvgpr_write_b32 a{i+q}, v{t+8+q}")
        e(f"s_nop 3\ns_setpc_b64 s[{sRet}:{sRet+1}]")
        return e

    def dump_stamps(self, e):
        e(f"s_waitcnt vmcnt(0)\n{self.clk} s[{sStamp+16}:{sStamp+17}]\ns_waitcnt lgkmcnt(0)")
        e(f"s_mov_b32 s{sWs+2}, 0x100000\ns_mov_b32 s{sWs+3}, 0x20000")
        if "slot" in self.mode:
            e(f"s_lshl_b32 s{sT0}, s2, 2\ns_add_u32 s{sT0}, s{sT0}, s{sWave}\ns_lshl_b32 s{sT0}, s{sT0}, 9\ns_add_u32 s{sT0}, s{sT0}, 0x10000")
            e(f"v_lshrrev_b32 v40, 2, v{self.vLn}")
            e(f"buffer_store_dword a{aSave+3}, v40, {srd(sWs)}, s{sT0} offen")
            e(f"buffer_store_dword a{aSave+2}, v40, {srd(sWs)}, s{sT0} offen offset:256")
        e(f"s_mul_i32 s{sT0}, s2, 96\ns_cmp_lg_u32 s{sWave}, 0\ns_cbranch_scc1 L_end\nv_mov_b32 v40, s{sT0}\ns_mov_b64 exec, 1")
        for k, sr in enumerate([0, 1, 2, 3, 4, 10, 11, 12, 5, 6, 7, 8]):
            e(f"v_mov_b32 v42, s{sStamp+2*sr}\nv_mov_b32 v43, s{sStamp+2*sr+1}")
            e(f"buffer_store_dwordx2 v[42:43], v40, {srd(sWs)}, 0 offen offset:{8*k}\ns_nop 1")

    def tail(self, e):
        LA = self.LA; I = self.I; L = self.L
        sWo, sP, sOut = sWoP, sX, sK
        sWb, sPo, sPx, sOb, sColo, sCohi = sWoff, 30, 31, sW, sW + 1, sW + 2
        vD0, vO, vLn, vXw, vOut, vOutX, vArm, vSig, vXr = 2, 240, vL16, 17, 7, 4, 0, 5, 18
        self.vLn = vLn
        OB1 = 32; ACC = [128, 168]
        TMP = 208
        st = lambda k: e(f"{self.clk} s[{sStamp+2*k}:{sStamp+2*k+1}]") if self.stamps else None
        gs = self.gsplit; Z = NM - gs
        assert sorted(self.tpos[("V", j)] for j in range(12, 16)) == [4, 5, 6, 7] and self.tpos[("V", 15)] == 7
        tiles = [(cb, hd, half) for cb in range(7) for hd, half in ((0, 0), (0, 1), (1, 0), (1, 1))]
        XB = lambda hd, k, nu: (0 if hd else 64) + 8*k + 4*nu
        MO = []
        for n, (cb, hd, half) in enumerate(tiles):
            A0 = ACC[cb & 1]; po = (n & 3) * 16384
            for q in range(4):
                k = 4 * half + q
                for mu in (3, 2, 1, 0):
                    first_ = (n % 4 == 0 and q == 0)
                    for nu in range(2):
                        B = q4("v", OB1 + 8*k + 4*nu) if hd else q4("a", PK(k) + 4*nu)
                        MO.append(dict(acc=q4("v", A0 + 16*(mu >> 1) + 8*nu + 4*(mu & 1)), frag=(("tr", 4*q + mu, po, 2048) if nu == 0 else None), B=B, first=first_))
                    if mu == 0:
                        for nu in range(2):
                            B = q4("v", ACC[1] + 8*q + 4*nu) if n < 2 else q4("a", XB(hd, k, nu))
                            MO.append(dict(acc=q4("v", A0 + 32 + 4*nu), frag=None, B=B, first=first_, lds=(("xb", n, hd, k, nu) if n < 6 else None)))
        self.number(MO, "o")
        M = self.M[gs:] + MO
        N2 = len(M); sc = Sched(N2); sc.ws = self.WS
        drop = set(id(it) for g, o, it in self.carry)
        for g in range(Z):
            for nm in ("hard", "fill", "head"):
                getattr(sc, nm)[0][g] = [it for it in getattr(self.sc, nm)[0][gs + g] if id(it) not in drop]
            sc.cost[0][g] = 8 + sum(it.cost for it in sc.hard[0][g] + sc.fill[0][g])
        pre = {g - gs: v for g, v in self.pre.items() if g >= gs}
        if self.stamps: pre[Z] = [I(f"{self.clk} s[{sStamp+24}:{sStamp+25}]\n{self.clk} s[{sStamp+10}:{sStamp+11}]")]
        if "slot" in self.mode: pre.setdefault(Z - LA, []).append(I(f"v_accvgpr_write_b32 a{aSave+2}, v{vDE}"))
        O = lambda g: Z + int(g)
        hard = lambda g, it: sc.put(g, it, hard=True)
        for n in range(28):
            sc.hard[0][O(n * G - LA)].insert(0, self.barrier_item(("ot", n), n if "tslot" in self.mode else None)); sc.cost[0][O(n * G - LA)] += 24
        for i, m in enumerate(MO):
            if m["frag"] is None:
                if m.get("lds"):
                    _, n, hd, k, nu = m["lds"]
                    hard(O(i - LA), L(f"ds_read_b128 {m['B']}, v{vXr + (k & 3)} offset:{(16384 if hd else 0) + (k >> 2) * 8192 + nu * 1024}", m["lds"]))
                continue
            for k, it in enumerate(self.read_items(m, vO)): hard(O(i - LA + k), it)
            if (i // G) % 4 == 3 and i // G < 27: hard(O(i - LA + 1), I(f"v_xor_b32 v{vO+m['frag'][1]}, 0x10000, v{vO+m['frag'][1]}"))
        def dma(i):
            cb, hd, half = tiles[i]
            def mk(q):
                sc_ = [f"s_add_u32 m0, s{sW4096}, {RB + (i % 8) * 16384}", f"s_add_u32 s{sT0}, s{sWb}, {(hd * 2048 + 128 * half) * 896 + cb * 128}"] if q == 0 else [f"s_add_u32 s{sT0}, s{sT0}, 12288"] if q == 2 else []
                return Item(lambda e: e.vm_op(f"buffer_load_dwordx4 v{vD0 + (q & 1)}, {srd(sWo)}, s{sT0} offen offset:{1024*q}{self.wopol} lds", ("ot", i)), self.dmacost, "m", sc_)
            return [mk(q) for q in range(4)]
        t0, t1 = vT4, vT4 + 1
        lines = lambda t: [I(x.strip()) for x in t.strip().split("\n")]
        e(f"""s_mov_b32 s{sWo+2}, 3670016
        s_mul_i32 s{sWb}, s7, {256*896}
        s_mul_i32 s{sT1}, s{sWave}, {32*896}
        s_add_u32 s{sWb}, s{sWb}, s{sT1}
        v_lshrrev_b32 v{t0}, 7, v{vLn}
        v_mul_u32_u24 v{t0}, 896, v{t0}
        v_and_b32 v{t1}, 0x70, v{vLn}
        v_lshrrev_b32 v{vD0}, 3, v{vLn}
        v_and_b32 v{vD0}, 0x60, v{vD0}
        v_xor_b32 v{t1}, v{t1}, v{vD0}
        v_add_u32 v{vD0}, v{t0}, v{t1}
        v_add_u32 v{vD0+1}, {8*896-1024}, v{vD0}
        v_add_u32 v{vXw}, s{sW2048}, v{vLn}""")
        gv = self.first_gap[0] - gs + 4
        g43 = 43 * G - LA + 2 - gs
        g = max(gv, 4)
        for i in range(6):
            free = {0: 0, 1: 0, 2: g43, 3: g43, 4: g43 + G, 5: g43 + 2 * G}[i]
            if i < 2: assert all(self.cons[t] + 2 <= 42 for t in range(21, NT) if self.pos[t] == i)
            g = max(g, free + 3)
            for it in dma(i): sc.putm(g, it); g += 4
            if i == self.opf:
                for pol in ([self.popol, " sc1"] if self.promo else [self.popol]):
                    sc.putm(g, Item(lambda e, pol=pol: e.vm_op(f"buffer_load_dword a{aDummy}, v{vT4+2}, {srd(sWo)}, 0 offen{pol}", ("pf",)), 16, "m", [], f"v_accvgpr_read_b32 v{vT4+2}, a{aPO}"))
                    g += 4
        g6 = max(g, O(-LA + 5))
        for n in range(22):
            for k, it in enumerate(dma(n + 6)): sc.putm((O(n * G - LA + 5) + 7 * k) if n else g6 + 4 * k, it)
        assert g6 + 16 < O(G - LA + 2)
        pub0 = [L(f"ds_write_b128 v{vXw}, {q4('a', PK(8+x)+4*nu)} offset:{x*8192+nu*1024}", ("pub",), 15) for x in range(2) for nu in range(2)]
        pub1 = [L(f"ds_write_b128 v{vXw}, {q4('v', OB1+64+8*x+4*nu)} offset:{16384+x*8192+nu*1024}", ("pub",), 15) for x in range(2) for nu in range(2)]
        for k, it in enumerate(pub0): hard(O(-2 * G + 10 * k), it)
        setup = lines(f"""
        v_bfe_u32 v{t0}, v{vLn}, 6, 4
        v_lshlrev_b32 v{t1}, 7, v{t0}
        v_bfe_u32 v{t0}, v{vLn}, 7, 2
        v_xor_b32 v{t0}, s{sWave}, v{t0}
        v_lshl_add_u32 v{t1}, v{t0}, 5, v{t1}
        v_bfe_u32 v{t0}, v{vLn}, 4, 2
        v_lshl_add_u32 v{t1}, v{t0}, 3, v{t1}
        v_add_u32 v{vO}, s{sWB0}, v{t1}
        v_bfe_u32 v{t0}, v{vLn}, 4, 4
        v_mul_u32_u24 v{t0}, 1792, v{t0}
        v_bfe_u32 v{t1}, v{vLn}, 9, 1
        v_lshl_add_u32 v{t0}, v{t1}, 4, v{t0}
        v_bfe_u32 v{t1}, v{vLn}, 8, 1
        v_lshl_add_u32 v{vOut}, v{t1}, 5, v{t0}
        v_mul_u32_u24 v{t1}, {16*1792}, v{t1}
        v_add_u32 v{vOutX}, v{t0}, v{t1}
        v_mov_b32 v{vSig}, s{sSig}
        s_lshr_b32 s{sT3}, s{sSig}, 2
        s_mul_i32 s{sT3}, s{sT3}, {PP_GB}
        s_add_u32 s{sT3}, s{sT3}, {PP_OFF}""")
        setup += [I(f"s_add_u32 s{sP}, s{sWs}, s{sT3}\ns_addc_u32 s{sP+1}, s{sWs+1}, 0")]
        setup += lines(f"""
        s_mov_b32 s{sP+2}, {0 if "nops" in self.mode else PP_GB}
        s_lshl_b32 s{sPo}, s{sWave}, 5
        s_add_u32 s{sPo}, s{sPo}, s7
        s_lshl_b32 s{sPo}, s{sPo}, 10
        s_lshl_b32 s{sPx}, s{sWave}, 3
        s_add_u32 s{sPx}, s{sPx}, s7
        s_add_u32 s{sPx}, s{sPx}, 128
        s_lshl_b32 s{sPx}, s{sPx}, 10
        s_mul_i32 s{sOb}, s6, {160*1792}
        s_mul_i32 s{sT3}, s5, 896
        s_add_u32 s{sOb}, s{sOb}, s{sT3}
        s_mov_b32 s{sOut}, s54
        s_mov_b32 s{sOut+1}, s55
        s_mov_b32 s{sOut+2}, {16*160*896*2}
        s_mov_b32 s{sColo}, 0x3f80
        s_mov_b32 s{sCohi}, 0x3f800000""")
        setup += [I(f"v_xor_b32 v{vO+r}, {(r >> 2) * 4096 + (r & 3) * 32}, v{vO}") for r in range(1, 16)]
        setup += [I(f"v_xor_b32 v{vXr+q}, {q * 2048}, v{vXw}") for q in range(4)]
        sc.spread(setup, 2, O(-LA - 4))
        hard(O(2), Item(lambda e: e.vm_op(f"buffer_load_dword v{vArm}, v{vSig}, {srd(sDbg)}, 0 offen sc1", ("arm",)), 12, "m"))
        nt = lambda k, kk: self.norm_tile(k, TMP + 16 * (kk & 1), "v", OB1 + 8*k)
        sc.spread(nt(8, 0) + nt(9, 0) + pub1, O(0), O(G - LA - 2))
        ed = [G - LA - 2, 42, 58, 74, 90, 106, 120, 134, 148]
        for k in range(8): sc.spread(nt(k, k), O(ed[k]), O(ed[k+1]))
        def block_out(cb):
            A0 = ACC[cb & 1]; out = []
            for j in range(5):
                b = A0 + 8*j
                so = f"s_add_u32 s{sT1}, s{sPo}, {(cb*20 + (j & 1)*2 + (j >> 1)) * 8192}" if j < 4 else f"s_add_u32 s{sT1}, s{sPx}, {cb * 20 * 8192}"
                def f(e, b=b, so=so):
                    e(so)
                    e.vm_op(f"buffer_store_dwordx4 {q4('v', b)}, v{vLn}, {srd(sP)}, s{sT1} offen sc1", ("ps", cb))
                out += self.qfrag(b) + [Item(f, 20, 'm')]
            return out
        for cb in range(6): sc.spread(block_out(cb), O(4 * G * (cb + 1) + 6), O(4 * G * (cb + 1) + 6 + self.stw))
        vZ, vOne, vPoll, vRet = 12, 13, 28, 14
        sG, sGw, sPr, sOk = sV, sT4, sRet, sFlag
        RB_ = lambda i, p: [208 + 4*p, 96 + 4*p, 168 + 4*p, 32 + 4*p, 64 + 4*p][i]
        def armchk(e):
            e.wait(vm=("arm",))
            e(f"v_readfirstlane_b32 s{sT3}, v{vArm}\ns_cmp_eq_u32 s{sT3}, 0\ns_cbranch_scc1 L_armspin\nL_armback:")
        sc.put(O(8 * G), Item(armchk, 16))
        sc.put(O(8 * G + 4), I(f"""v_mov_b32 v{vZ}, 0
            v_mov_b32 v{vOne}, 1
            s_lshl_b32 s{sGw}, s7, 2
            s_add_u32 s{sGw}, s{sGw}, s{sWave}
            s_lshl_b32 s{sPr}, s{sGw}, 13
            s_mov_b32 s{sG}, s{sP}
            s_mov_b32 s{sG+1}, s{sP+1}"""))
        for (cb, word), n in zip(((1, 1), (3, 2), (4, 3)), self.sigs):
            sc.hard[0][O(n * G - LA)].insert(0, Item(lambda e, cb=cb: e.wait(vm=("ps", cb)), 0, "s"))
            sc.put(O(n * G - LA + 1), Item(lambda e, word=word: e(f"""s_cmp_lg_u32 s{sWave}, 0
                s_cbranch_scc1 L_nosig{word}
                s_mov_b64 exec, 1
                global_atomic_add v{vZ}, v{vOne}, s[{sCt}:{sCt+1}] offset:{4*word} sc1
                s_mov_b64 exec, -1
                L_nosig{word}:"""), 12))
        poll = lambda t: Item(lambda e: e.vm_op(f"global_load_dwordx4 {q4('v', vPoll)}, v{vZ}, s[{sCt}:{sCt+1}] sc1", t), 12, "m")
        def gate(word, bit, tag):
            def f(e):
                e.wait(vm=tag)
                e(f"""v_readfirstlane_b32 s{sT3}, v{vPoll+word}
                s_cmp_ge_u32 s{sT3}, 8
                s_cselect_b32 s{sG+2}, {PP_GB}, 0
                s_cselect_b32 s{sT3}, {bit}, 0
                {f"s_mov_b32 s{sOk}, s{sT3}" if bit == 1 else f"s_or_b32 s{sOk}, s{sOk}, s{sT3}"}""")
            return Item(f, 24)
        def rload(i, d, tagged=True):
            out = []
            for p in range(8):
                sc_ = [f"s_add_u32 s{sSh}, s{sPr}, {i * 32 * 8192 + (p // 4) * 4096}"] if p % 4 == 0 else []
                t = f"buffer_load_dwordx4 {q4('v', RB_(i, p))}, v{vLn}, {srd(d)}, s{sSh} offen offset:{1024*(p%4)} sc1"
                out.append(Item(lambda e, t=t, p=p: e.vm_op(t, ("pl", i, p)), self.dmacost, "m", sc_))
            return out
        for i, (gs_, sp) in enumerate(self.gates):
            g0 = O(gs_ * G)
            sc.put(g0 - 56, poll(("poll", i)), hard=True)
            sc.put(g0, gate(i + 1, 1 << i, ("poll", i)))
            for k, it in enumerate(rload(i, sG)): sc.putm(g0 + 6 + sp * k, it)
            assert g0 + 6 + sp * 7 < (O(self.gates[i+1][0] * G) if i < 2 else N2 - 1)
        def rcomp(i, waits=True):
            acc = 240 + 8 * (i & 1); dst = 16 + 4 + 4 * (i & 1); va = 10 + (i & 1)
            e(f"""s_add_u32 s{sT0}, s{sGw}, {32*i}
            s_mul_i32 s{sT1}, s{sT0}, 3277
            s_lshr_b32 s{sT1}, s{sT1}, 16
            s_mul_i32 s{sT3}, s{sT1}, 20
            s_sub_u32 s{sT0}, s{sT0}, s{sT3}
            s_lshl_b32 s{sT1}, s{sT1}, 7
            s_add_u32 s{sT1}, s{sT1}, s{sOb}
            s_lshr_b32 s{sT3}, s{sT0}, 1
            s_mul_i32 s{sT3}, s{sT3}, {16*1792}
            s_lshl_b32 s{sPx}, s{sT0}, 6
            s_lshl_b32 s{sSh}, s{sT0}, 3
            s_and_b32 s{sPx}, s{sPx}, 64
            s_and_b32 s{sSh}, s{sSh}, 96
            s_xor_b32 s{sSh}, s{sSh}, s{sPx}
            v_xor_b32 v{va}, s{sSh}, v{vOut}
            s_lshl_b32 s{sPx}, s{sT0}, 5
            s_add_u32 s{sPx}, s{sPx}, {128*1792 - 16*32}
            s_cmp_lt_u32 s{sT0}, 16
            s_cselect_b32 s{sT3}, s{sT3}, s{sPx}
            s_cselect_b64 vcc, -1, 0
            s_add_u32 s{sT3}, s{sT3}, s{sT1}
            v_cndmask_b32 v{va}, v{vOutX}, v{va}, vcc""")
            for p in range(8):
                b = RB_(i, p)
                if p % 2 == 0 and waits: e.wait(vm=("pl", i, p + 1))
                for d in range(4):
                    if p == 0: e(f"v_lshlrev_b32 v{acc+2*d}, 16, v{b+d}\nv_and_b32 v{acc+2*d+1}, 0xffff0000, v{b+d}")
                    else: e(f"v_dot2_f32_bf16 v{acc+2*d}, v{b+d}, s{sColo}, v{acc+2*d}\nv_dot2_f32_bf16 v{acc+2*d+1}, v{b+d}, s{sCohi}, v{acc+2*d+1}")
            e("s_nop 2")
            for d in range(4): e(f"v_cvt_pk_bf16_f32 v{dst+d}, v{acc+2*d}, v{acc+2*d+1}")
            for it in self.qswap(dst): it(e)
            e(f"buffer_store_dwordx4 {q4('v', dst)}, v{va}, {srd(sOut)}, s{sT3} offen{self.outpol}")
        self.emit_range(e, M, sc, 0, 0, N2, pre, cyc=False)
        st(6)
        if "tslot" in self.mode: e(f"v_accvgpr_write_b32 a{aSave+2}, v{vDE}")
        for it in block_out(6): it(e)
        done0 = e.vm_done
        for i in range(2):
            e(f"s_bitcmp1_b32 s{sOk}, {i}\ns_cbranch_scc0 L_skip{i}")
            rcomp(i)
            e(f"L_skip{i}:")
            e.vm_done = done0
        e.wait(vm=("ps", 6))
        e("s_barrier")
        e(f"""s_cmp_lg_u32 s{sWave}, 0
        s_cbranch_scc1 L_noarr
        s_mov_b64 exec, 1
        global_atomic_add v{vRet}, v{vZ}, v{vOne}, s[{sCt}:{sCt+1}] sc0 sc1
        s_mov_b64 exec, -1
        L_noarr:
        s_cmp_lg_u32 s{sOk}, 7
        s_cbranch_scc1 L_redo
        L_redo_back:""")
        rcomp(2)
        e(f"""s_cmp_lg_u32 s{sWave}, 0
        s_cbranch_scc1 L_sync_done
        s_mov_b64 exec, 1
        s_mov_b32 s{sT3}, 0
        s_waitcnt vmcnt(1)
        v_add_u32 v{vRet}, 1, v{vRet}
        L_sync_l:
        s_nop 0
        v_readfirstlane_b32 s{sT0}, v{vRet}
        s_add_u32 s{sT3}, s{sT3}, 1
        s_cmp_ge_u32 s{sT0}, 8
        s_cbranch_scc1 L_sync_ok
        s_cmp_gt_u32 s{sT3}, 0x200000
        s_cbranch_scc1 L_sync_ok
        s_sleep {self.slp}
        global_load_dword v{vRet}, v{vZ}, s[{sCt}:{sCt+1}] sc1
        s_waitcnt vmcnt(0)
        s_branch L_sync_l
        L_sync_ok:
        s_mov_b64 exec, -1
        L_sync_done:
        s_barrier""")
        st(7)
        for it in rload(3, sP) + rload(4, sP): it.full(e)
        rcomp(3)
        e(f"s_cmp_lt_u32 s{sGw}, 12\ns_cbranch_scc0 L_fin")
        rcomp(4)
        e("L_fin:")
        def slow():
            e(f"""L_armspin:
            s_mov_b32 s{sT1}, 0
            L_armspin_l:
            s_sleep 8
            buffer_load_dword v{vArm}, v{vSig}, {srd(sDbg)}, 0 offen sc1
            s_waitcnt vmcnt(0)
            v_readfirstlane_b32 s{sT3}, v{vArm}
            s_add_u32 s{sT1}, s{sT1}, 1
            s_cmp_lg_u32 s{sT3}, 0
            s_cbranch_scc1 L_armback
            s_cmp_lt_u32 s{sT1}, 0x200000
            s_cbranch_scc1 L_armspin_l
            s_branch L_armback
            L_redo:
            s_mov_b32 s{sT1}, 0
            L_redo_l:
            global_load_dwordx4 {q4('v', vPoll)}, v{vZ}, s[{sCt}:{sCt+1}] sc1
            s_waitcnt vmcnt(0)
            v_readfirstlane_b32 s{sT3}, v{vPoll+3}
            s_add_u32 s{sT1}, s{sT1}, 1
            s_cmp_ge_u32 s{sT3}, 8
            s_cbranch_scc1 L_redo_go
            s_sleep 4
            s_cmp_lt_u32 s{sT1}, 0x200000
            s_cbranch_scc1 L_redo_l
            L_redo_go:""")
            for i in range(3):
                e(f"s_bitcmp1_b32 s{sOk}, {i}\ns_cbranch_scc1 L_rl{i}")
                for it in rload(i, sP): it.full(e)
                e(f"L_rl{i}:")
            e("s_waitcnt vmcnt(0)")
            for i in range(2):
                e(f"s_bitcmp1_b32 s{sOk}, {i}\ns_cbranch_scc1 L_rc{i}")
                rcomp(i, False)
                e(f"L_rc{i}:")
            e("s_branch L_redo_back")
        self.tail_slow = slow

    def prologue(self, e, code_bytes):
        e("s_cmp_ge_u32 s2, 256\ns_cbranch_scc1 L_end")
        if self.stamps: e(f"{self.clk} s[{sStamp}:{sStamp+1}]")
        e(f"""
        s_and_b32 s3, s2, 7
        s_lshr_b32 s4, s2, 3
        s_lshr_b32 s5, s3, 2
        s_mul_i32 s6, s5, 40
        s_add_u32 s30, s0, s6
        s_addc_u32 s31, s1, 0
        s_load_dwordx2 s[{sX}:{sX+1}], s[30:31], 0
        s_load_dwordx2 s[{sW}:{sW+1}], s[30:31], 24
        s_load_dwordx2 s[{sK}:{sK+1}], s[30:31], 8
        s_load_dwordx2 s[{sV}:{sV+1}], s[30:31], 16
        s_load_dwordx2 s[{sWoP}:{sWoP+1}], s[30:31], 32
        s_load_dwordx2 s[{sWs}:{sWs+1}], s[0:1], 96
        s_load_dwordx2 s[{sCt}:{sCt+1}], s[0:1], 88
        v_lshrrev_b32 v96, 6, v0
        v_and_b32 v97, 63, v0
        v_lshlrev_b32 v104, 4, v0
        v_readfirstlane_b32 s{sWave}, v96
        s_getpc_b64 s[56:57]
        s_mov_b32 s58, {code_bytes}
        s_mov_b32 s59, 0x20000
        s_lshl_b32 s{sCode}, s4, 12
        """)
        e.vm_op(f"buffer_load_dwordx4 a[0:3], v104, s[56:59], s{sCode} offen", ("code",))
        e(f"""
        s_and_b32 s7, s3, 3
        s_lshl_b32 s7, s7, 1
        s_and_b32 s6, s4, 1
        s_add_u32 s7, s7, s6
        s_lshr_b32 s6, s4, 1
        s_lshl_b32 s{sW4096}, s{sWave}, 12
        s_lshl_b32 s{sXE}, s{sWave}, 10
        s_lshl_b32 s{sWoff}, s7, 9
        v_lshrrev_b32 v98, 5, v97          ; hf
        v_and_b32 v99, 31, v97
        v_lshrrev_b32 v105, 3, v97         ; l/8
        v_and_b32 v103, 7, v97
        v_bfe_u32 v106, v97, 4, 1          ; kg0
        v_lshl_add_u32 v107, v106, 1, v98
        """)
        for q in range(2):
            e(f"""
            v_xor_b32 v101, v107, v103
            {"v_xor_b32 v101, 4, v101" if q else ""}
            v_lshlrev_b32 v101, 4, v101
            v_subrev_u32 v101, {1024*q}, v101
            v_add_u32 v100, {8*q}, v105
            v_lshl_add_u32 v102, v100, 9, v101
            v_accvgpr_write_b32 a{aDK+q}, v102
            v_lshl_add_u32 v100, v96, 5, v100
            v_mul_u32_u24 v102, 896, v100
            v_add_u32 v{vDX+q}, v102, v101
            """)
        e(f"""
        v_and_b32 v100, 1, v96
        v_lshlrev_b32 v108, 2, v100        ; 4*w0
        v_xor_b32 v101, v107, v103
        v_xor_b32 v101, v101, v108
        v_lshlrev_b32 v101, 4, v101
        v_lshl_add_u32 v100, v96, 3, v105
        v_add_u32 v100, 128, v100
        v_mul_u32_u24 v102, 896, v100
        v_add_u32 v{vDE}, v102, v101
        v_accvgpr_write_b32 a{aDE}, v{vDE}
        v_lshrrev_b32 v109, 1, v96         ; w1
        """)
        for q in range(2):
            e(f"""
            v_add3_u32 v100, v108, v98, {2*q}
            v_lshlrev_b32 v101, 1, v100
            v_xor_b32 v101, v101, v99
            v_lshlrev_b32 v101, 4, v101
            v_subrev_u32 v101, {1024*q}, v101
            v_lshl_add_u32 v102, v109, 4, v100
            v_lshl_add_u32 v102, v102, 9, v101
            v_accvgpr_write_b32 a{aDV+q}, v102
            v_lshl_add_u32 v102, v108, 2, v98
            v_lshl_add_u32 v102, v109, 3, v102
            v_add_u32 v102, {2*q}, v102
            v_lshl_add_u32 v{vDW+q}, v102, 13, v101
            """)
        e(f"""
        s_mul_i32 s{sT1}, s6, 143360
        s_mov_b32 s{sX+2}, 143360
        s_mov_b32 s{sX+3}, 0x20000
        s_mov_b32 s{sW+2}, 3670016
        s_mov_b32 s{sW+3}, 0x20000
        s_waitcnt lgkmcnt(0)
        s_add_u32 s{sX}, s{sX}, s{sT1}
        s_addc_u32 s{sX+1}, s{sX+1}, 0
        s_load_dwordx2 s[54:55], s[0:1], 80
        """)
        carry = sorted(self.carry, key=lambda t: (t[0], t[1]))
        dmas = [it for g, o, it in carry if g < -self.LA - 4 and getattr(it, "dma", False)]
        rest = [(g, it) for g, o, it in carry if not any(it is d for d in dmas)]
        nm_ = 0; k0 = len(dmas)
        for k, it in enumerate(dmas):
            if it.kind == "m": nm_ += 1
            if nm_ == self.nfirst: k0 = k + 1; break
        for it in dmas[:k0]: it(e)
        if self.pfs:
            wp, xp = self.pfs
            e(f"""v_lshrrev_b32 v100, 6, v104
            v_lshlrev_b32 v100, 17, v100
            v_and_b32 v101, 48, v104
            v_lshl_add_u32 v100, v101, 3, v100
            s_lshl_b32 s{sT1}, s6, 13
            s_add_u32 s{sT1}, s{sT1}, s{sWoff}""")
            if wp is not None: e.vm_op(f"buffer_load_dword a{aDummy}, v100, {srd(sW)}, s{sT1} offen{wp}", ("pf",))
            e(f"""v_lshlrev_b32 v101, 3, v104
            s_and_b32 s{sT1}, s4, 1
            s_mul_i32 s{sT1}, s{sT1}, 71680
            v_cmp_gt_u32 vcc, {71680 - 65536}, v101
            v_mov_b32 v102, 0x7ffffff0""")
            if xp is not None:
                for k in range(3):
                    if k == 2: e("v_cndmask_b32 v101, v102, v101, vcc")
                    e.vm_op(f"buffer_load_dword a{aDummy}, v101, {srd(sX)}, s{sT1} offen{xp}", ("pf",))
                    e(f"s_add_u32 s{sT1}, s{sT1}, 32768")
        for it in dmas[k0:]: it(e)
        e(f"""
        s_lshl_b32 s{sKVoff}, s6, 4
        s_add_u32 s{sKVoff}, s{sKVoff}, s7
        s_lshl_b32 s{sKVoff}, s{sKVoff}, 18
        {f"s_mov_b32 s{sKVoff}, 0" if "samekv" in self.mode else ""}
        s_lshl_b32 s{sKVk}, s{sWave}, 14
        s_add_u32 s{sKVk}, s{sKVk}, s{sKVoff}
        s_mov_b32 s{sWoP+3}, 0x20000
        s_mov_b32 s{sK+2}, 0x4000000
        s_mov_b32 s{sK+3}, 0x20000
        s_mov_b32 s{sV+2}, 0x4000000
        s_mov_b32 s{sV+3}, 0x20000
        """)
        for it in self.pro_park: it.full(e)
        e(f"""
        s_add_u32 s{sCode}, s{sCode}, s{sXE}
        s_add_u32 s{sWB0}, s{sW4096}, {RB}
        s_add_u32 s{sWB1}, s{sW4096}, {RB + 65536}
        s_lshl_b32 s{sW128}, s{sWave}, 7
        s_lshl_b32 s{sW2048}, s{sWave}, 11
        s_lshl_b32 s{sW4}, s{sWave}, 2
        s_mov_b32 s{sC}, 0x{f32bits(math.log2(math.e)/16.0):08x}
        s_mov_b32 s{sIter}, 0
        s_mov_b32 s{sHalf}, -1
        s_mov_b32 s{sHalf+1}, 0
        v_lshlrev_b32 v{vL16}, 4, v97
        v_and_b32 v100, 15, v97                       ; n / i
        v_bfe_u32 v101, v100, 1, 1
        v_bfe_u32 v102, v100, 2, 1
        v_lshl_add_u32 v101, v101, 1, v102
        v_bfe_u32 v102, v100, 3, 1
        v_lshl_add_u32 v101, v102, 2, v101            ; f'(n)
        v_xor_b32 v101, v101, v107
        v_lshlrev_b32 v101, 4, v101
        v_lshl_add_u32 v{vKP}, v100, 7, v101
        v_lshrrev_b32 v101, 2, v100                   ; rho
        v_and_b32 v102, 3, v100                       ; cc
        v_lshl_add_u32 v110, v106, 2, v101
        v_lshlrev_b32 v110, 5, v110
        v_lshl_add_u32 v110, v102, 3, v110
        v_lshl_add_u32 v111, v106, 3, v101
        v_lshl_add_u32 v102, v98, 2, v111
        v_lshl_add_u32 v102, v102, 9, v110
        s_lshl_b32 s{sT1}, s{sWave}, 6
        v_xor_b32 v102, s{sT1}, v102
        v_accvgpr_write_b32 a{aTV}, v102
        v_lshl_add_u32 v102, v98, 4, v111
        v_lshl_add_u32 v102, v102, 9, v110
        v_accvgpr_write_b32 a{aTW}, v102
        v_lshlrev_b32 v100, 3, v104
        v_and_b32 v100, 0x3fff, v100
        v_cmp_gt_u32 vcc, 14336, v100
        v_lshrrev_b32 v101, 11, v104
        v_mul_u32_u24 v101, {8*229376}, v101
        s_mul_i32 s{sT3}, s6, 14336
        s_mul_i32 s{sT1}, s7, 229376
        s_add_u32 s{sT3}, s{sT3}, s{sT1}
        v_add3_u32 v100, v100, v101, s{sT3}
        v_mov_b32 v101, 0x7ffffff0
        v_cndmask_b32 v100, v101, v100, vcc
        v_accvgpr_write_b32 a{aPO}, v100
        v_lshrrev_b32 v100, 6, v104
        v_lshlrev_b32 v100, 17, v100
        v_and_b32 v101, 48, v104
        v_lshl_add_u32 v100, v101, 3, v100
        s_lshl_b32 s{sT1}, s6, 13
        v_add_u32 v100, s{sT1}, v100
        v_accvgpr_write_b32 a{aPW}, v100
        s_lshl_b32 s{sSig}, s5, 4
        s_add_u32 s{sSig}, s{sSig}, s6
        s_lshl_b32 s{sSig}, s{sSig}, 2
        s_mov_b32 s{sDbg}, s{sCt}
        s_mov_b32 s{sDbg+1}, s{sCt+1}
        s_mov_b32 s{sDbg+2}, 128
        s_mov_b32 s{sDbg+3}, 0x20000
        s_lshl_b32 s{sT1}, s{sSig}, 6
        s_add_u32 s{sT1}, s{sT1}, {CT_OFF}
        s_add_u32 s{sCt}, s{sWs}, s{sT1}
        s_addc_u32 s{sCt+1}, s{sWs+1}, 0
        v_mov_b32 v100, 0
        v_mov_b32 v101, 0
        v_mov_b32 v102, 0
        v_mov_b32 v103, 0
        s_add_u32 s{sT1}, s7, s{sWave}
        s_cmp_lg_u32 s{sT1}, 0
        s_cbranch_scc1 L_nozero
        s_mov_b64 exec, 1
        global_store_dwordx4 v100, v[100:103], s[{sCt}:{sCt+1}] sc1
        s_mov_b64 exec, -1
        L_nozero:
        """)
        e(warm_call("A", sWave))
        e("s_waitcnt lgkmcnt(0)")
        if self.stamps: e(f"{self.clk} s[{sStamp+2}:{sStamp+3}]")
        for g, it in rest: it(e)
```

```python
from cfg3 import *
W = "work/"
build3(W + "d4_4.s", dict(D3, mode="slot"), stamps=True)
build3(W + "d4_8.s", dict(D3, mode="slot", v15sp=8), stamps=True)
build3(W + "d4_11.s", dict(D3, mode="slot", v15sp=11), stamps=True, verbose=True)
build3(W + "d4_11b.s", dict(D3, mode="slot", v15sp=11, pace=(6, 13.8, 1.12)), stamps=True)
```
